```python
import torch

def _softmax(x, axis=-1):
    return torch.softmax(x, dim=axis)

def _gelu(x):
    return torch.nn.functional.gelu(x, approximate='tanh')

def _silu(x):
    return torch.nn.functional.silu(x)

def _sigmoid(x):
    return torch.sigmoid(x)

def _layernorm(x, axis=-1, eps=1e-05):
    m = x.mean(dim=axis, keepdim=True)
    v = x.var(dim=axis, keepdim=True, unbiased=False)
    return (x - m) / torch.sqrt(v + eps)

def _scatter_add(tgt, idx, src, axis=0):
    return tgt.clone().index_add_(axis, idx, src)

def _segment_sum(src, seg, n):
    out = torch.zeros((n,) + src.shape[1:], dtype=src.dtype)
    return out.index_add_(0, seg, src)

def _pad(x, pw):
    flat = tuple((v for pair in reversed(pw) for v in pair))
    return torch.nn.functional.pad(x, flat)
kernel_name = 'gated_mix__spectral_fnet__mixer_gmlp__prompt'

def setup_inputs():

    _w = lambda a: (lambda t: t.to(torch.bfloat16) if t.is_floating_point() else t)(torch.as_tensor(a))

    def _A_setup():
        B, S, D = (1, 2048, 512)
        ns = torch.arange(S)[:, None] * torch.arange(S)[None, :]
        nd = torch.arange(D)[:, None] * torch.arange(D)[None, :]
        Ws_re = torch.cos(-2.0 * torch.pi * ns / S).to(float)
        Ws_im = torch.sin(-2.0 * torch.pi * ns / S).to(float)
        Wd_re = torch.cos(-2.0 * torch.pi * nd / D).to(float)
        Wd_im = torch.sin(-2.0 * torch.pi * nd / D).to(float)
        return {'x': _w((lambda *s: torch.randn(*s, dtype=torch.bfloat16) * 0.05)(B, S, D)), 'dft_seq_re': _w(Ws_re), 'dft_seq_im': _w(Ws_im), 'dft_hid_re': _w(Wd_re), 'dft_hid_im': _w(Wd_im)}
    _A_in = _A_setup()

    def _B_setup():
        B, S, D, F = (1, 2048, 512, 1792)
        Fh = F // 2
        return {'x': _w((lambda *s: torch.randn(*s, dtype=torch.bfloat16) * 0.05)(B, S, D)), 'w_in': _w((lambda *s: torch.randn(*s, dtype=torch.bfloat16) * 1.6)(D, 2 * Fh)), 'w_sp': _w(0.01 * (lambda *s: torch.randn(*s, dtype=torch.bfloat16) * 1.6)(S, S)), 'b_sp': _w(1.0 + 0.01 * (lambda *s: torch.randn(*s, dtype=torch.bfloat16) * 0.8)(S)), 'w_out': _w((lambda *s: torch.randn(*s, dtype=torch.bfloat16) * 0.8)(Fh, D))}
    _B_in = _B_setup()
    return {'A_x': _A_in['x'], 'A_dft_seq_re': _A_in['dft_seq_re'], 'A_dft_seq_im': _A_in['dft_seq_im'], 'A_dft_hid_re': _A_in['dft_hid_re'], 'A_dft_hid_im': _A_in['dft_hid_im'], 'B_x': _B_in['x'], 'B_w_in': _B_in['w_in'], 'B_w_sp': _B_in['w_sp'], 'B_b_sp': _B_in['b_sp'], 'B_w_out': _B_in['w_out'], 'gate_w': _w((lambda *s: torch.randn(*s, dtype=torch.bfloat16) * 0.05)(512) * 16.0)}

def reference(A_x, A_dft_seq_re, A_dft_seq_im, A_dft_hid_re, A_dft_hid_im, B_x, B_w_in, B_w_sp, B_b_sp, B_w_out, gate_w):

    def _A_ref(x, dft_seq_re, dft_seq_im, dft_hid_re, dft_hid_im):
        a = torch.einsum('bsd,ed->bse', x, dft_hid_re)
        b = torch.einsum('bsd,ed->bse', x, dft_hid_im)
        y = torch.einsum('ts,bse->bte', dft_seq_re, a) - torch.einsum('ts,bse->bte', dft_seq_im, b)
        return y

    def _B_ref(x, w_in, w_sp, b_sp, w_out):
        B, S, D = x.shape
        F = w_in.shape[-1]
        Fh = F // 2
        z = _gelu(torch.einsum('bsd,df->bsf', x, w_in))
        z1 = z[..., :Fh].clone()
        z2 = _layernorm(z[..., Fh:], axis=-1)
        g = torch.einsum('ts,bsf->btf', w_sp, z2) + b_sp[None, :, None]
        return torch.einsum('bsf,fd->bsd', z1 * g, w_out)
    x = A_x
    g = _sigmoid((x * gate_w).sum(-1, keepdims=True))
    a = _A_ref(x, A_dft_seq_re, A_dft_seq_im, A_dft_hid_re, A_dft_hid_im)
    b = _B_ref(x, B_w_in, B_w_sp, B_b_sp, B_w_out)
    return g * a + (1 - g) * b
```

```python
import sys, struct
NAME = "gated_mix__spectral_fnet__mixer_gmlp__prompt"
OPT = dict(prof=0, xmap=1, stop=0, touch=1)
for a in sys.argv[2:]:
    k, v = a.split("="); OPT[k] = int(v)

def fbits(x): return "0x%08x" % struct.unpack("<I", struct.pack("<f", x))[0]

class Asm:
    def __init__(s):
        s.L = []; s.vm = []; s.lg = []; s.n = 0; s.nlab = 0; s.nst = 0
    def __call__(s, t):
        for ln in t.split("\n"):
            ln = ln.strip()
            if ln: s.L.append("    " + ln if not ln.endswith(":") else ln)
    def c(s, t): s.L.append("    ; " + t)
    def lab(s, p="L"):
        s.nlab += 1; return "%s%d" % (p, s.nlab)
    def vmem(s, t):
        if len(s.vm) >= 62: s.wait_vm(s.vm[len(s.vm) - 62])
        s(t); s.n += 1; s.vm.append(s.n); return s.n
    def ds(s, t):
        if len(s.lg) >= 15: s.wait_lg(s.lg[len(s.lg) - 15])
        s(t); s.n += 1; s.lg.append(s.n); return s.n
    def wait_vm(s, tok):
        if tok not in s.vm: return
        i = s.vm.index(tok); s("s_waitcnt vmcnt(%d)" % (len(s.vm) - 1 - i)); s.vm = s.vm[i + 1:]
    def wait_lg(s, tok):
        if tok not in s.lg: return
        i = s.lg.index(tok); s("s_waitcnt lgkmcnt(%d)" % (len(s.lg) - 1 - i)); s.lg = s.lg[i + 1:]
    def wait_all_vm(s): s("s_waitcnt vmcnt(0)"); s.vm = []
    def wait_all_lg(s):
        if s.lg: s("s_waitcnt lgkmcnt(0)")
        s.lg = []
    def stamp(s):
        if not OPT["prof"]: return
        s("s_memtime s[78:79]\ns_waitcnt lgkmcnt(0)\ns_mov_b32 s%d, s78" % (80 + s.nst)); s.lg = []; s.nst += 1
        assert s.nst <= 20
A = Asm()
def vr(b, n=1): return "v%d" % b if n == 1 else "v[%d:%d]" % (b, b + n - 1)
def ar(b, n=1): return "a%d" % b if n == 1 else "a[%d:%d]" % (b, b + n - 1)
def mfma(d, a, b, c=None):
    A("v_mfma_f32_16x16x32_bf16 %s, %s, %s, %s" % (d, a, b, d if c is None else c))

EPOCH, FLAGZ, FLAGF, FLAGH, STAT = 0x0, 0x1000, 0x3000, 0x4000, 0x10000
Z2N, HB, F2, TS, WS_SIZE = 0x100000, 0x500000, 0x900000, 0xC00000, 0x1000000
X = [1024 + 16384 * i for i in range(4)]
S = [66560 + 28672 * i for i in range(3)]
GATE = 0
LDS_SIZE = 163840
sX, sWIN, sWSP, sWOUT, sWSR, sWSI, sWS, sOUT, sBSP, sGW, sTMP = ["s[%d:%d]" % (b, b + 3) for b in range(4, 48, 4)]
sWDR, sWDI, sTAG = 48, 50, 52
sR, sC, sW = "s54", "s55", "s56"
sW2048, sW7168, sW8192 = "s57", "s58", "s59"
sCU = ["s60", "s61", "s62", "s63"]
sSEL = ["s64", "s65", "s66", "s67"]; sM0, sM1 = "s68", "s69"
sT0, sT1, sT2, sT3, sSPIN, sKB = "s70", "s71", "s72", "s73", "s74", "s75"
sGC = "s[76:77]"
vLane, vI16, vQ, vXrd0, vXrd1, vWrd, vL16, vTrow, vB, vG = range(1, 11)
vT = list(range(11, 20))
vWoff = list(range(20, 27))
vXA = [27, 28]; vXR = [29, 30]; vWD = [32, 34]
vCo = [36, 37]
vR32 = 40
vZ2 = 56
vZ1 = 84
vGA = 112
vAB = 116
vFR = 132

def spin(check_code, code):
    l, d = A.lab("Lspin"), A.lab("Ldone")
    A("s_mov_b32 %s, 0x40000" % sSPIN)
    A(l + ":")
    check_code()
    A.vm = []
    A("s_cbranch_vccz %s" % d)
    A("s_sub_u32 %s, %s, 1\ns_cmp_eq_u32 %s, 0\ns_cbranch_scc1 %s\ns_sleep 1\ns_branch %s" % (sSPIN, sSPIN, sSPIN, d, l))
    A(d + ":")

def gelu(base, n, tmp):
    t = tmp
    for p0 in range(0, n, 4):
        ps = [p for p in (p0, p0 + 2) if p < n]
        for k, p in enumerate(ps): A("v_pk_mul_f32 %s, %s, %s" % (vr(t + 2 * k, 2), vr(base + p, 2), vr(base + p, 2)))
        for k, p in enumerate(ps): A("v_pk_fma_f32 %s, %s, %s, %s op_sel:[0,0,1] op_sel_hi:[1,0,1]" % (vr(t + 2 * k, 2), vr(t + 2 * k, 2), sGC, sGC))
        for k, p in enumerate(ps): A("v_pk_mul_f32 %s, %s, %s" % (vr(t + 2 * k, 2), vr(t + 2 * k, 2), vr(base + p, 2)))
        for k in range(2 * len(ps)): A("v_exp_f32 %s, %s" % (vr(t + k), vr(t + k)))
        if len(ps) == 1: A("s_nop 0")
        for k, p in enumerate(ps): A("v_pk_add_f32 %s, %s, 1.0 op_sel_hi:[1,0]" % (vr(t + 2 * k, 2), vr(t + 2 * k, 2)))
        for k in range(2 * len(ps)): A("v_rcp_f32 %s, %s" % (vr(t + k), vr(t + k)))
        if len(ps) == 1: A("s_nop 0")
        for k, p in enumerate(ps): A("v_pk_mul_f32 %s, %s, %s" % (vr(base + p, 2), vr(base + p, 2), vr(t + 2 * k, 2)))

def qreduce(regs, tmps):
    for op in ("v_permlane16_swap_b32", "v_permlane32_swap_b32"):
        for r, t in zip(regs, tmps): A("v_mov_b32 %s, %s" % (vr(t), vr(r)))
        A("s_nop 1")
        for r, t in zip(regs, tmps): A("%s %s, %s" % (op, vr(t), vr(r)))
        A("s_nop 1")
        for r, t in zip(regs, tmps): A("v_add_f32 %s, %s, %s" % (vr(r), vr(r), vr(t)))

def dma_x(srd, voffs, dst, G):
    for sub in (0, 1):
        kb = 128 * (2 * G + sub)
        A("s_add_u32 m0, %s, %d" % (sW2048, dst + sub * 8192 - kb))
        A("s_nop 0")
        for h in (0, 1):
            if srd is None:
                tok = A.vmem("global_load_lds_dwordx4 %s, off offset:%d" % (vr(voffs[h], 2), 1024 * h + kb))
            else:
                tok = A.vmem("buffer_load_dwordx4 %s, %s, 0 offen offset:%d lds" % (vr(voffs[h]), srd, 1024 * h + kb))
    return tok
def dma_w(dst, G, col):
    A("s_mov_b32 %s, %d" % (sT0, G * 458752 + col))
    for i in range(7):
        if i in (0, 4):
            A("s_add_u32 m0, %s, %d\ns_nop 0" % (sW7168, dst + (4096 if i else 0)))
        tok = A.vmem("buffer_load_dwordx4 %s, %s, %s offen offset:%d lds" % (vr(vWoff[i]), sWIN, sT0, 1024 * (i & 3)))
    return tok

class Pipe:
    def __init__(s): s.items = []
    def add(s, reads, fn): s.items.append((reads, fn))
    def run(s, look):
        toks = {}
        def issue(i):
            if i < len(s.items): toks[i] = [A.ds(t) for t in s.items[i][0]]
        for i in range(look): issue(i)
        for i, (reads, fn) in enumerate(s.items):
            if toks[i]: A.wait_lg(toks[i][-1])
            fn()
            issue(i + look)

def group_barrier(tok):
    A.wait_all_lg(); A.wait_vm(tok); A("s_barrier")

def kernel():
    A("s_cmp_ge_u32 s2, 256\ns_cbranch_scc1 Lend")
    A("s_load_dwordx16 s[60:75], s[0:1], 0\ns_load_dwordx8 s[80:87], s[0:1], 64\ns_load_dwordx4 s[88:91], s[0:1], 96")
    A("s_getpc_b64 s[44:45]\ns_mov_b32 s46, Lend-%s_kernel\ns_mov_b32 s47, 0x20000" % NAME)
    A("s_lshr_b32 s3, s2, 3\ns_lshl_b32 s76, s3, 10\nv_and_b32 v11, 7, v0\nv_lshlrev_b32 v11, 7, v11\nv_add_u32 v11, s76, v11")
    A.vmem("buffer_load_dword v12, v11, %s, 0 offen" % sTMP)
    A("s_and_b32 s76, s2, 7")
    if OPT["xmap"] == 1:
        A("s_lshr_b32 %s, s3, 3\ns_lshl_b32 s77, s76, 2\ns_add_u32 %s, %s, s77\ns_and_b32 %s, s3, 7" % (sR, sR, sR, sC))
    else:
        A("s_lshr_b32 %s, s76, 1\ns_lshl_b32 %s, %s, 3\ns_lshr_b32 s77, s3, 2\ns_add_u32 %s, %s, s77" % (sR, sR, sR, sR, sR))
        A("s_and_b32 %s, s76, 1\ns_lshl_b32 %s, %s, 2\ns_and_b32 s77, s3, 3\ns_add_u32 %s, %s, s77" % (sC, sC, sC, sC, sC))
    A("v_lshrrev_b32 v11, 6, v0\nv_and_b32 %s, 63, v0" % vr(vLane))
    A("v_readfirstlane_b32 %s, v11" % sW)
    A("v_and_b32 %s, 15, v0\nv_lshrrev_b32 %s, 4, %s\nv_lshlrev_b32 %s, 4, %s" % (vr(vI16), vr(vQ), vr(vLane), vr(vL16), vr(vLane)))
    A("s_lshl_b32 %s, %s, 11\ns_mul_i32 %s, %s, 7168\ns_lshl_b32 %s, %s, 13" % (sW2048, sW, sW7168, sW, sW8192, sW))
    A("v_lshrrev_b32 v11, 3, %s\nv_and_b32 v15, 7, v0\nv_lshrrev_b32 v16, 1, v11" % vr(vLane))
    A("v_xor_b32 v13, v15, v16\nv_lshlrev_b32 v13, 4, v13\nv_xor_b32 v14, 64, v13")
    A("s_lshl_b32 s76, %s, 16\ns_lshl_b32 s77, %s, 14\ns_add_u32 s76, s76, s77" % (sR, sW))
    A("v_lshl_add_u32 v15, v11, 10, s76")
    A("v_add_u32 %s, v15, v13\nv_add_u32 %s, v15, v14\nv_add_u32 %s, 7168, %s" % (vr(vXA[0]), vr(vXA[1]), vr(vXA[1]), vr(vXA[1])))
    A("s_mul_i32 s76, %s, 224\ns_mul_i32 s77, %s, 114688\ns_add_u32 s76, s76, s77\ns_movk_i32 s77, 3584\ns_movk_i32 s78, 4682" % (sC, sW))
    for i in range(7):
        A("v_add_u32 v15, %d, %s\nv_mul_u32_u24 v16, s78, v15\nv_lshrrev_b32 v16, 16, v16" % (64 * i, vr(vLane)))
        A("v_mul_u32_u24 v17, 14, v16\nv_sub_u32 v17, v15, v17")
        A("v_and_b32 v18, 12, v16\nv_lshlrev_b32 v18, 1, v18\nv_and_or_b32 v18, v16, 3, v18\nv_lshrrev_b32 v16, 4, v16\nv_lshl_add_u32 v18, v16, 2, v18")
        A("v_lshl_add_u32 v17, v17, 4, s76\nv_mad_u32_u24 %s, v18, s77, v17" % vr(vWoff[i]))
        if i & 3: A("v_subrev_u32 %s, %d, %s" % (vr(vWoff[i]), 1024 * (i & 3), vr(vWoff[i])))
    A("s_waitcnt lgkmcnt(0)")
    def srd(b, src, size): A("s_mov_b32 s%d, s%d\ns_mov_b32 s%d, s%d\ns_mov_b32 s%d, %d\ns_mov_b32 s%d, 0x20000" % (b, src, b + 1, src + 1, b + 2, size, b + 3))
    srd(4, 60, 2097152); srd(8, 72, 1835008)
    A("s_load_dwordx2 s[92:93], s[90:91], %d" % EPOCH)
    tokA = []
    for G in range(3):
        dma_x(sX, vXA, X[G], G);
        A("s_mov_b32 s79, %d" % (G * 458752 + 1792))
        for i in range(7):
            if i in (0, 4): A("s_add_u32 m0, %s, %d\ns_nop 0" % (sW7168, S[G] + (4096 if i else 0)))
            tok = A.vmem("buffer_load_dwordx4 %s, %s, s79 offen offset:%d lds" % (vr(vWoff[i]), sWIN, 1024 * (i & 3)))
        tokA.append(tok)
    dma_x(sX, vXA, X[3], 3)
    srd(12, 74, 8388608); srd(16, 82, 917504); srd(20, 62, 8388608); srd(24, 64, 8388608)
    srd(28, 90, WS_SIZE); srd(32, 86, 2097152); srd(36, 80, 4096); srd(40, 84, 1024); srd(44, 88, 256)
    A("s_mov_b64 s[48:49], s[66:67]\ns_mov_b64 s[50:51], s[68:69]")
    A("s_mov_b32 m0, %d\ns_nop 0" % GATE)
    A.vmem("buffer_load_dwordx4 %s, %s, 0 offen lds" % (vr(vL16), sGW))
    A("v_and_b32 v17, 4, v11\nv_lshlrev_b32 v17, 1, v17\nv_and_or_b32 v17, v11, 3, v17")
    A("s_and_b32 s76, %s, 1\ns_lshl_b32 s76, s76, 8\ns_lshr_b32 s77, %s, 1\ns_lshl_b32 s77, s77, 5\ns_add_u32 s76, s76, s77\ns_add_u32 s76, s76, %s" % (sW, sW, sR))
    A("s_lshl_b32 s77, s76, 10\nv_lshl_add_u32 v15, v17, 16, s77")
    A("v_add_u32 %s, v15, v13\nv_add_u32 %s, v15, v14\nv_add_u32 %s, %d, %s" % (vr(vXR[0]), vr(vXR[1]), vr(vXR[1]), 1024 * 1024 - 1024, vr(vXR[1])))
    A("v_and_b32 v15, 12, %s\nv_lshlrev_b32 v15, 1, v15\nv_and_or_b32 v15, %s, 3, v15\nv_lshl_add_u32 %s, v15, 6, s76" % (vr(vI16), vr(vI16), vr(vTrow)))
    A("v_lshlrev_b32 v15, 1, %s" % vr(vTrow))
    tokB = A.vmem("buffer_load_ushort %s, v15, %s, 0 offen" % (vr(vB), sBSP))
    A("s_lshl_b32 s77, %s, 12\ns_lshl_b32 s78, %s, 10\ns_add_u32 s77, s77, s78\nv_lshl_add_u32 v15, v17, 18, s77" % (sR, sW))
    A("v_add_u32 %s, v15, v13\nv_add_u32 %s, v15, v14\nv_add_u32 %s, %d, %s" % (vr(vCo[0]), vr(vCo[1]), vr(vCo[1]), 1024 * 4096 - 1024, vr(vCo[1])))
    for u in range(4):
        A("s_add_u32 s77, %s, %d\ns_and_b32 s78, s77, 1\ns_lshl_b32 s78, s78, 20\ns_and_b32 s77, s77, 2\ns_lshl_b32 s77, s77, 16\ns_add_u32 %s, s77, s78" % (sW, u, sCU[u]))
    A("s_cmp_lt_u32 %s, 2\ns_cselect_b32 s76, s48, s50\ns_cselect_b32 s77, s49, s51" % sW)
    A("s_lshl_b32 s78, %s, 15\ns_and_b32 s79, %s, 1\ns_lshl_b32 s79, s79, 14\ns_add_u32 s78, s78, s79\ns_add_u32 s76, s76, s78\ns_addc_u32 s77, s77, 0" % (sC, sW))
    A("v_lshl_add_u32 v18, v11, 10, v13\nv_mov_b32 v19, 0\nv_lshl_add_u64 %s, v[18:19], 0, s[76:77]" % vr(vWD[0], 2))
    A("v_lshl_add_u32 v18, v11, 10, v14\nv_add_u32 v18, 7168, v18\nv_lshl_add_u64 %s, v[18:19], 0, s[76:77]" % vr(vWD[1], 2))
    A("s_add_u32 s76, s48, %d\ns_addc_u32 s77, s49, 0\nv_mov_b32 v18, v13\nv_lshl_add_u64 v[18:19], v[18:19], 0, s[76:77]" % (256 * 1024))
    A("s_lshl_b32 s78, %s, 2\ns_add_u32 s78, s78, %s\ns_cmp_eq_u32 s78, 2\ns_cselect_b32 s78, 8, 0" % (sC, sW))
    A("v_cmp_gt_u32 vcc, s78, %s\ns_nop 1\nv_cndmask_b32 %s, %s, v18, vcc\nv_cndmask_b32 %s, %s, v19, vcc" % (vr(vLane), vr(vWD[0]), vr(vWD[0]), vr(vWD[0] + 1), vr(vWD[0] + 1)))
    A("v_lshrrev_b32 v15, 1, %s\nv_lshlrev_b32 v15, 18, v15\nv_lshl_add_u32 v15, %s, 4, v15" % (vr(vI16), vr(vQ)))
    A("v_cmp_eq_u32 vcc, 1, %s\nv_add_u32 v16, %d, v15\ns_nop 0\nv_cndmask_b32 v16, v15, v16, vcc\ns_mov_b32 s76, %d" % (vr(vI16), 1024 * 4096, 8 * 64 * 4096))
    A.vmem("buffer_load_dwordx4 %s, v16, %s, 0 offen" % (vr(vR32, 4), sWSR))
    A.vmem("buffer_load_dwordx4 %s, v15, %s, s76 offen" % (vr(vR32 + 4, 4), sWSR))
    A.vmem("buffer_load_dwordx4 %s, v15, %s, 0 offen" % (vr(vR32 + 8, 4), sWSI))
    tokR = A.vmem("buffer_load_dwordx4 %s, v15, %s, s76 offen" % (vr(vR32 + 12, 4), sWSI))
    if OPT["touch"]:
        A("v_lshrrev_b32 v15, 2, v0\nv_lshlrev_b32 v15, 17, v15\nv_and_b32 v16, 3, v0\nv_lshl_add_u32 v15, v16, 7, v15")
        A("s_lshl_b32 s76, %s, 12\ns_lshl_b32 s77, %s, 9\ns_add_u32 s76, s76, s77" % (sR, sC))
        A("s_lshl_b32 s77, s2, 2\ns_add_u32 s77, s77, %s\ns_mul_i32 s78, s77, %d\ns_mul_i32 s79, s77, %d" % (sW, 14 * 128, 7 * 128))
        A("v_lshlrev_b32 v16, 7, %s\nv_and_b32 v18, 7, v0\nv_lshlrev_b32 v18, 7, v18" % vr(vI16))
        A.vmem("buffer_load_dword v12, v16, %s, s78 offen" % sWIN)
        A.vmem("buffer_load_dword v12, v15, %s, s76 offen" % sWSP)
        A.vmem("buffer_load_dword v12, v18, %s, s79 offen" % sWOUT)
    A("v_lshrrev_b32 v15, 1, %s\nv_xor_b32 v15, v15, %s\nv_lshlrev_b32 v15, 4, v15\nv_lshl_add_u32 %s, %s, 7, v15\nv_xor_b32 %s, 64, %s" % (vr(vI16), vr(vQ), vr(vXrd0), vr(vI16), vr(vXrd1), vr(vXrd0)))
    A("v_lshrrev_b32 v15, 2, %s\nv_mul_u32_u24 v15, 224, v15\nv_and_b32 v16, 3, v0\nv_lshl_add_u32 v15, v16, 3, v15\nv_add_u32 %s, %d, v15" % (vr(vLane), vr(vWrd), S[0]))
    A("s_waitcnt lgkmcnt(0)")
    A("s_mul_i32 s52, s92, 0x9E3779B1\ns_add_u32 s52, s52, 0x7F4A7C15\ns_mul_i32 s53, s93, 0x85EBCA6B\ns_add_u32 s53, s53, 0xC2B2AE35")
    c0 = -2 * 0.7978845608028654 * 1.4426950408889634
    A("s_mov_b32 s76, %s\ns_mov_b32 s77, %s" % (fbits(c0 * 0.044715), fbits(c0)))
    A.stamp()
    A("v_add_u32 v13, %s, %s\nv_add_u32 v14, %s, %s" % (sW2048, vr(vXrd0), sW2048, vr(vXrd1)))
    A("v_add_u32 v19, %d, %s" % (S[2] - S[0], vr(vWrd)))
    def wrd(slot, kk, ft, half):
        base, off = (vWrd, S[slot] - S[0]) if slot < 2 else (19, 0)
        return vr(base), off + kk * 7168 + ft * 32 + half * 3584
    NF = 8
    tokBg = [None] * 4
    cnt = 0
    for G in range(4):
        group_barrier(tokA[G])
        if G == 1: tokA.append(dma_w(S[0], 3, 1792))
        if G == 2:
            dma_x(sX, vXR, X[0], 0); dma_x(None, vWD, X[1], 0); tokBg[0] = dma_w(S[1], 0, 0)
        if G == 3:
            dma_x(sX, vXR, X[2], 1); dma_w(S[2], 1, 0)
        P = Pipe()
        slot = G % 3
        for kk in range(4):
            xf = vFR + 4 * (kk & 1)
            for ft in range(7):
                wf = vFR + 8 + 4 * (cnt % NF); cnt += 1
                reads = []
                if ft == 0: reads.append("ds_read_b128 %s, v%d offset:%d" % (vr(xf, 4), 13 + (kk & 1), X[G] + (kk >> 1) * 8192))
                for half in (0, 1):
                    b, o = wrd(slot, kk, ft, half)
                    reads.append("ds_read_b64_tr_b16 %s, %s offset:%d" % (vr(wf + 2 * half, 2), b, o))
                first = (G == 0 and kk == 0)
                P.add(reads, lambda wf=wf, xf=xf, ft=ft, first=first: mfma(vr(vZ2 + 4 * ft, 4), vr(wf, 4), vr(xf, 4), "0" if first else None))
        P.run(6)
    A("s_barrier")
    tokBg[1] = dma_x(None, vWD, X[3], 1)
    A.stamp()
    A("s_nop 7")
    gelu(vZ2, 28, vFR)
    t = vFR
    A("v_pk_add_f32 %s, %s, %s\nv_pk_mul_f32 %s, %s, %s" % (vr(t, 2), vr(vZ2, 2), vr(vZ2 + 2, 2), vr(t + 2, 2), vr(vZ2, 2), vr(vZ2, 2)))
    for p in range(2, 28, 2):
        if p > 2: A("v_pk_add_f32 %s, %s, %s" % (vr(t, 2), vr(t, 2), vr(vZ2 + p, 2)))
        A("v_pk_fma_f32 %s, %s, %s, %s" % (vr(t + 2, 2), vr(vZ2 + p, 2), vr(vZ2 + p, 2), vr(t + 2, 2)))
    A("v_add_f32 %s, %s, %s\nv_add_f32 %s, %s, %s" % (vr(t + 4), vr(t), vr(t + 1), vr(t + 5), vr(t + 2), vr(t + 3)))
    qreduce([t + 4, t + 5], [t, t + 1])
    A("v_mov_b32 %s, s52\nv_mov_b32 %s, s53" % (vr(t + 6), vr(t + 7)))
    A("s_lshl_b32 %s, %s, 13\ns_lshl_b32 %s, %s, 8\ns_add_u32 %s, %s, %s\ns_add_u32 %s, %s, %d" % (sT0, sR, sT1, sW, sT0, sT0, sT1, sT0, sT0, STAT))
    A("v_lshlrev_b32 v11, 4, %s\nv_add_u32 v11, %s, v11\ns_lshl_b32 %s, %s, 10" % (vr(vI16), sT0, sT1, sC))
    A("s_mov_b64 exec, 0xffff")
    A.vmem("buffer_store_dwordx4 %s, v11, %s, %s offen sc1" % (vr(t + 4, 4), sWS, sT1))
    A("s_mov_b64 exec, -1")
    A("v_lshl_add_u32 v11, %s, 11, v11" % vr(vQ))
    A.stamp()
    A("s_and_b32 %s, %s, 2\ns_lshl_b32 %s, %s, 11" % (sT0, sW, sT0, sT0))
    A("v_add_u32 v15, %s, %s\nv_add_u32 v16, %s, %s" % (sT0, vr(vXrd0), sT0, vr(vXrd1)))
    A("s_and_b32 %s, %s, 1\ns_lshl_b32 %s, %s, 11" % (sT0, sW, sT0, sT0))
    A("v_add_u32 v17, %s, %s\nv_add_u32 v18, %s, %s" % (sT0, vr(vXrd0), sT0, vr(vXrd1)))
    A("v_lshlrev_b32 v12, 4, %s\nv_add_u32 v12, %d, v12" % (vr(vQ), GATE))
    def stageB(G):
        nonlocal cnt
        group_barrier(tokBg[G])
        if G in (1, 2):
            o = (G - 1) * 2
            dma_x(sX, vXR, X[o], G + 1); dma_x(None, vWD, X[o + 1], G + 1); tokBg[G + 1] = dma_w(S[G], G + 1, 0)
        P = Pipe()
        xr, wd, slot = X[2 * (G & 1)], X[2 * (G & 1) + 1], 1 + (G & 1)
        for kk in range(4):
            par = kk & 1
            fb = vFR + 40 + 24 * par
            so = (kk >> 1) * 8192
            first = "0" if (G == 0 and kk == 0) else None
            P.add(["ds_read_b128 %s, v%d offset:%d" % (vr(fb, 4), 13 + par, xr + so),
                   "ds_read_b128 %s, v12 offset:%d" % (vr(fb + 20, 4), (4 * G + kk) * 64)],
                  lambda fb=fb, first=first: mfma(vr(vGA, 4), vr(fb + 20, 4), vr(fb, 4), first))
            P.add(["ds_read_b128 %s, v%d offset:%d" % (vr(fb + 4, 4), 15 + par, xr + so),
                   "ds_read_b128 %s, v%d offset:%d" % (vr(fb + 12, 4), 17 + par, wd + so)],
                  lambda fb=fb, first=first: mfma(vr(vAB, 4), vr(fb + 4, 4), vr(fb + 12, 4), first))
            P.add(["ds_read_b128 %s, v%d offset:%d" % (vr(fb + 8, 4), 15 + par, xr + so + 2048)],
                  lambda fb=fb, first=first: mfma(vr(vAB + 4, 4), vr(fb + 8, 4), vr(fb + 12, 4), first))
            def two(fb=fb, first=first):
                mfma(vr(vAB + 8, 4), vr(fb + 4, 4), vr(fb + 16, 4), first)
                mfma(vr(vAB + 12, 4), vr(fb + 8, 4), vr(fb + 16, 4), first)
            P.add(["ds_read_b128 %s, v%d offset:%d" % (vr(fb + 16, 4), 17 + par, wd + so + 4096)], two)
            for ft in range(7):
                wf = vFR + 8 + 4 * (cnt % NF); cnt += 1
                reads = []
                for half in (0, 1):
                    b, o = wrd(slot, kk, ft, half)
                    reads.append("ds_read_b64_tr_b16 %s, %s offset:%d" % (vr(wf + 2 * half, 2), b, o))
                P.add(reads, lambda wf=wf, fb=fb, ft=ft, first=first: mfma(vr(vZ1 + 4 * ft, 4), vr(wf, 4), vr(fb, 4), first))
        P.run(6)
    stageB(0); stageB(1)
    A.stamp()
    t = vFR + 96
    def chk():
        A.vmem("buffer_load_dwordx4 %s, v11, %s, 0 offen sc1" % (vr(t, 4), sWS))
        A.vmem("buffer_load_dwordx4 %s, v11, %s, 0 offen offset:1024 sc1" % (vr(t + 4, 4), sWS))
        A("s_waitcnt vmcnt(0)")
        A("v_cmp_ne_u64 vcc, s[52:53], %s\nv_cmp_ne_u64 s[78:79], s[52:53], %s\ns_or_b64 vcc, vcc, s[78:79]" % (vr(t + 2, 2), vr(t + 6, 2)))
    spin(chk, 1)
    A.stamp()
    A("v_add_f32 %s, %s, %s\nv_add_f32 %s, %s, %s" % (vr(t), vr(t), vr(t + 4), vr(t + 1), vr(t + 1), vr(t + 5)))
    qreduce([t, t + 1], [t + 2, t + 3])
    A("v_mul_f32 %s, %s, %s\nv_mul_f32 %s, %s, %s" % (vr(t), fbits(1 / 896), vr(t), vr(t + 1), fbits(1 / 896), vr(t + 1)))
    A("v_fma_f32 %s, -%s, %s, %s\nv_max_f32 %s, 0, %s\nv_add_f32 %s, %s, %s\nv_rsq_f32 %s, %s\ns_nop 0" % (vr(t + 1), vr(t), vr(t), vr(t + 1), vr(t + 1), vr(t + 1), vr(t + 1), fbits(1e-5), vr(t + 1), vr(t + 2), vr(t + 1)))
    A("v_mul_f32 %s, -%s, %s" % (vr(t + 3), vr(t), vr(t + 2)) if False else "v_mul_f32_e64 %s, -%s, %s" % (vr(t + 3), vr(t), vr(t + 2)))
    A("v_and_b32 v11, 3, %s\nv_bfe_u32 %s, %s, 3, 1\nv_lshl_add_u32 v11, %s, 2, v11\nv_bfe_u32 %s, %s, 2, 1\nv_lshl_add_u32 v11, %s, 3, v11" % (vr(vI16), vr(t + 4), vr(vI16), vr(t + 4), vr(t + 4), vr(vI16), vr(t + 4)))
    A("s_mul_i32 %s, %s, 3712\ns_add_u32 %s, %s, %d\nv_mul_u32_u24 v11, 232, v11\nv_lshl_add_u32 v11, %s, 3, v11\nv_add_u32 v11, %s, v11" % (sT0, sW, sT0, sT0, S[0], vr(vQ), sT0))
    for ft in range(7):
        for p in (0, 2):
            A("v_pk_fma_f32 %s, %s, %s, %s op_sel:[0,0,1] op_sel_hi:[1,0,1]" % (vr(vZ2 + 4 * ft + p, 2), vr(vZ2 + 4 * ft + p, 2), vr(t + 2, 2), vr(t + 2, 2)))
        A("v_cvt_pk_bf16_f32 %s, %s, %s\nv_cvt_pk_bf16_f32 %s, %s, %s" % (vr(vZ2 + 4 * ft), vr(vZ2 + 4 * ft), vr(vZ2 + 4 * ft + 1), vr(vZ2 + 4 * ft + 1), vr(vZ2 + 4 * ft + 2), vr(vZ2 + 4 * ft + 3)))
        A.ds("ds_write_b64 v11, %s offset:%d" % (vr(vZ2 + 4 * ft, 2), ft * 32))
    A("v_bfe_u32 v11, %s, 2, 3\nv_mul_u32_u24 v11, 232, v11\nv_and_b32 %s, 3, v0\nv_lshl_add_u32 v11, %s, 3, v11\nv_lshrrev_b32 %s, 5, %s\nv_lshl_add_u32 v11, %s, 5, v11\nv_add_u32 v11, %s, v11"
      % (vr(vLane), vr(t + 4), vr(t + 4), vr(t + 4), vr(vLane), vr(t + 4), sT0))
    A.wait_all_lg()
    tk = []
    for p in range(4):
        A.ds("ds_read_b64_tr_b16 %s, v11 offset:%d" % (vr(vZ2 + 4 * p, 2), 64 * p))
        tk.append(A.ds("ds_read_b64_tr_b16 %s, v11 offset:%d" % (vr(vZ2 + 4 * p + 2, 2), 64 * p + 8 * 232)))
    A("s_mul_i32 %s, %s, 458752\ns_lshl_b32 %s, %s, 1\ns_lshr_b32 %s, %s, 1\ns_add_u32 %s, %s, %s\ns_mul_i32 %s, %s, 7168\ns_add_u32 %s, %s, %s" % (sT0, sC, sT1, sR, sT2, sW, sT1, sT1, sT2, sT1, sT1, sT0, sT0, sT1))
    A("s_and_b32 %s, %s, 1\ns_lshl_b32 %s, %s, 9\ns_add_u32 %s, %s, %s\ns_add_u32 %s, %s, %d\ns_add_u32 %s, %s, 4096" % (sT1, sW, sT1, sT1, sT0, sT0, sT1, sT0, sT0, Z2N, sT1, sT0))
    A("v_and_b32 v11, 31, v0\nv_lshlrev_b32 v11, 4, v11\nv_lshl_add_u32 v11, %s, 10, v11" % vr(t + 4))
    for p in range(4):
        A.wait_lg(tk[p])
        if p == 3: A("s_mov_b32 exec_hi, 0")
        tokZ = A.vmem("buffer_store_dwordx4 %s, v11, %s, %s offen offset:%d sc1" % (vr(vZ2 + 4 * p, 4), sWS, sT0 if p < 2 else sT1, 2048 * (p & 1)))
    A("s_mov_b64 exec, -1")
    A.stamp()
    stageB(2)
    A.wait_vm(tokZ)
    A("s_lshl_b32 %s, %s, 10\ns_lshl_b32 %s, %s, 5\ns_add_u32 %s, %s, %s\ns_lshl_b32 %s, %s, 3\ns_add_u32 %s, %s, %s\ns_add_u32 %s, %s, %d" % (sT0, sC, sT1, sR, sT0, sT0, sT1, sT1, sW, sT0, sT0, sT1, sT0, sT0, FLAGZ))
    A("v_mov_b32 v38, s52\nv_mov_b32 v39, s53\nv_mov_b32 v11, 0\ns_mov_b64 exec, 1")
    A.vmem("buffer_store_dwordx2 v[38:39], v11, %s, %s offen sc1" % (sWS, sT0))
    A("s_mov_b64 exec, -1")
    A.stamp()
    stageB(3)
    A("s_barrier")
    CS = [0, 32768, 65536, 98304, 131072]
    def dma_c(j):
        dst = CS[j if j < 5 else j - 4]; kb = 128 * j
        for u in range(4):
            A("s_add_u32 m0, %s, %d\ns_nop 0" % (sW8192, dst + u * 2048 - kb))
            for h in (0, 1):
                tok = A.vmem("buffer_load_dwordx4 %s, %s, %s offen offset:%d lds" % (vr(vCo[h]), sWSP, sCU[u], 1024 * h + kb))
        return tok
    tokC = [dma_c(j) for j in range(5)]
    A.stamp()
    t = vFR
    for ty in (0, 1):
        for k in range(4):
            A("v_cvt_pk_bf16_f32 %s, %s, %s" % (vr(t + 4 * ty + k), vr(vAB + 8 * ty + 2 * k), vr(vAB + 8 * ty + 2 * k + 1)))
    A("v_and_b32 v11, 1, v0\nv_cmp_eq_u32 vcc, 1, v11\nv_cmp_ne_u32 s[78:79], 1, %s\ns_nop 1" % vr(vI16))
    for k in range(4): A("v_cndmask_b32 %s, %s, %s, vcc" % (vr(vR32 + 4 + k), vr(vR32 + 4 + k), vr(vR32 + 12 + k)))
    A("s_and_b64 vcc, vcc, s[78:79]\ns_nop 1")
    for k in range(4): A("v_cndmask_b32 %s, %s, %s, vcc" % (vr(vR32 + k), vr(vR32 + k), vr(vR32 + 8 + k)))
    A("s_nop 1")
    for ty in (0, 1):
        for J in (0, 1):
            mfma(vr(vAB + 8 * ty + 4 * J, 4), vr(vR32 + 4 * J, 4), vr(t + 4 * ty, 4), "0")
    A("v_mul_f32 v11, %s, %s\nv_exp_f32 v12, v11\nv_exp_f32 v13, -v11\ns_nop 0\nv_add_f32 v12, 1.0, v12\nv_add_f32 v13, 1.0, v13\nv_rcp_f32 v12, v12\nv_rcp_f32 %s, v13" % (fbits(1.4426950408889634), vr(vGA), vr(vG)))
    A("s_mul_i32 %s, %s, 4352\ns_lshl_b32 %s, %s, 9\ns_add_u32 %s, %s, %s\ns_and_b32 %s, %s, 1\ns_lshl_b32 %s, %s, 8\ns_add_u32 %s, %s, %s" % (sT0, sR, sT1, sC, sT0, sT0, sT1, sT1, sW, sT2, sT1, sT0, sT0, sT2))
    A("s_lshr_b32 %s, %s, 1\ns_lshl_b32 %s, %s, 3\ns_add_u32 %s, %s, %s\ns_add_u32 %s, %s, %d\ns_mov_b32 %s, %d" % (sT2, sW, sT2, sT2, sT0, sT0, sT2, sT0, sT0, F2, sT3, 2 * 139264))
    A("v_lshlrev_b32 v14, 4, %s\nv_mad_u32_u24 v14, %s, %s, v14\nv_add_u32 v14, %s, v14" % (vr(vI16), vr(vQ), sT3, sT0))
    for J in (0, 1):
        for z in (0, 1):
            u = t + 8 + 2 * (2 * J + z)
            A("v_cvt_pk_bf16_f32 %s, %s, %s\nv_cvt_pk_bf16_f32 %s, %s, %s" % (vr(u), vr(vAB + 4 * J + 2 * z), vr(vAB + 4 * J + 2 * z + 1), vr(u + 1), vr(vAB + 8 + 4 * J + 2 * z), vr(vAB + 8 + 4 * J + 2 * z + 1)))
    lsk = A.lab("Lnosp")
    A("s_add_u32 %s, %s, %s\ns_cmp_lg_u32 %s, 0\ns_cbranch_scc1 %s" % (sT1, sT1, sC, sT1, lsk))
    A("s_mov_b32 exec_lo, 0x00010001\ns_mov_b32 exec_hi, 0x00010001\nv_mov_b32 %s, 0" % vr(t + 17))
    for k in range(4):
        A("v_mov_b32 %s, %s\nv_mov_b32 %s, 0\ns_mov_b32 %s, %d" % (vr(t + 16), vr(t + 9 + 2 * k), vr(t + 9 + 2 * k), sT1, (8 * (k >> 1) + (k & 1)) * 139264 + 4096))
        A("buffer_store_dwordx2 %s, v14, %s, %s offen sc1\ns_nop 1" % (vr(t + 16, 2), sWS, sT1))
    A("s_mov_b64 exec, -1")
    A(lsk + ":")
    for k in range(4):
        A("s_mov_b32 %s, %d" % (sT1, (8 * (k >> 1) + (k & 1)) * 139264))
        tokF = A.vmem("buffer_store_dwordx2 %s, v14, %s, %s offen sc1" % (vr(t + 8 + 2 * k, 2), sWS, sT1))
    gelu(vZ1, 28, vFR + 20)
    A("v_mov_b32 v13, v12")
    for p in range(0, 28, 2): A("v_pk_mul_f32 %s, %s, v[12:13]" % (vr(vZ1 + p, 2), vr(vZ1 + p, 2)))
    A("v_lshlrev_b32 %s, 16, %s" % (vr(vB), vr(vB)))
    A.stamp()
    A("v_add_u32 v13, %s, %s\nv_add_u32 v14, %s, %s" % (sW8192, vr(vXrd0), sW8192, vr(vXrd1)))
    A("v_add_u32 v15, 0x10000, v13\nv_add_u32 v16, 0x10000, v14\nv_add_u32 v17, 0x20000, v13\nv_add_u32 v18, 0x20000, v14")
    for j in range(8):
        A.wait_vm(tokC[j])
        dst = CS[j if j < 5 else j - 4]
        for par in (0, 1):
            for u in range(4):
                A.ds("ds_read_b128 %s, v%d offset:%d" % (ar(((2 * j + par) * 4 + u) * 4, 4), 13 + 2 * (dst >> 16) + par, (dst & 0xffff) + u * 2048))
        if j in (1, 2, 3):
            A.wait_all_lg(); tokC.append(dma_c(j + 4))
        if j == 4:
            A.wait_vm(tokF); A("s_barrier")
            A("s_lshl_b32 %s, %s, 8\ns_lshl_b32 %s, %s, 3\ns_add_u32 %s, %s, %s\ns_add_u32 %s, %s, %d" % (sT0, sC, sT1, sR, sT0, sT0, sT1, sT0, sT0, FLAGF))
            A("v_mov_b32 v11, 0\ns_mov_b64 exec, 1")
            A.vmem("buffer_store_dwordx2 v[38:39], v11, %s, %s offen sc1" % (sWS, sT0))
            A("s_mov_b64 exec, -1")
    A.stamp()
    A("s_lshl_b32 %s, %s, 10\ns_lshl_b32 %s, %s, 8\ns_add_u32 %s, %s, %s\ns_add_u32 %s, %s, %d\nv_and_b32 v11, 31, v0\nv_lshlrev_b32 v11, 3, v11" % (sT0, sC, sT1, sW, sT0, sT0, sT1, sT0, sT0, FLAGZ))
    def chk():
        A.vmem("buffer_load_dwordx2 v[12:13], v11, %s, %s offen sc1" % (sWS, sT0))
        A("s_waitcnt vmcnt(0)\nv_cmp_ne_u64 vcc, s[52:53], v[12:13]")
    spin(chk, 2)
    A.wait_all_lg()
    A.stamp()
    ACC = 112
    ring = list(range(40, 84, 4)) + list(range(224, 256, 4)) + list(range(20, 36, 4))
    R = len(ring)
    A("s_mul_i32 %s, %s, 458752\ns_mul_i32 %s, %s, 114688\ns_add_u32 %s, %s, %s\ns_add_u32 %s, %s, %d\nv_add_u32 v11, %s, %s" % (sT0, sC, sT1, sW, sT0, sT0, sT1, sT0, sT0, Z2N, sT0, vr(vL16)))
    tz = {}
    def zload(n):
        if n >= 112: return
        if n % 4 == 0: A("s_mov_b32 %s, %d" % (sT2, n * 1024))
        tz[n] = A.vmem("buffer_load_dwordx4 %s, v11, %s, %s offen offset:%d sc1" % (vr(ring[n % R], 4), sWS, sT2, (n % 4) * 1024))
    for n in range(R): zload(n)
    A("v_lshrrev_b32 v14, 3, %s\nv_and_b32 v15, 7, v0\nv_and_b32 v16, 6, v14\nv_xor_b32 v15, v15, v16\nv_lshlrev_b32 v15, 4, v15\nv_lshl_add_u32 v14, v14, 10, v15" % vr(vLane))
    A("s_mul_i32 %s, %s, %d\ns_lshl_b32 %s, %s, 7\ns_add_u32 %s, %s, %s\nv_add_u32 v14, %s, v14\nv_add_u32 v15, 7168, v14" % (sT0, sW, 224 * 1024, sT1, sC, sT0, sT0, sT1, sT0))
    A("s_lshl_b32 %s, %s, 14\ns_mul_i32 %s, %s, 12288" % (sCU[0], sW, sCU[1], sW))
    def wout_tiles(ls):
        if ls < 3: return (32 * ls, 32 * ls + 16)
        if ls == 3: return (96, 208)
        return (112 + 32 * (ls - 4), 112 + 32 * (ls - 4) + 16)
    def dma_wout(ls):
        for hh, f0 in enumerate(wout_tiles(ls)):
            if ls < 4: A("s_add_u32 m0, %s, %d" % (sCU[0], 98304 + ls * 4096 + hh * 2048))
            else: A("s_add_u32 m0, %s, %d" % (sCU[1], (ls - 4) * 4096 + hh * 2048))
            A("s_mov_b32 %s, %d" % (sT3, f0 * 1024))
            A.vmem("buffer_load_dwordx4 v14, %s, %s offen lds" % (sWOUT, sT3))
            tok = A.vmem("buffer_load_dwordx4 v15, %s, %s offen offset:1024 lds" % (sWOUT, sT3))
        return tok
    A("s_barrier")
    for n in range(112):
        ks, ft = divmod(n, 7)
        A.wait_vm(tz[n])
        for u in range(4):
            mfma(vr(ACC + (ft * 4 + u) * 4, 4), vr(ring[n % R], 4), ar((ks * 4 + u) * 4, 4), "0" if ks == 0 else None)
        zload(n + R)
        if n >= 112 - R and (n - (112 - R)) % 4 == 0 and (n - (112 - R)) // 4 < 4:
            tokW1 = dma_wout((n - (112 - R)) // 4)
    A.stamp()
    A("v_lshlrev_b32 v12, 12, %s\nv_lshl_add_u32 v12, %s, 4, v12" % (vr(vTrow), vr(vQ)))
    A.vmem("buffer_load_dwordx4 v[40:43], v12, %s, 0 offen" % sWSR)
    A.vmem("buffer_load_dwordx4 v[44:47], v12, %s, 0 offen offset:64" % sWSR)
    A.vmem("buffer_load_dwordx4 v[48:51], v12, %s, 0 offen" % sWSI)
    tokCf = A.vmem("buffer_load_dwordx4 v[52:55], v12, %s, 0 offen offset:64" % sWSI)
    for u in (1, 2, 3):
        A("s_add_u32 %s, %s, %d\ns_and_b32 %s, %s, 3\ns_mul_i32 %s, %s, 21504\ns_add_u32 %s, %s, %d\nv_add_u32 v%d, %s, %s" % (sT0, sW, u, sT0, sT0, sT0, sT0, sT0, sT0, (u - 1) * 7168, 15 + u, sT0, vr(vL16)))
    A("s_mul_i32 %s, %s, 21504\nv_add_u32 v19, %s, %s" % (sT0, sW, sT0, vr(vL16)))
    for ft in range(7):
        for u in (1, 2, 3):
            A.ds("ds_write_b128 v%d, %s offset:%d" % (15 + u, vr(ACC + (ft * 4 + u) * 4, 4), ft * 1024))
    A.wait_all_lg(); A("s_barrier")
    tk = {}
    for ft in range(7):
        for u in (1, 2, 3):
            tk[ft, u] = A.ds("ds_read_b128 %s, v19 offset:%d" % (vr(ACC + (ft * 4 + u) * 4, 4), (u - 1) * 7168 + ft * 1024))
    A.wait_all_lg(); A("s_barrier")
    for ls in (4, 5, 6): tokW2 = dma_wout(ls)
    A("v_mov_b32 v12, %s\nv_mov_b32 v13, %s" % (vr(vB), vr(vB)))
    for ft in range(7):
        b = ACC + ft * 16
        for p in (0, 2):
            A("v_pk_add_f32 %s, %s, %s\nv_pk_add_f32 %s, %s, %s" % (vr(b + p, 2), vr(b + p, 2), vr(b + 4 + p, 2), vr(b + 8 + p, 2), vr(b + 8 + p, 2), vr(b + 12 + p, 2)))
        for p in (0, 2): A("v_pk_add_f32 %s, %s, v[12:13]" % (vr(b + p, 2), vr(b + p, 2)))
        for p in (0, 2): A("v_pk_add_f32 %s, %s, %s" % (vr(b + p, 2), vr(b + p, 2), vr(b + 8 + p, 2)))
        for p in (0, 2): A("v_pk_mul_f32 %s, %s, %s" % (vr(b + p, 2), vr(b + p, 2), vr(vZ1 + 4 * ft + p, 2)))
        A("v_cvt_pk_bf16_f32 %s, %s, %s\nv_cvt_pk_bf16_f32 %s, %s, %s" % (vr(56 + 2 * ft), vr(b), vr(b + 1), vr(57 + 2 * ft), vr(b + 2), vr(b + 3)))
    A("s_lshl_b32 %s, %s, 2\ns_add_u32 %s, %s, %s\ns_mul_i32 %s, %s, 28672\ns_add_u32 %s, %s, %d" % (sT0, sR, sT0, sT0, sW, sKB, sT0, sKB, sKB, HB))
    A("s_lshr_b32 %s, %s, 1\ns_mul_i32 %s, %s, 7168\ns_add_u32 %s, %s, %s\ns_and_b32 %s, %s, 1\ns_lshl_b32 %s, %s, 12\ns_add_u32 %s, %s, %s\ns_lshl_b32 %s, %s, 9\ns_add_u32 %s, %s, %s"
      % (sT1, sC, sT1, sT1, sT1, sT1, sKB, sT2, sC, sT3, sT2, sT3, sT3, sT1, sT2, sT2, sT1, sT1, sT2))
    A("v_lshlrev_b32 v12, 3, %s" % vr(vLane))
    for u in range(3): A.vmem("buffer_store_dwordx4 %s, %s, %s, %s offen offset:%d sc1" % (vr(56 + 4 * u, 4), vr(vL16), sWS, sT3, 1024 * u))
    tokH = A.vmem("buffer_store_dwordx2 v[68:69], v12, %s, %s offen offset:3072 sc1" % (sWS, sT1))
    A.wait_vm(tokH)
    A("s_lshl_b32 %s, %s, 7\ns_add_u32 %s, %s, %d\ns_lshl_b32 %s, %s, 3\nv_mov_b32 v11, %s\ns_mov_b64 exec, 1" % (sT0, sT0, sT0, sT0, FLAGH, sT1, sC, sT1))
    A.vmem("buffer_store_dwordx2 v[38:39], v11, %s, %s offen sc1" % (sWS, sT0))
    A("s_mov_b64 exec, -1\ns_mov_b32 %s, %s" % (sCU[2], sT0))
    A.stamp()
    A("v_lshlrev_b32 v11, 5, %s\ns_mov_b32 %s, %d" % (vr(vLane), sT0, FLAGF))
    def chk():
        A.vmem("buffer_load_dwordx4 v[56:59], v11, %s, %s offen sc1" % (sWS, sT0))
        A.vmem("buffer_load_dwordx4 v[60:63], v11, %s, %s offen offset:16 sc1" % (sWS, sT0))
        A("s_waitcnt vmcnt(0)\nv_cmp_ne_u64 vcc, s[52:53], v[56:57]")
        for k in (58, 60, 62): A("v_cmp_ne_u64 s[78:79], s[52:53], v[%d:%d]\ns_or_b64 vcc, vcc, s[78:79]" % (k, k + 1))
    spin(chk, 3)
    A("s_sub_u32 %s, 32, %s\ns_min_u32 %s, %s, %s\ns_and_b32 %s, %s, 15" % (sT0, sR, sT0, sT0, sR, sT0, sT0))
    A("s_mul_i32 %s, %s, 139264\ns_add_u32 %s, %s, %d" % (sT0, sT0, sT0, sT0, F2))
    A("s_lshl_b32 %s, %s, 6\ns_lshl_b32 %s, %s, 4\ns_add_u32 %s, %s, %s\nv_add_u32 v11, %s, %s\nv_sub_u32 v12, 512, v11\nv_min_u32 v11, v11, v12" % (sT1, sC, sT2, sW, sT1, sT1, sT2, sT1, vr(vI16)))
    A("s_mov_b32 %s, %d\nv_lshlrev_b32 v11, 4, v11\nv_mad_u32_u24 v11, %s, %s, v11\nv_add_u32 v11, %s, v11\ns_lshl_b32 %s, %s, 10" % (sT1, 8 * 4352, vr(vQ), sT1, sT0, sT2, sW))
    FL = 49152
    for k in range(8):
        A("s_add_u32 m0, %s, %d\ns_mov_b32 %s, %d" % (sT2, FL + k * 4096, sT1, k * 4352))
        tokFl = A.vmem("buffer_load_dwordx4 v11, %s, %s offen sc1 lds" % (sWS, sT1))
    A("s_mov_b32 %s, 0x01000504\ns_mov_b32 %s, 0x05040100\ns_mov_b32 %s, 0x02020202" % (sSEL[0], sSEL[1], sT3))
    A("s_cmp_lt_u32 %s, 16\ns_cselect_b32 %s, 0x80000000, 0\ns_mov_b32 %s, 0x8000\ns_or_b32 %s, %s, %s" % (sR, sM0, sM1, sM1, sM1, sM0))
    l0, l1 = A.lab("Lr0"), A.lab("Lr16")
    A("s_cmp_lg_u32 %s, 0\ns_cbranch_scc1 %s\ns_mov_b32 %s, 0x0c0c0504\ns_mov_b32 %s, 0x0c0c0100\ns_mov_b32 %s, 0x0202\n%s:" % (sR, l0, sSEL[0], sSEL[1], sT3, l0))
    A("s_cmp_lg_u32 %s, 16\ns_cbranch_scc1 %s\ns_mov_b32 %s, 0x05040c0c\ns_mov_b32 %s, 0x01000c0c\ns_mov_b32 %s, 0x02020000\ns_mov_b32 %s, 0x80000000\n%s:" % (sR, l1, sSEL[0], sSEL[1], sT3, sM1, l1))
    A("s_add_u32 %s, %s, %s\ns_add_u32 %s, %s, %s" % (sSEL[2], sSEL[0], sT3, sSEL[3], sSEL[1], sT3))
    A("s_cmp_ge_u32 %s, 4\ns_cselect_b32 %s, 0x80008000, 0\ns_xor_b32 %s, %s, %s" % (sC, sT3, sM1, sM1, sT3))
    CF = 56
    for k in range(8):
        for g2 in (0, 1):
            for d in (0, 1):
                A("v_perm_b32 %s, v%d, v%d, %s" % (vr(CF + 4 * k + 2 * g2 + d), 40 + 4 * g2 + (k >> 1), 48 + 4 * g2 + (k >> 1), sSEL[2 * (k & 1) + d]))
    for k in range(32): A("v_xor_b32 %s, %s, %s" % (vr(CF + k), sM1 if k & 1 else sM0, vr(CF + k)))
    A("v_lshrrev_b32 v12, 2, %s\nv_bfe_u32 v13, %s, 3, 2\nv_and_b32 v14, 3, v0\nv_lshlrev_b32 v14, 3, v14\nv_lshl_add_u32 v14, v12, 7, v14" % (vr(vLane), vr(vLane)))
    for et in range(4): A("v_xor_b32 v15, %d, v13\nv_lshl_add_u32 v%d, v15, 5, v14\nv_add_u32 v%d, 98304, v%d" % (et, 16 + et, 20 + et, 16 + et))
    A("v_add_u32 v15, %d, %s" % (FL, vr(vL16)))
    A.wait_vm(tokFl); A("s_barrier")
    OA = 88
    P = Pipe()
    for k in range(8):
        for et in range(4):
            f = 104 + 4 * ((k * 4 + et) % 8)
            P.add(["ds_read_b128 %s, v15 offset:%d" % (vr(f, 4), (k * 4 + et) * 1024)],
                  lambda f=f, k=k, et=et: mfma(vr(OA + 4 * et, 4), vr(f, 4), vr(CF + 4 * k, 4), "0" if k == 0 else None))
    P.run(6)
    steps = [(Pp, ls) for Pp in range(4) for ls in range(4)] + [(Pp, ls) for Pp in range(4) for ls in (4, 5, 6)]
    tw = {}
    def wread(n):
        for et in range(4):
            for half in (0, 1):
                base, off = (20 + et, n * 4096) if n < 16 else (16 + et, (n - 16) * 4096)
                tw[n] = A.ds("ds_read_b64_tr_b16 %s, v%d offset:%d" % (ar(((n % 16) * 4 + et) * 4 + 2 * half, 2), base, off + half * 2048))
    for n in range(16): wread(n)
    A("v_mov_b32 v12, %s\nv_mov_b32 v13, %s" % (vr(vG), vr(vG)))
    for p in range(0, 16, 2): A("v_pk_mul_f32 %s, %s, v[12:13]" % (vr(OA + p, 2), vr(OA + p, 2)))
    A.stamp()
    A("v_and_b32 v11, 7, v0\nv_lshlrev_b32 v11, 3, v11\nv_lshlrev_b32 v14, 3, %s" % vr(vLane))
    def chk():
        A.vmem("buffer_load_dwordx2 v[12:13], v11, %s, %s offen sc1" % (sWS, sCU[2]))
        A("s_waitcnt vmcnt(0)\nv_cmp_ne_u64 vcc, s[52:53], v[12:13]")
    spin(chk, 4)
    A.stamp()
    th = {}
    for n, (Pp, ls) in enumerate(steps):
        h = 140 + 4 * n
        o = (7 * Pp + ls) * 1024
        if ls in (0, 4): A("s_add_u32 %s, %s, %d" % (sT0, sKB, o))
        io = (ls & 3) * 1024
        if ls == 3:
            A.vmem("buffer_load_dwordx2 %s, v14, %s, %s offen offset:%d sc1" % (vr(h, 2), sWS, sT0, io))
            th[n] = A.vmem("buffer_load_dwordx2 %s, v14, %s, %s offen offset:%d sc1" % (vr(h + 2, 2), sWS, sT0, io + 512))
        else:
            th[n] = A.vmem("buffer_load_dwordx4 %s, %s, %s, %s offen offset:%d sc1" % (vr(h, 4), vr(vL16), sWS, sT0, io))
    for n in range(28):
        A.wait_vm(th[n]); A.wait_lg(tw[n])
        for et in range(4):
            mfma(vr(OA + 4 * et, 4), ar(((n % 16) * 4 + et) * 4, 4), vr(140 + 4 * n, 4))
        if n + 16 < 28: wread(n + 16)
    A("v_lshlrev_b32 v11, 10, %s\nv_and_b32 v12, 1, %s\nv_lshl_add_u32 v11, v12, 5, v11\nv_lshrrev_b32 v12, 1, %s\nv_lshl_add_u32 v11, v12, 4, v11\ns_lshl_b32 %s, %s, 7\ns_nop 2" % (vr(vTrow), vr(vQ), vr(vQ), sT0, sC))
    for et in range(4):
        A("v_cvt_pk_bf16_f32 %s, %s, %s\nv_cvt_pk_bf16_f32 %s, %s, %s" % (vr(104 + 2 * et), vr(OA + 4 * et), vr(OA + 4 * et + 1), vr(105 + 2 * et), vr(OA + 4 * et + 2), vr(OA + 4 * et + 3)))
    A("s_nop 1")
    for pr in (0, 1):
        A("v_permlane16_swap_b32 v%d, v%d\nv_permlane16_swap_b32 v%d, v%d" % (104 + 4 * pr, 106 + 4 * pr, 105 + 4 * pr, 107 + 4 * pr))
    A("s_nop 1")
    for pr in (0, 1):
        A.vmem("buffer_store_dwordx4 %s, v11, %s, %s offen offset:%d" % (vr(104 + 4 * pr, 4), sOUT, sT0, 64 * pr))
    A.stamp()
    lb = A.lab("Lnobump")
    A("s_or_b32 %s, s2, %s\ns_cmp_lg_u32 %s, 0\ns_cbranch_scc1 %s" % (sT0, sW, sT0, lb))
    A("v_mov_b32 v11, %d\ns_mov_b64 exec, 1\nbuffer_store_dwordx2 v[38:39], v11, %s, 0 offen sc1\ns_mov_b64 exec, -1\n%s:" % (EPOCH, sWS, lb))
    if OPT["prof"]:
        A("s_lshl_b32 %s, s2, 2\ns_add_u32 %s, %s, %s\ns_lshl_b32 %s, %s, 7\ns_add_u32 %s, %s, %d\nv_mov_b32 v11, 0\ns_mov_b64 exec, 1" % (sT0, sT0, sT0, sW, sT0, sT0, sT0, sT0, TS))
        for k in range(A.nst):
            A("v_mov_b32 v12, s%d\nbuffer_store_dword v12, v11, %s, %s offen offset:%d\ns_nop 1" % (80 + k, sWS, sT0, 4 * k))
    A("Lend:\ns_endpgm")

kernel()
hdr = open("cdna_kernels/%s.s.ref" % NAME).read().split("; Override launch")[0]
out = hdr + "; @launch grid=(256,1,1) block=(256,1,1) lds=%d\n" % LDS_SIZE
out += '.amdgcn_target "amdgcn-amd-amdhsa--gfx950"\n.text\n.globl %s_kernel\n.p2align 8\n.type %s_kernel,@function\n%s_kernel:\n' % (NAME, NAME, NAME)
out += "\n".join(A.L) + "\n"
out += """.section .rodata,"a"
.p2align 6
.amdhsa_kernel %s_kernel
  .amdhsa_next_free_vgpr 512
  .amdhsa_next_free_sgpr 102
  .amdhsa_accum_offset 256
  .amdhsa_group_segment_fixed_size 0
  .amdhsa_kernarg_size 112
  .amdhsa_user_sgpr_count 2
  .amdhsa_user_sgpr_kernarg_segment_ptr 1
  .amdhsa_system_sgpr_workgroup_id_x 1
.end_amdhsa_kernel
""" % NAME
open(sys.argv[1], "w").write(out)
for g in range(448): assert (g * 4682) >> 16 == g // 14
```

```python
import sys, struct
from collections import deque
NAME = "gated_mix__spectral_fnet__mixer_gmlp__prompt"
OPT = dict(nt=1, prof=0, xmap=2, per=72, look=6)
for a in sys.argv[2:]:
    k, v = a.split("="); OPT[k] = int(v)

def fbits(x): return "0x%08x" % struct.unpack("<I", struct.pack("<f", x))[0]
def cost(ln):
    op = ln.split()[0]
    if op.startswith("v_mfma"): return 16
    if op in ("v_exp_f32", "v_rcp_f32", "v_rsq_f32"): return 8
    if op == "s_nop": return 4 * (int(ln.split()[1]) + 1)
    return 4

class Asm:
    def __init__(s):
        s.L = []; s.vm = []; s.lg = []; s.n = 0; s.nlab = 0; s.nst = 0
        s.bg = deque(); s.acc = 0; s.lock = 0; s.tok = {}; s.per = OPT["per"]
    def raw(s, t):
        for ln in t.split("\n"):
            ln = ln.strip()
            if not ln: continue
            if ln.endswith(":"): s.L.append(ln)
            else: s.L.append("    " + ln); s.acc += cost(ln)
    def __call__(s, t):
        s.raw(t); s.tick()
    def tick(s):
        if s.lock or not s.bg:
            if not s.bg: s.acc = min(s.acc, s.per)
            return
        if s.acc >= s.per: s.pop()
    def pop(s):
        pre, ins, name = s.bg.popleft()
        s.lock += 1
        if pre: s.raw(pre)
        t = s.vmem(ins)
        s.lock -= 1
        if name: s.tok[name] = t
        s.acc = 0
    def push(s, items, name=None):
        for i, (pre, ins) in enumerate(items): s.bg.append((pre, ins, name if i == len(items) - 1 else None))
    def flush(s, name=None):
        while s.bg and (name is None or name not in s.tok): s.pop()
    def wait_named(s, name):
        s.flush(name); s.wait_vm(s.tok[name])
    def c(s, t): s.L.append("    ; " + t)
    def lab(s, p="L"):
        s.nlab += 1; return "%s%d" % (p, s.nlab)
    def vmem(s, t):
        if len(s.vm) >= 62: s.wait_vm(s.vm[len(s.vm) - 62])
        s.raw(t); s.n += 1; s.vm.append(s.n); return s.n
    def ds(s, t):
        if len(s.lg) >= 15: s.wait_lg(s.lg[len(s.lg) - 15])
        s.raw(t); s.n += 1; s.lg.append(s.n); n = s.n; s.tick(); return n
    def wait_vm(s, tok):
        if tok not in s.vm: return
        i = s.vm.index(tok); s.raw("s_waitcnt vmcnt(%d)" % (len(s.vm) - 1 - i)); s.vm = s.vm[i + 1:]
    def wait_lg(s, tok):
        if tok not in s.lg: return
        i = s.lg.index(tok); s.raw("s_waitcnt lgkmcnt(%d)" % (len(s.lg) - 1 - i)); s.lg = s.lg[i + 1:]
    def wait_all_lg(s):
        if s.lg: s.raw("s_waitcnt lgkmcnt(0)")
        s.lg = []
    def stamp(s, k):
        if not OPT["prof"]: return
        s.raw("s_memtime s[78:79]\ns_waitcnt lgkmcnt(0)\ns_mov_b32 s%d, s78" % (80 + k)); s.lg = []; s.nst = max(s.nst, k + 1)
        assert k < 18
A = Asm()
def vr(b, n=1): return "v%d" % b if n == 1 else "v[%d:%d]" % (b, b + n - 1)
def ar(b, n=1): return "a%d" % b if n == 1 else "a[%d:%d]" % (b, b + n - 1)
def mfma(d, a, b, c=None): A("v_mfma_f32_16x16x32_bf16 %s, %s, %s, %s" % (d, a, b, d if c is None else c))

EPOCH, FLAGZ, FLAGF, FLAGH, STAT = 0x0, 0x1000, 0x3000, 0x4000, 0x10000
Z2N, HB, F2, TS, WS_SIZE = 0x100000, 0x500000, 0x900000, 0xC00000, 0x1000000
W = [0, 32768, 65536]
X = [98304 + 16384 * i for i in range(4)]
GATE = W[1] + 28672
SCR = W[0]; SCRP = 264
LDS_SIZE = 163840
sX, sWIN, sWSP, sWOUT, sWSR, sWSI, sWS, sOUT, sBSP, sGW, sTMP = ["s[%d:%d]" % (b, b + 3) for b in range(4, 48, 4)]
sR, sC, sW = "s54", "s55", "s56"
sW2048, sW7168, sW8192 = "s57", "s58", "s59"
sCU = ["s60", "s61", "s62", "s63"]
sSEL = ["s64", "s65", "s66", "s67"]; sM0, sM1 = "s68", "s69"
sT0, sT1, sT2, sT3, sSPIN, sKB = "s70", "s71", "s72", "s73", "s74", "s75"
sGC = "s[76:77]"; sBG = "s3"
vLane, vI16, vQ, vXrd0, vXrd1, vWrd, vL16, vTrow, vB, vG = ["v%d" % i for i in range(1, 11)]
vWoff = list(range(20, 27)); vXA = [27, 28]; vXR = [29, 30]; vWD = [32, 34]; vCo = [36, 37]
vR32 = 40; vZ2 = 56; vZ1 = 88; vGA = 116; vAB = 120; vFR = 136
vWA = list(range(88, 96)); vTA = list(range(96, 112))

def masked(mask_lo, mask_hi, fn):
    A.lock += 1
    A.raw(f"s_mov_b32 exec_lo, {mask_lo}\ns_mov_b32 exec_hi, {mask_hi}")
    r = fn()
    A.raw("s_mov_b64 exec, -1")
    A.lock -= 1
    return r

def poll(loads, cmps, tok=None):
    l, d = A.lab("Lspin"), A.lab("Ldone")
    if tok is None:
        for t in loads: tok = A.vmem(t)
    A.lock += 1
    A.wait_vm(tok)
    A.raw(cmps); A.raw(f"s_cbranch_vccz {d}\ns_mov_b32 {sSPIN}, 0x40000\n{l}:")
    for t in loads: A.raw(t)
    A.raw("s_waitcnt vmcnt(0)"); A.raw(cmps)
    A.raw(f"s_cbranch_vccz {d}\ns_sub_u32 {sSPIN}, {sSPIN}, 1\ns_cmp_lg_u32 {sSPIN}, 0\ns_cbranch_scc1 {l}\n{d}:")
    A.lock -= 1

def gelu(base, n, t):
    for p0 in range(0, n, 4):
        ps = (p0, p0 + 2)
        for k, p in enumerate(ps): A(f"v_pk_mul_f32 {vr(t+2*k,2)}, {vr(base+p,2)}, {vr(base+p,2)}")
        for k, p in enumerate(ps): A(f"v_pk_fma_f32 {vr(t+2*k,2)}, {vr(t+2*k,2)}, {sGC}, {sGC} op_sel:[0,0,1] op_sel_hi:[1,0,1]")
        for k, p in enumerate(ps): A(f"v_pk_mul_f32 {vr(t+2*k,2)}, {vr(t+2*k,2)}, {vr(base+p,2)}")
        for k in range(4): A(f"v_exp_f32 {vr(t+k)}, {vr(t+k)}")
        for k, p in enumerate(ps): A(f"v_pk_add_f32 {vr(t+2*k,2)}, {vr(t+2*k,2)}, 1.0 op_sel_hi:[1,0]")
        for k in range(4): A(f"v_rcp_f32 {vr(t+k)}, {vr(t+k)}")
        for k, p in enumerate(ps): A(f"v_pk_mul_f32 {vr(base+p,2)}, {vr(base+p,2)}, {vr(t+2*k,2)}")

def qreduce(regs, tmps):
    for op in ("v_permlane16_swap_b32", "v_permlane32_swap_b32"):
        for r, t in zip(regs, tmps): A(f"v_mov_b32 {vr(t)}, {vr(r)}")
        A("s_nop 1")
        for r, t in zip(regs, tmps): A(f"{op} {vr(t)}, {vr(r)}")
        A("s_nop 1")
        for r, t in zip(regs, tmps): A(f"v_add_f32 {vr(r)}, {vr(r)}, {vr(t)}")

def it_x(srd, voffs, dst, G):
    it = []
    for sub in (0, 1):
        kb = 128 * (2 * G + sub)
        for h in (0, 1):
            pre = f"s_add_u32 m0, {sW2048}, {dst + sub * 8192 - kb}\ns_nop 0" if h == 0 else ""
            if srd is None: it.append((pre, f"global_load_lds_dwordx4 {vr(voffs[h],2)}, off offset:{1024*h+kb}"))
            else: it.append((pre, f"buffer_load_dwordx4 {vr(voffs[h])}, {srd}, 0 offen offset:{1024*h+kb} lds"))
    return it
def it_w1(dst, G):
    it = []
    for i in range(7):
        pre = f"s_add_u32 m0, {sW7168}, {dst + (4096 if i else 0)}\ns_mov_b32 {sBG}, {G*458752}" if i in (0, 4) else ""
        it.append((pre, f"buffer_load_dwordx4 {vr(vWoff[i])}, {sWIN}, {sBG} offen offset:{1024*(i&3)} lds"))
    return it
def it_w2(dst, G):
    it = []
    for i in range(8):
        pre = f"s_add_u32 m0, {sW8192}, {dst + (4096 if i else 0)}\ns_mov_b32 {sBG}, {G*458752}" if i in (0, 4) else ""
        it.append((pre, f"buffer_load_dwordx4 {vr(vWA[i])}, {sWIN}, {sBG} offen offset:{1024*(i&3)} lds"))
    return it
def it_c(j, dst):
    it = []; kb = 128 * j
    assert dst >= kb
    for u in range(4):
        for h in (0, 1):
            pre = f"s_add_u32 m0, {sW8192}, {dst + u*2048 - kb}\ns_nop 0" if h == 0 else ""
            it.append((pre, f"buffer_load_dwordx4 {vr(vCo[h])}, {sWSP}, {sCU[u]} offen offset:{1024*h+kb} lds"))
    return it
def it_B(G, parts="xdw"):
    o = 2 * (G & 1); it = []
    if "x" in parts: it += it_x(sX, vXR, X[o], G)
    if "d" in parts: it += it_x(None, vWD, X[o + 1], G)
    if "w" in parts: it += it_w1(W[1 + (G & 1)], G)
    return it
IT_GATE = [(f"s_mov_b32 m0, {GATE}\ns_nop 0", f"buffer_load_dwordx4 {vL16}, {sGW}, 0 offen lds")]

class Pipe:
    def __init__(s): s.items = []
    def add(s, reads, fn): s.items.append((reads, fn))
    def run(s, look):
        toks = {}
        def issue(i):
            if i < len(s.items): toks[i] = [A.ds(t) for t in s.items[i][0]]
        for i in range(look): issue(i)
        for i, (reads, fn) in enumerate(s.items):
            if toks[i]: A.wait_lg(toks[i][-1])
            fn(); issue(i + look)

def gbar(name):
    A.wait_all_lg(); A.wait_named(name); A("s_barrier")

NF = 8
cnt = [0]
def stageB_setup():
    A(f"s_add_u32 {sT0}, {sW2048}, {X[0]}\nv_add_u32 v13, {sT0}, {vXrd0}\nv_add_u32 v14, {sT0}, {vXrd1}")
    A(f"s_and_b32 {sT0}, {sW}, 2\ns_lshl_b32 {sT0}, {sT0}, 11\ns_add_u32 {sT0}, {sT0}, {X[0]}\nv_add_u32 v15, {sT0}, {vXrd0}\nv_add_u32 v16, {sT0}, {vXrd1}")
    A(f"s_and_b32 {sT0}, {sW}, 1\ns_lshl_b32 {sT0}, {sT0}, 11\ns_add_u32 {sT0}, {sT0}, {X[0]}\nv_add_u32 v17, {sT0}, {vXrd0}\nv_add_u32 v18, {sT0}, {vXrd1}")
    A(f"v_lshlrev_b32 v12, 4, {vQ}\nv_add_u32 v12, {GATE}, v12")
def stageB(G):
    P = Pipe()
    xr, wd, wo = 32768 * (G & 1), 32768 * (G & 1) + 16384, 32768 * (G & 1)
    for kk in range(4):
        par = kk & 1
        fb = vFR + 40 + 24 * par
        so = (kk >> 1) * 8192
        first = "0" if (G == 0 and kk == 0) else None
        P.add([f"ds_read_b128 {vr(fb,4)}, v{13+par} offset:{xr+so}", f"ds_read_b128 {vr(fb+20,4)}, v12 offset:{(4*G+kk)*64}"],
              lambda fb=fb, first=first: mfma(vr(vGA, 4), vr(fb + 20, 4), vr(fb, 4), first))
        P.add([f"ds_read_b128 {vr(fb+4,4)}, v{15+par} offset:{xr+so}", f"ds_read_b128 {vr(fb+12,4)}, v{17+par} offset:{wd+so}"],
              lambda fb=fb, first=first: mfma(vr(vAB, 4), vr(fb + 4, 4), vr(fb + 12, 4), first))
        P.add([f"ds_read_b128 {vr(fb+8,4)}, v{15+par} offset:{xr+so+2048}"],
              lambda fb=fb, first=first: mfma(vr(vAB + 4, 4), vr(fb + 8, 4), vr(fb + 12, 4), first))
        def two(fb=fb, first=first):
            mfma(vr(vAB + 8, 4), vr(fb + 4, 4), vr(fb + 16, 4), first)
            mfma(vr(vAB + 12, 4), vr(fb + 8, 4), vr(fb + 16, 4), first)
        P.add([f"ds_read_b128 {vr(fb+16,4)}, v{17+par} offset:{wd+so+4096}"], two)
        for ft in range(7):
            wf = vFR + 8 + 4 * (cnt[0] % NF); cnt[0] += 1
            reads = [f"ds_read_b64_tr_b16 {vr(wf+2*half,2)}, {vWrd} offset:{wo + kk*7168 + ft*32 + half*3584}" for half in (0, 1)]
            P.add(reads, lambda wf=wf, fb=fb, ft=ft, first=first: mfma(vr(vZ1 + 4 * ft, 4), vr(wf, 4), vr(fb, 4), first))
    P.run(OPT["look"])

def c_setup():
    A(f"v_add_u32 v240, {sW8192}, {vXrd0}\nv_add_u32 v241, {sW8192}, {vXrd1}")
    A("v_add_u32 v242, 0x10000, v240\nv_add_u32 v243, 0x10000, v241\nv_add_u32 v244, 0x20000, v240\nv_add_u32 v245, 0x20000, v241")
def c_read(j, dst):
    A.wait_named("C%d" % j)
    for par in (0, 1):
        for u in range(4):
            A.ds(f"ds_read_b128 {ar(((2*j+par)*4+u)*4,4)}, v{240+2*(dst>>16)+par} offset:{(dst&0xffff)+u*2048}")

def pass1_and_z1():
    t = vFR
    A("s_nop 7")
    for ty in (0, 1):
        for k in range(4): A(f"v_cvt_pk_bf16_f32 {vr(t+4*ty+k)}, {vr(vAB+8*ty+2*k)}, {vr(vAB+8*ty+2*k+1)}")
    A(f"v_and_b32 v11, 1, v0\nv_cmp_eq_u32 vcc, 1, v11\nv_cmp_ne_u32 s[78:79], 1, {vI16}\ns_nop 1")
    for k in range(4): A(f"v_cndmask_b32 {vr(vR32+4+k)}, {vr(vR32+4+k)}, {vr(vR32+12+k)}, vcc")
    A("s_and_b64 vcc, vcc, s[78:79]\ns_nop 1")
    for k in range(4): A(f"v_cndmask_b32 {vr(vR32+k)}, {vr(vR32+k)}, {vr(vR32+8+k)}, vcc")
    A("s_nop 1")
    for ty in (0, 1):
        for J in (0, 1): mfma(vr(vAB + 8 * ty + 4 * J, 4), vr(vR32 + 4 * J, 4), vr(t + 4 * ty, 4), "0")
    A(f"v_mul_f32 v11, {fbits(1.4426950408889634)}, {vr(vGA)}\nv_exp_f32 v12, v11\nv_exp_f32 v13, -v11\ns_nop 0\nv_add_f32 v12, 1.0, v12\nv_add_f32 v13, 1.0, v13\nv_rcp_f32 v12, v12\nv_rcp_f32 {vG}, v13")
    A(f"s_mul_i32 {sT0}, {sR}, 4352\ns_lshl_b32 {sT1}, {sC}, 9\ns_add_u32 {sT0}, {sT0}, {sT1}\ns_and_b32 {sT1}, {sW}, 1\ns_lshl_b32 {sT2}, {sT1}, 8\ns_add_u32 {sT0}, {sT0}, {sT2}")
    A(f"s_lshr_b32 {sT2}, {sW}, 1\ns_lshl_b32 {sT2}, {sT2}, 3\ns_add_u32 {sT0}, {sT0}, {sT2}\ns_add_u32 {sT0}, {sT0}, {F2}\ns_mov_b32 {sT3}, {2*139264}")
    A(f"v_lshlrev_b32 v14, 4, {vI16}\nv_mad_u32_u24 v14, {vQ}, {sT3}, v14\nv_add_u32 v14, {sT0}, v14")
    for J in (0, 1):
        for z in (0, 1):
            u = t + 8 + 2 * (2 * J + z)
            A(f"v_cvt_pk_bf16_f32 {vr(u)}, {vr(vAB+4*J+2*z)}, {vr(vAB+4*J+2*z+1)}\nv_cvt_pk_bf16_f32 {vr(u+1)}, {vr(vAB+8+4*J+2*z)}, {vr(vAB+8+4*J+2*z+1)}")
    lsk = A.lab("Lnosp")
    A.lock += 1
    A(f"s_add_u32 {sT1}, {sT1}, {sC}\ns_cmp_lg_u32 {sT1}, 0\ns_cbranch_scc1 {lsk}")
    A(f"s_mov_b32 exec_lo, 0x00010001\ns_mov_b32 exec_hi, 0x00010001\nv_mov_b32 {vr(t+17)}, 0")
    for k in range(4):
        A(f"v_mov_b32 {vr(t+16)}, {vr(t+9+2*k)}\nv_mov_b32 {vr(t+9+2*k)}, 0\ns_mov_b32 {sT1}, {(8*(k>>1)+(k&1))*139264+4096}")
        A(f"buffer_store_dwordx2 {vr(t+16,2)}, v14, {sWS}, {sT1} offen sc1\ns_nop 1")
    A(f"s_mov_b64 exec, -1\n{lsk}:")
    A.lock -= 1
    for k in range(4):
        A(f"s_mov_b32 {sT1}, {(8*(k>>1)+(k&1))*139264}")
        tokF = A.vmem(f"buffer_store_dwordx2 {vr(t+8+2*k,2)}, v14, {sWS}, {sT1} offen sc1")
    gelu(vZ1, 28, vFR + 20)
    A("v_mov_b32 v13, v12")
    for p in range(0, 28, 2): A(f"v_pk_mul_f32 {vr(vZ1+p,2)}, {vr(vZ1+p,2)}, v[12:13]")
    A(f"v_lshlrev_b32 {vB}, 16, {vB}")
    return tokF
def flagF(tokF):
    A.wait_vm(tokF); A("s_barrier")
    A(f"s_lshl_b32 {sT0}, {sC}, 8\ns_lshl_b32 {sT1}, {sR}, 3\ns_add_u32 {sT0}, {sT0}, {sT1}\ns_add_u32 {sT0}, {sT0}, {FLAGF}\nv_mov_b32 v11, 0")
    masked(1, 0, lambda: A.vmem(f"buffer_store_dwordx2 v[38:39], v11, {sWS}, {sT0} offen sc1"))

def srd(b, src, size): A(f"s_mov_b32 s{b}, s{src}\ns_mov_b32 s{b+1}, s{src+1}\ns_mov_b32 s{b+2}, {size}\ns_mov_b32 s{b+3}, 0x20000")

def prologue():
    A("s_cmp_ge_u32 s2, 256\ns_cbranch_scc1 Lend")
    A("s_load_dwordx16 s[60:75], s[0:1], 0\ns_load_dwordx8 s[80:87], s[0:1], 64\ns_load_dwordx4 s[88:91], s[0:1], 96")
    if OPT["prof"]: A("s_memrealtime s[98:99]")
    A(f"s_getpc_b64 s[44:45]\ns_mov_b32 s46, Lend-{NAME}_kernel\ns_mov_b32 s47, 0x20000")
    A("s_lshr_b32 s3, s2, 3\ns_mul_i32 s76, s3, 1536\nv_and_b32 v11, 15, v0\nv_lshlrev_b32 v11, 7, v11\nv_add_u32 v11, s76, v11")
    A.vmem(f"buffer_load_dword v12, v11, {sTMP}, 0 offen")
    A("s_and_b32 s76, s2, 7")
    if OPT["xmap"] == 1:
        A(f"s_lshr_b32 {sR}, s3, 3\ns_lshl_b32 s77, s76, 2\ns_add_u32 {sR}, {sR}, s77\ns_and_b32 {sC}, s3, 7")
    elif OPT["xmap"] == 2:
        A(f"s_lshr_b32 {sR}, s76, 1\ns_lshl_b32 {sR}, {sR}, 3\ns_lshr_b32 s77, s3, 2\ns_add_u32 {sR}, {sR}, s77")
        A(f"s_and_b32 {sC}, s76, 1\ns_lshl_b32 {sC}, {sC}, 2\ns_and_b32 s77, s3, 3\ns_add_u32 {sC}, {sC}, s77")
    else:
        A(f"s_lshr_b32 {sR}, s76, 2\ns_lshl_b32 {sR}, {sR}, 4\ns_lshr_b32 s77, s3, 1\ns_add_u32 {sR}, {sR}, s77")
        A(f"s_and_b32 {sC}, s76, 3\ns_lshl_b32 {sC}, {sC}, 1\ns_and_b32 s77, s3, 1\ns_add_u32 {sC}, {sC}, s77")
    A(f"v_lshrrev_b32 v11, 6, v0\nv_and_b32 {vLane}, 63, v0\nv_readfirstlane_b32 {sW}, v11")
    A(f"v_and_b32 {vI16}, 15, v0\nv_lshrrev_b32 {vQ}, 4, {vLane}\nv_lshlrev_b32 {vL16}, 4, {vLane}")
    A(f"s_lshl_b32 {sW2048}, {sW}, 11\ns_mul_i32 {sW7168}, {sW}, 7168\ns_lshl_b32 {sW8192}, {sW}, 13")
    A(f"v_lshrrev_b32 v11, 3, {vLane}\nv_and_b32 v15, 7, v0\nv_lshrrev_b32 v16, 1, v11")
    A("v_xor_b32 v13, v15, v16\nv_lshlrev_b32 v13, 4, v13\nv_xor_b32 v14, 64, v13")
    A(f"s_lshl_b32 s76, {sR}, 16\ns_lshl_b32 s77, {sW}, 14\ns_add_u32 s76, s76, s77\nv_lshl_add_u32 v15, v11, 10, s76")
    A(f"v_add_u32 {vr(vXA[0])}, v15, v13\nv_add_u32 {vr(vXA[1])}, v15, v14\nv_add_u32 {vr(vXA[1])}, 7168, {vr(vXA[1])}")
    A(f"s_lshl_b32 s76, {sC}, 8\ns_mul_i32 s77, {sW}, 114688\ns_add_u32 s76, s76, s77\ns_add_u32 s76, s76, 1792\ns_movk_i32 s77, 3584")
    A(f"v_lshlrev_b32 v15, 1, {vQ}\nv_xor_b32 v15, v15, {vI16}\nv_lshlrev_b32 v15, 4, v15\nv_mad_u32_u24 v16, {vQ}, s77, v15\nv_add_u32 v16, s76, v16\nv_xor_b32 v17, 128, v16")
    for i in range(8):
        A(f"v_add_u32 {vr(vWA[i])}, {(8*(i&3)+4*(i>>2))*3584 - 1024*(i&3)}, v{16+(i&1)}")
    A("s_waitcnt lgkmcnt(0)")
    srd(4, 60, 2097152); srd(8, 72, 1835008)
    A(f"s_load_dwordx2 s[92:93], s[90:91], {EPOCH}")

def setup2():
    srd(12, 74, 8388608); srd(16, 82, 917504); srd(20, 62, 8388608); srd(24, 64, 8388608)
    srd(28, 90, WS_SIZE); srd(32, 86, 2097152); srd(36, 80, 4096); srd(40, 84, 1024)
    A("s_mov_b64 s[48:49], s[66:67]\ns_mov_b64 s[50:51], s[68:69]")
    A(f"s_mul_i32 s76, {sC}, 224\ns_mul_i32 s77, {sW}, 114688\ns_add_u32 s76, s76, s77\ns_movk_i32 s77, 3584\ns_movk_i32 s78, 4682")
    for i in range(7):
        A(f"v_add_u32 v15, {64*i}, {vLane}\nv_mul_u32_u24 v16, s78, v15\nv_lshrrev_b32 v16, 16, v16\nv_mul_u32_u24 v17, 14, v16\nv_sub_u32 v17, v15, v17")
        A("v_and_b32 v18, 12, v16\nv_lshlrev_b32 v18, 1, v18\nv_and_or_b32 v18, v16, 3, v18\nv_lshrrev_b32 v16, 4, v16\nv_lshl_add_u32 v18, v16, 2, v18")
        A(f"v_lshl_add_u32 v17, v17, 4, s76\nv_mad_u32_u24 {vr(vWoff[i])}, v18, s77, v17")
        if i & 3: A(f"v_subrev_u32 {vr(vWoff[i])}, {1024*(i&3)}, {vr(vWoff[i])}")
    A("v_and_b32 v17, 4, v11\nv_lshlrev_b32 v17, 1, v17\nv_and_or_b32 v17, v11, 3, v17")
    A(f"s_and_b32 s76, {sW}, 1\ns_lshl_b32 s76, s76, 8\ns_lshr_b32 s77, {sW}, 1\ns_lshl_b32 s77, s77, 5\ns_add_u32 s76, s76, s77\ns_add_u32 s76, s76, {sR}")
    A("s_lshl_b32 s77, s76, 10\nv_lshl_add_u32 v15, v17, 16, s77")
    A(f"v_add_u32 {vr(vXR[0])}, v15, v13\nv_add_u32 {vr(vXR[1])}, v15, v14\nv_add_u32 {vr(vXR[1])}, {1024*1024-1024}, {vr(vXR[1])}")
    A(f"v_and_b32 v15, 12, {vI16}\nv_lshlrev_b32 v15, 1, v15\nv_and_or_b32 v15, {vI16}, 3, v15\nv_lshl_add_u32 {vTrow}, v15, 6, s76")
    A(f"s_lshl_b32 s77, {sR}, 12\ns_lshl_b32 s78, {sW}, 10\ns_add_u32 s77, s77, s78\nv_lshl_add_u32 v15, v17, 18, s77")
    A(f"v_add_u32 {vr(vCo[0])}, v15, v13\nv_add_u32 {vr(vCo[1])}, v15, v14\nv_add_u32 {vr(vCo[1])}, {1024*4096-1024}, {vr(vCo[1])}")
    for u in range(4):
        A(f"s_add_u32 s77, {sW}, {u}\ns_and_b32 s78, s77, 1\ns_lshl_b32 s78, s78, 20\ns_and_b32 s77, s77, 2\ns_lshl_b32 s77, s77, 16\ns_add_u32 {sCU[u]}, s77, s78")
    A(f"s_cmp_lt_u32 {sW}, 2\ns_cselect_b32 s76, s48, s50\ns_cselect_b32 s77, s49, s51")
    A(f"s_lshl_b32 s78, {sC}, 15\ns_and_b32 s79, {sW}, 1\ns_lshl_b32 s79, s79, 14\ns_add_u32 s78, s78, s79\ns_add_u32 s76, s76, s78\ns_addc_u32 s77, s77, 0")
    A(f"v_lshl_add_u32 v18, v11, 10, v13\nv_mov_b32 v19, 0\nv_lshl_add_u64 {vr(vWD[0],2)}, v[18:19], 0, s[76:77]")
    A(f"v_lshl_add_u32 v18, v11, 10, v14\nv_add_u32 v18, 7168, v18\nv_lshl_add_u64 {vr(vWD[1],2)}, v[18:19], 0, s[76:77]")
    A(f"s_add_u32 s76, s48, {256*1024}\ns_addc_u32 s77, s49, 0\nv_mov_b32 v18, v13\nv_lshl_add_u64 v[18:19], v[18:19], 0, s[76:77]")
    A(f"s_lshl_b32 s78, {sC}, 2\ns_add_u32 s78, s78, {sW}\ns_cmp_eq_u32 s78, 2\ns_cselect_b32 s78, 8, 0")
    A(f"v_cmp_gt_u32 vcc, s78, {vLane}\ns_nop 1\nv_cndmask_b32 {vr(vWD[0])}, {vr(vWD[0])}, v18, vcc\nv_cndmask_b32 {vr(vWD[0]+1)}, {vr(vWD[0]+1)}, v19, vcc")
    A(f"v_lshlrev_b32 v246, 1, {vTrow}")
    A(f"v_lshrrev_b32 v247, 1, {vI16}\nv_lshlrev_b32 v247, 18, v247\nv_lshl_add_u32 v247, {vQ}, 4, v247")
    A(f"v_cmp_eq_u32 vcc, 1, {vI16}\nv_add_u32 v248, {1024*4096}, v247\ns_nop 0\nv_cndmask_b32 v248, v247, v248, vcc")
    A(f"v_lshrrev_b32 v15, 1, {vI16}\nv_xor_b32 v15, v15, {vQ}\nv_lshlrev_b32 v15, 4, v15\nv_lshl_add_u32 {vXrd0}, {vI16}, 7, v15\nv_xor_b32 {vXrd1}, 64, {vXrd0}")
    A(f"v_lshrrev_b32 v15, 2, {vLane}\nv_mul_u32_u24 v15, 224, v15\nv_and_b32 v16, 3, v0\nv_lshl_add_u32 v15, v16, 3, v15\nv_add_u32 {vWrd}, {W[1]}, v15")
    A("s_waitcnt lgkmcnt(0)")
    A("s_mul_i32 s52, s92, 0x9E3779B1\ns_add_u32 s52, s52, 0x7F4A7C15\ns_mul_i32 s53, s93, 0x85EBCA6B\ns_add_u32 s53, s53, 0xC2B2AE35")
    c0 = -2 * 0.7978845608028654 * 1.4426950408889634
    A(f"s_mov_b32 s76, {fbits(c0*0.044715)}\ns_mov_b32 s77, {fbits(c0)}\nv_mov_b32 v38, s52\nv_mov_b32 v39, s53")
    c_setup()
IT_SMALL = [("", f"buffer_load_ushort {vB}, v246, {sBSP}, 0 offen"),
            ("", f"buffer_load_dwordx4 {vr(vR32,4)}, v248, {sWSR}, 0 offen"),
            (f"s_mov_b32 {sBG}, {8*64*4096}", f"buffer_load_dwordx4 {vr(vR32+4,4)}, v247, {sWSR}, {sBG} offen"),
            ("", f"buffer_load_dwordx4 {vr(vR32+8,4)}, v247, {sWSI}, 0 offen"),
            ("", f"buffer_load_dwordx4 {vr(vR32+12,4)}, v247, {sWSI}, {sBG} offen")]

def front_main():
    for G in range(3):
        A.push(it_x(sX, vXA, X[G], G) + it_w2(W[G], G), "A%d" % G)
    A.push(it_x(sX, vXA, X[3], 3))
    A.flush("A1")
    A.per = 40
    setup2()
    A.flush()
    A.per = OPT["per"]
    A.stamp(0)
    A(f"v_lshrrev_b32 v15, 2, {vLane}\nv_lshlrev_b32 v16, 8, v15\nv_and_b32 v15, 7, v15\nv_lshl_add_u32 v16, v15, 5, v16\nv_and_b32 v15, 3, v0\nv_lshl_add_u32 v16, v15, 3, v16")
    for ft in range(8): A(f"v_xor_b32 {vr(vTA[ft])}, {32*ft}, v16\nv_add_u32 {vr(vTA[8+ft])}, 0x10000, {vr(vTA[ft])}")
    A(f"s_add_u32 {sT0}, {sW2048}, {X[0]}\nv_add_u32 v13, {sT0}, {vXrd0}\nv_add_u32 v14, {sT0}, {vXrd1}")
    for G in range(4):
        gbar("A%d" % G)
        if G == 1: A.push(it_w2(W[0], 3), "A3"); A.flush()
        if G == 2: A.push(IT_GATE + IT_SMALL + it_B(0), "B0")
        if G == 3: A.push(it_B(1, "xw"))
        P = Pipe(); slot = G % 3
        for kk in range(4):
            xf = vFR + 4 * (kk & 1)
            for ft in range(8):
                wf = vFR + 8 + 4 * (cnt[0] % NF); cnt[0] += 1
                reads = []
                if ft == 0: reads.append(f"ds_read_b128 {vr(xf,4)}, v{13+(kk&1)} offset:{G*16384+(kk>>1)*8192}")
                for half in (0, 1):
                    reads.append(f"ds_read_b64_tr_b16 {vr(wf+2*half,2)}, {vr(vTA[ft + (8 if slot == 2 else 0)])} offset:{(W[slot]&0xffff) + kk*8192 + half*4096}")
                first = (G == 0 and kk == 0)
                P.add(reads, lambda wf=wf, xf=xf, ft=ft, first=first: mfma(vr(vZ2 + 4 * ft, 4), vr(wf, 4), vr(xf, 4), "0" if first else None))
        P.run(OPT["look"])
    A("s_barrier")
    A.push(it_B(1, "d"), "B1")
    A.stamp(1)
    A("s_nop 7")
    gelu(vZ2, 32, vFR)
    t = vFR
    A(f"v_pk_add_f32 {vr(t,2)}, {vr(vZ2,2)}, {vr(vZ2+2,2)}\nv_pk_mul_f32 {vr(t+2,2)}, {vr(vZ2,2)}, {vr(vZ2,2)}")
    for p in range(2, 32, 2):
        if p > 2: A(f"v_pk_add_f32 {vr(t,2)}, {vr(t,2)}, {vr(vZ2+p,2)}")
        A(f"v_pk_fma_f32 {vr(t+2,2)}, {vr(vZ2+p,2)}, {vr(vZ2+p,2)}, {vr(t+2,2)}")
    A(f"v_add_f32 {vr(t+4)}, {vr(t)}, {vr(t+1)}\nv_add_f32 {vr(t+5)}, {vr(t+2)}, {vr(t+3)}")
    qreduce([t + 4, t + 5], [t, t + 1])
    A(f"v_mov_b32 {vr(t+6)}, s52\nv_mov_b32 {vr(t+7)}, s53")
    A(f"s_lshl_b32 {sT0}, {sR}, 13\ns_lshl_b32 {sT1}, {sW}, 8\ns_add_u32 {sT0}, {sT0}, {sT1}\ns_add_u32 {sT0}, {sT0}, {STAT}")
    A(f"v_lshlrev_b32 v11, 4, {vI16}\nv_add_u32 v11, {sT0}, v11\ns_lshl_b32 {sT1}, {sC}, 10")
    masked(0xffff, 0, lambda: A.vmem(f"buffer_store_dwordx4 {vr(t+4,4)}, v11, {sWS}, {sT1} offen sc1"))
    A(f"v_lshl_add_u32 v249, {vQ}, 11, v11\nv_add_u32 v250, 1024, v249\nv_cmp_eq_u32 vcc, 3, {vQ}\nv_mov_b32 v251, 1.0\ns_nop 0\nv_cndmask_b32 v250, v250, v249, vcc\nv_cndmask_b32 v251, v251, 0, vcc")
    A.stamp(2)
    stageB_setup()
    gbar("B0"); stageB(0)
    t = vFR + 96
    ld = [f"buffer_load_dwordx4 {vr(t,4)}, v249, {sWS}, 0 offen sc1", f"buffer_load_dwordx4 {vr(t+4,4)}, v250, {sWS}, 0 offen sc1"]
    A.flush()
    for l in ld: tokS = A.vmem(l)
    A.wait_all_lg(); A("s_barrier")
    A.push(it_B(2), "B2")
    A.stamp(3)
    A(f"v_and_b32 v11, 3, {vI16}\nv_bfe_u32 v252, {vI16}, 3, 1\nv_lshl_add_u32 v11, v252, 2, v11\nv_bfe_u32 v252, {vI16}, 2, 1\nv_lshl_add_u32 v11, v252, 3, v11")
    A(f"s_mul_i32 {sT0}, {sW}, {16*SCRP}\ns_add_u32 {sT0}, {sT0}, {SCR}\nv_mul_u32_u24 v11, {SCRP}, v11\nv_lshl_add_u32 v11, {vQ}, 3, v11\nv_add_u32 v11, {sT0}, v11")
    A(f"v_bfe_u32 v253, {vLane}, 2, 3\nv_mul_u32_u24 v253, {SCRP}, v253\nv_and_b32 v252, 3, v0\nv_lshl_add_u32 v253, v252, 3, v253\nv_lshrrev_b32 v252, 5, {vLane}\nv_lshl_add_u32 v253, v252, 5, v253\nv_add_u32 v253, {sT0}, v253")
    A(f"v_and_b32 v254, 31, v0\nv_lshlrev_b32 v254, 4, v254\nv_lshl_add_u32 v254, v252, 10, v254")
    A(f"s_lshl_b32 {sT1}, {sR}, 1\ns_lshr_b32 {sT2}, {sW}, 1\ns_add_u32 {sT1}, {sT1}, {sT2}\ns_mul_i32 {sT0}, {sT1}, 57344\ns_lshl_b32 {sT1}, {sC}, 13\ns_add_u32 {sT0}, {sT0}, {sT1}")
    A(f"s_and_b32 {sT1}, {sW}, 1\ns_lshl_b32 {sT1}, {sT1}, 9\ns_add_u32 {sT0}, {sT0}, {sT1}\ns_add_u32 {sT0}, {sT0}, {Z2N}\ns_add_u32 {sT1}, {sT0}, 4096")
    poll(ld, f"v_cmp_ne_u64 vcc, s[52:53], {vr(t+2,2)}\nv_cmp_ne_u64 s[78:79], s[52:53], {vr(t+6,2)}\ns_or_b64 vcc, vcc, s[78:79]", tokS)
    A.stamp(4)
    A(f"v_fma_f32 {vr(t)}, {vr(t+4)}, v251, {vr(t)}\nv_fma_f32 {vr(t+1)}, {vr(t+5)}, v251, {vr(t+1)}")
    qreduce([t, t + 1], [t + 2, t + 3])
    A(f"v_mul_f32 {vr(t)}, {fbits(1/896)}, {vr(t)}\nv_mul_f32 {vr(t+1)}, {fbits(1/896)}, {vr(t+1)}")
    A(f"v_fma_f32 {vr(t+1)}, -{vr(t)}, {vr(t)}, {vr(t+1)}\nv_max_f32 {vr(t+1)}, 0, {vr(t+1)}\nv_add_f32 {vr(t+1)}, {fbits(1e-5)}, {vr(t+1)}\nv_rsq_f32 {vr(t+2)}, {vr(t+1)}\ns_nop 0")
    A(f"v_mul_f32_e64 {vr(t+3)}, -{vr(t)}, {vr(t+2)}")
    for ft in range(8):
        b = vZ2 + 4 * ft
        for p in (0, 2): A(f"v_pk_fma_f32 {vr(b+p,2)}, {vr(b+p,2)}, {vr(t+2,2)}, {vr(t+2,2)} op_sel:[0,0,1] op_sel_hi:[1,0,1]")
        A(f"v_cvt_pk_bf16_f32 {vr(b)}, {vr(b)}, {vr(b+1)}\nv_cvt_pk_bf16_f32 {vr(b+1)}, {vr(b+2)}, {vr(b+3)}")
        A.ds(f"ds_write_b64 v11, {vr(b,2)} offset:{ft*32}")
    A.wait_all_lg()
    tk = []
    for p in range(4):
        A.ds(f"ds_read_b64_tr_b16 {vr(vZ2+4*p,2)}, v253 offset:{64*p}")
        tk.append(A.ds(f"ds_read_b64_tr_b16 {vr(vZ2+4*p+2,2)}, v253 offset:{64*p+8*SCRP}"))
    for p in range(4):
        A.wait_lg(tk[p])
        tokZ = A.vmem(f"buffer_store_dwordx4 {vr(vZ2+4*p,4)}, v254, {sWS}, {sT0 if p < 2 else sT1} offen offset:{2048*(p&1)} sc1")
    A.stamp(5)
    gbar("B1")
    A.push(it_c(0, W[0]), "C0")
    stageB(1)
    A.wait_vm(tokZ)
    A(f"s_lshl_b32 {sT0}, {sC}, 10\ns_lshl_b32 {sT1}, {sR}, 5\ns_add_u32 {sT0}, {sT0}, {sT1}\ns_lshl_b32 {sT1}, {sW}, 3\ns_add_u32 {sT0}, {sT0}, {sT1}\ns_add_u32 {sT0}, {sT0}, {FLAGZ}\nv_mov_b32 v11, 0")
    masked(1, 0, lambda: A.vmem(f"buffer_store_dwordx2 v[38:39], v11, {sWS}, {sT0} offen sc1"))
    A.stamp(6)
    gbar("B2")
    A.push(it_B(3), "B3")
    stageB(2)
    A.stamp(7)
    gbar("B3")
    A.push(it_c(1, X[0]), "C1")
    c_read(0, W[0])
    stageB(3)
    A.wait_all_lg(); A("s_barrier")
    cs = {2: W[1], 3: W[2], 4: X[2], 5: X[0], 6: W[1], 7: W[2]}
    for j in (2, 3, 4): A.push(it_c(j, cs[j]), "C%d" % j)
    A.stamp(8)
    tokF = pass1_and_z1()
    A.stamp(9)
    c_read(1, X[0]); A.wait_all_lg(); A.push(it_c(5, cs[5]), "C5")
    c_read(2, cs[2]); A.wait_all_lg(); A.push(it_c(6, cs[6]), "C6")
    c_read(3, cs[3]); A.wait_all_lg(); A.push(it_c(7, cs[7]), "C7")
    A.flush()
    flagF(tokF)
    for j in (4, 5, 6, 7): c_read(j, cs[j])

def front_pref():
    setup2()
    A.stamp(0)
    A(f"s_lshl_b32 {sT0}, {sR}, 4\ns_lshl_b32 {sT1}, {sW}, 2\ns_add_u32 {sT0}, {sT0}, {sT1}\ns_mul_i32 {sT0}, {sT0}, 3584\ns_movk_i32 {sT1}, 3584")
    A(f"v_lshlrev_b32 v15, 7, {vI16}\nv_mad_u32_u24 v15, {vQ}, {sT1}, v15")
    A.vmem(f"buffer_load_dword v12, v15, {sWIN}, {sT0} offen")
    A(f"s_cmp_eq_u32 {sW}, 0\ns_cselect_b32 s44, s48, s50\ns_cselect_b32 s45, s49, s51\ns_mov_b32 s46, 524288\ns_mov_b32 s47, 0x20000\ns_lshl_b32 {sT0}, {sR}, 13\nv_lshlrev_b32 v15, 7, {vLane}")
    A.vmem(f"buffer_load_dword v12, v15, {sTMP}, {sT0} offen")
    cs = [W[0], W[1], W[2], X[0], X[2], W[1], W[2], X[0]]
    for j in range(5): A.push(it_c(j, cs[j]), "C%d" % j)
    A.flush()
    A(f"s_lshl_b32 {sT0}, {sR}, 2\ns_add_u32 {sT0}, {sT0}, {sW}\ns_mul_i32 {sT0}, {sT0}, 7168")
    A.vmem(f"buffer_load_dword v12, v15, {sWOUT}, {sT0} offen")
    A(f"v_lshlrev_b32 v15, 12, {vTrow}")
    A.vmem(f"buffer_load_dword v12, v15, {sWSR}, 0 offen")
    A.vmem(f"buffer_load_dword v12, v15, {sWSI}, 0 offen")
    for j in range(8):
        c_read(j, cs[j])
        if j in (1, 2, 3): A.wait_all_lg(); A.push(it_c(j + 4, cs[j + 4]), "C%d" % (j + 4)); A.flush()
    A.wait_all_lg(); A("s_barrier")
    A.push(IT_GATE + IT_SMALL + it_B(0), "B0"); A.push(it_B(1), "B1")
    for k in range(1, 6): A.stamp(k)
    stageB_setup()
    for G in range(4):
        gbar("B%d" % G)
        if G in (1, 2): A.push(it_B(G + 1), "B%d" % (G + 1))
        stageB(G)
    for k in range(6, 9): A.stamp(k)
    tokF = pass1_and_z1()
    A.stamp(9)
    flagF(tokF)

def back():
    A.stamp(10)
    A(f"s_mul_i32 {sT0}, {sC}, 7\ns_add_u32 {sT1}, {sT0}, 6\ns_lshr_b32 {sT0}, {sT0}, 3\ns_lshr_b32 {sT1}, {sT1}, 3\ns_sub_u32 {sT1}, {sT1}, {sT0}\ns_lshl_b32 {sT1}, {sT1}, 10")
    A(f"s_lshl_b32 {sT0}, {sT0}, 10\ns_lshl_b32 {sT2}, {sW}, 8\ns_add_u32 {sT0}, {sT0}, {sT2}\ns_add_u32 {sT0}, {sT0}, {FLAGZ}")
    A(f"v_and_b32 v11, 31, v0\nv_lshlrev_b32 v11, 3, v11\nv_lshrrev_b32 v12, 5, {vLane}\nv_mad_u32_u24 v11, v12, {sT1}, v11")
    poll([f"buffer_load_dwordx2 v[12:13], v11, {sWS}, {sT0} offen sc1"], "v_cmp_ne_u64 vcc, s[52:53], v[12:13]")
    A.stamp(11)
    ACC = 116
    ring = list(range(40, 88, 4)) + list(range(228, 256, 4)) + list(range(20, 36, 4))
    R = len(ring)
    A(f"s_mul_i32 {sT0}, {sC}, 7168\ns_mul_i32 {sT1}, {sW}, {16*57344}\ns_add_u32 {sT0}, {sT0}, {sT1}\ns_add_u32 {sT0}, {sT0}, {Z2N}\nv_add_u32 v11, {sT0}, {vL16}")
    A.wait_all_lg()
    tz = {}
    def zload(n):
        if n >= 112: return
        ks, ft = divmod(n, 7)
        if ft in (0, 4): A.raw(f"s_mov_b32 {sT2}, {ks*57344 + (4096 if ft else 0)}")
        tz[n] = A.vmem(f"buffer_load_dwordx4 {vr(ring[n%R],4)}, v11, {sWS}, {sT2} offen offset:{(ft&3)*1024} sc1")
    for n in range(8): zload(n)
    A(f"v_lshrrev_b32 v14, 3, {vLane}\nv_and_b32 v15, 7, v0\nv_and_b32 v16, 6, v14\nv_xor_b32 v15, v15, v16\nv_lshlrev_b32 v15, 4, v15\nv_lshl_add_u32 v14, v14, 10, v15")
    A(f"s_mul_i32 {sT0}, {sW}, {224*1024}\ns_lshl_b32 {sT1}, {sC}, 7\ns_add_u32 {sT0}, {sT0}, {sT1}\nv_add_u32 v14, {sT0}, v14\nv_add_u32 v15, 7168, v14")
    A(f"s_lshl_b32 {sCU[0]}, {sW}, 14\ns_mul_i32 {sCU[1]}, {sW}, 12288")
    for u in (1, 2, 3):
        A(f"s_add_u32 {sT0}, {sW}, {u}\ns_and_b32 {sT0}, {sT0}, 3\ns_mul_i32 {sT0}, {sT0}, 21504\ns_add_u32 {sT0}, {sT0}, {(u-1)*7168}\nv_add_u32 v{15+u}, {sT0}, {vL16}")
    A(f"s_mul_i32 {sT0}, {sW}, 21504\nv_add_u32 v19, {sT0}, {vL16}")
    A(f"v_lshlrev_b32 v12, 12, {vTrow}\nv_lshl_add_u32 v12, {vQ}, 4, v12\nv_lshlrev_b32 v13, 5, {vLane}\nv_add_u32 v13, {FLAGF}, v13")
    A("s_barrier")
    for n in range(8, R): zload(n)
    def wout_tiles(ls):
        if ls < 3: return (32 * ls, 32 * ls + 16)
        if ls == 3: return (96, 208)
        return (112 + 32 * (ls - 4), 112 + 32 * (ls - 4) + 16)
    def it_wout(ls):
        it = []
        for hh, f0 in enumerate(wout_tiles(ls)):
            m = f"s_add_u32 m0, {sCU[0]}, {98304 + ls*4096 + hh*2048}" if ls < 4 else f"s_add_u32 m0, {sCU[1]}, {(ls-4)*4096 + hh*2048}"
            it.append((m + f"\ns_mov_b32 {sBG}, {f0*1024}", f"buffer_load_dwordx4 v14, {sWOUT}, {sBG} offen lds"))
            it.append(("", f"buffer_load_dwordx4 v15, {sWOUT}, {sBG} offen offset:1024 lds"))
        return it
    free = []
    def red_write(ft):
        for u in (1, 2, 3): A.ds(f"ds_write_b128 v{15+u}, {vr(ACC+(ft*4+u)*4,4)} offset:{ft*1024}")
    A.per = 60
    for n in range(112):
        ks, ft = divmod(n, 7)
        A.wait_vm(tz[n])
        for u in range(4):
            mfma(vr(ACC + (ft * 4 + u) * 4, 4), vr(ring[n % R], 4), ar((ks * 4 + u) * 4, 4), "0" if ks == 0 else None)
        zload(n + R)
        if n + R >= 112: free.append(ring[n % R])
        if n + R == 112:
            for ls in range(4): A.push(it_wout(ls), "W1" if ls == 3 else None)
        if len(free) == 6:
            cf = free[:4]; pf = free[4:6]
            A.push([("", f"buffer_load_dwordx4 {vr(cf[0],4)}, v12, {sWSR}, 0 offen"), ("", f"buffer_load_dwordx4 {vr(cf[1],4)}, v12, {sWSR}, 0 offen offset:64"),
                    ("", f"buffer_load_dwordx4 {vr(cf[2],4)}, v12, {sWSI}, 0 offen"), ("", f"buffer_load_dwordx4 {vr(cf[3],4)}, v12, {sWSI}, 0 offen offset:64")])
            ldF = [f"buffer_load_dwordx4 {vr(pf[0],4)}, v13, {sWS}, 0 offen sc1", f"buffer_load_dwordx4 {vr(pf[1],4)}, v13, {sWS}, 0 offen offset:16 sc1"]
            A.push([("", l) for l in ldF], "PF")
        if ks == 15 and ft >= 2: red_write(ft - 2)
    A.flush()
    A("s_nop 3"); red_write(5); A("s_nop 1"); red_write(6)
    A.stamp(12)
    HP = [f for f in ring if f not in cf and f not in pf]
    hp = 56 if all(q in HP for q in (56, 60, 64, 68)) else None
    assert hp is not None
    A(f"s_lshl_b32 {sT0}, {sR}, 2\ns_add_u32 {sT0}, {sT0}, {sW}\ns_mul_i32 {sKB}, {sT0}, 28672\ns_add_u32 {sKB}, {sKB}, {HB}")
    A(f"s_lshl_b32 {sCU[2]}, {sT0}, 7\ns_add_u32 {sCU[2]}, {sCU[2]}, {FLAGH}")
    A(f"s_lshr_b32 {sT1}, {sC}, 1\ns_mul_i32 {sT1}, {sT1}, 7168\ns_add_u32 {sT1}, {sT1}, {sKB}\ns_and_b32 {sT2}, {sC}, 1\ns_lshl_b32 {sT3}, {sT2}, 12\ns_add_u32 {sT3}, {sT3}, {sT1}\ns_lshl_b32 {sT2}, {sT2}, 9\ns_add_u32 {sT1}, {sT1}, {sT2}")
    A(f"v_lshlrev_b32 v11, 3, {vLane}\nv_mov_b32 v36, {vB}\nv_mov_b32 v37, {vB}")
    A.wait_all_lg(); A("s_barrier")
    tk = {}
    def rr(ft):
        if ft < 7:
            for u in (1, 2, 3): tk[ft] = A.ds(f"ds_read_b128 {vr(ACC+(ft*4+u)*4,4)}, v19 offset:{(u-1)*7168+ft*1024}")
    for ft in range(4): rr(ft)
    for ft in range(7):
        b = ACC + ft * 16
        for p in (0, 2): A(f"v_pk_add_f32 {vr(b+p,2)}, {vr(b+p,2)}, v[36:37]")
        A.wait_lg(tk[ft]); rr(ft + 4)
        for p in (0, 2): A(f"v_pk_add_f32 {vr(b+p,2)}, {vr(b+p,2)}, {vr(b+4+p,2)}\nv_pk_add_f32 {vr(b+8+p,2)}, {vr(b+8+p,2)}, {vr(b+12+p,2)}")
        for p in (0, 2): A(f"v_pk_add_f32 {vr(b+p,2)}, {vr(b+p,2)}, {vr(b+8+p,2)}")
        for p in (0, 2): A(f"v_pk_mul_f32 {vr(b+p,2)}, {vr(b+p,2)}, {vr(vZ1+4*ft+p,2)}")
        A(f"v_cvt_pk_bf16_f32 {vr(hp+2*ft)}, {vr(b)}, {vr(b+1)}\nv_cvt_pk_bf16_f32 {vr(hp+1+2*ft)}, {vr(b+2)}, {vr(b+3)}")
        if ft in (1, 3, 5): A.vmem(f"buffer_store_dwordx4 {vr(hp+2*ft-2,4)}, {vL16}, {sWS}, {sT3} offen offset:{1024*(ft>>1)} sc1")
    tokH = A.vmem(f"buffer_store_dwordx2 {vr(hp+12,2)}, v11, {sWS}, {sT1} offen offset:3072 sc1")
    A.stamp(13)
    cm = f"v_cmp_ne_u64 vcc, s[52:53], {vr(pf[0],2)}"
    for k in (pf[0] + 2, pf[1], pf[1] + 2): cm += f"\nv_cmp_ne_u64 s[78:79], s[52:53], {vr(k,2)}\ns_or_b64 vcc, vcc, s[78:79]"
    poll(ldF, cm, A.tok["PF"])
    A("s_barrier")
    A(f"s_sub_u32 {sT0}, 32, {sR}\ns_min_u32 {sT0}, {sT0}, {sR}\ns_and_b32 {sT0}, {sT0}, 15\ns_mul_i32 {sT0}, {sT0}, 139264\ns_add_u32 {sT0}, {sT0}, {F2}")
    A(f"s_lshl_b32 {sT1}, {sC}, 6\ns_lshl_b32 {sT2}, {sW}, 4\ns_add_u32 {sT1}, {sT1}, {sT2}\nv_add_u32 v12, {sT1}, {vI16}\nv_sub_u32 v13, 512, v12\nv_min_u32 v12, v12, v13")
    A(f"s_mov_b32 {sT1}, {8*4352}\nv_lshlrev_b32 v12, 4, v12\nv_mad_u32_u24 v12, {vQ}, {sT1}, v12\nv_add_u32 v12, {sT0}, v12\ns_lshl_b32 {sCU[3]}, {sW}, 10")
    FL = 49152
    A.push([(f"s_add_u32 m0, {sCU[3]}, {FL+k*4096}\ns_mov_b32 {sBG}, {k*4352}", f"buffer_load_dwordx4 v12, {sWS}, {sBG} offen sc1 lds") for k in range(8)], "FL")
    A(f"v_lshrrev_b32 v16, 2, {vLane}\nv_bfe_u32 v17, {vLane}, 3, 2\nv_and_b32 v18, 3, v0\nv_lshlrev_b32 v18, 3, v18\nv_lshl_add_u32 v18, v16, 7, v18")
    for et in range(4): A(f"v_xor_b32 v16, {et}, v17\nv_lshl_add_u32 v{116+et}, v16, 5, v18\nv_add_u32 v{120+et}, 98304, v{116+et}")
    steps = [(Pp, ls) for Pp in range(4) for ls in range(4)] + [(Pp, ls) for Pp in range(4) for ls in (4, 5, 6)]
    tw = {}
    def wread(n):
        for et in range(4):
            for half in (0, 1):
                base, off = (120 + et, n * 4096) if n < 16 else (116 + et, (n - 16) * 4096)
                tw[n] = A.ds(f"ds_read_b64_tr_b16 {ar(((n%16)*4+et)*4+2*half,2)}, v{base} offset:{off+half*2048}")
    A.per = 40
    for n in range(8): wread(n)
    A.flush()
    A.wait_vm(tokH)
    A(f"s_lshl_b32 {sT1}, {sC}, 3\nv_mov_b32 v13, {sT1}")
    masked(1, 0, lambda: A.vmem(f"buffer_store_dwordx2 v[38:39], v13, {sWS}, {sCU[2]} offen sc1"))
    A.stamp(14)
    for ls in (4, 5, 6): A.push(it_wout(ls), "W2" if ls == 6 else None)
    for n in range(8, 16): wread(n)
    A(f"s_mov_b32 {sSEL[0]}, 0x01000504\ns_mov_b32 {sSEL[1]}, 0x05040100\ns_mov_b32 {sT3}, 0x02020202")
    A(f"s_cmp_lt_u32 {sR}, 16\ns_cselect_b32 {sM0}, 0x80000000, 0\ns_mov_b32 {sM1}, 0x8000\ns_or_b32 {sM1}, {sM1}, {sM0}")
    l0, l1 = A.lab("Lr0"), A.lab("Lr16")
    A(f"s_cmp_lg_u32 {sR}, 0\ns_cbranch_scc1 {l0}\ns_mov_b32 {sSEL[0]}, 0x0c0c0504\ns_mov_b32 {sSEL[1]}, 0x0c0c0100\ns_mov_b32 {sT3}, 0x0202\n{l0}:")
    A(f"s_cmp_lg_u32 {sR}, 16\ns_cbranch_scc1 {l1}\ns_mov_b32 {sSEL[0]}, 0x05040c0c\ns_mov_b32 {sSEL[1]}, 0x01000c0c\ns_mov_b32 {sT3}, 0x02020000\ns_mov_b32 {sM1}, 0x80000000\n{l1}:")
    A(f"s_add_u32 {sSEL[2]}, {sSEL[0]}, {sT3}\ns_add_u32 {sSEL[3]}, {sSEL[1]}, {sT3}")
    A(f"s_cmp_ge_u32 {sC}, 4\ns_cselect_b32 {sT3}, 0x80008000, 0\ns_xor_b32 {sM1}, {sM1}, {sT3}")
    CF = 72; OA = 124; FRG = 104
    assert all(not (CF <= q < 140) for q in cf), cf
    for k in range(8):
        for g2 in (0, 1):
            for d in (0, 1):
                A(f"v_perm_b32 {vr(CF+4*k+2*g2+d)}, v{cf[g2]+(k>>1)}, v{cf[2+g2]+(k>>1)}, {sSEL[2*(k&1)+d]}")
    for k in range(32): A(f"v_xor_b32 {vr(CF+k)}, {sM1 if k & 1 else sM0}, {vr(CF+k)}")
    A(f"v_add_u32 v16, {FL}, {vL16}\nv_and_b32 v17, 7, v0\nv_lshlrev_b32 v17, 3, v17")
    A.flush()
    ldH = [f"buffer_load_dwordx2 v[18:19], v17, {sWS}, {sCU[2]} offen sc1"]
    A.wait_named("W2"); A("s_barrier")
    tokPH = A.vmem(ldH[0])
    fr = [104, 108, 112, 40, 44, 48, 52, 56]
    P = Pipe()
    for k in range(8):
        for et in range(4):
            f = fr[(k * 4 + et) % 8]
            P.add([f"ds_read_b128 {vr(f,4)}, v16 offset:{(k*4+et)*1024}"],
                  lambda f=f, k=k, et=et: mfma(vr(OA + 4 * et, 4), vr(f, 4), vr(CF + 4 * k, 4), "0" if k == 0 else None))
    P.run(6)
    A.stamp(15)
    poll(ldH, "v_cmp_ne_u64 vcc, s[52:53], v[18:19]", tokPH)
    A.stamp(16)
    th = {}
    def hload(n):
        if n >= 28: return
        Pp, ls = steps[n]; h = 140 + 4 * n
        if ls in (0, 4): A.raw(f"s_add_u32 {sT0}, {sKB}, {(7*Pp+ls)*1024}")
        io = (ls & 3) * 1024
        if ls == 3:
            A.vmem(f"buffer_load_dwordx2 {vr(h,2)}, v11, {sWS}, {sT0} offen offset:{io} sc1")
            th[n] = A.vmem(f"buffer_load_dwordx2 {vr(h+2,2)}, v11, {sWS}, {sT0} offen offset:{io+512} sc1")
        else:
            th[n] = A.vmem(f"buffer_load_dwordx4 {vr(h,4)}, {vL16}, {sWS}, {sT0} offen offset:{io} sc1")
    HL = 12
    for n in range(HL): hload(n)
    A(f"v_mov_b32 v12, {vG}\nv_mov_b32 v13, {vG}")
    for p in range(0, 16, 2): A(f"v_pk_mul_f32 {vr(OA+p,2)}, {vr(OA+p,2)}, v[12:13]")
    A(f"v_lshlrev_b32 v14, 10, {vTrow}\nv_and_b32 v12, 1, {vQ}\nv_lshl_add_u32 v14, v12, 5, v14\nv_lshrrev_b32 v12, 1, {vQ}\nv_lshl_add_u32 v14, v12, 4, v14\ns_lshl_b32 {sT1}, {sC}, 7")
    for n in range(28):
        A.wait_vm(th[n]); A.wait_lg(tw[n])
        for et in range(4): mfma(vr(OA + 4 * et, 4), ar(((n % 16) * 4 + et) * 4, 4), vr(140 + 4 * n, 4))
        hload(n + HL)
        if n + 16 < 28: wread(n + 16)
    A("s_nop 7")
    for et in range(4):
        A(f"v_cvt_pk_bf16_f32 v{104+2*et}, {vr(OA+4*et)}, {vr(OA+4*et+1)}\nv_cvt_pk_bf16_f32 v{105+2*et}, {vr(OA+4*et+2)}, {vr(OA+4*et+3)}")
    A("s_nop 1")
    for pr in (0, 1): A(f"v_permlane16_swap_b32 v{104+4*pr}, v{106+4*pr}\nv_permlane16_swap_b32 v{105+4*pr}, v{107+4*pr}")
    A("s_nop 1")
    for pr in (0, 1): A.vmem(f"buffer_store_dwordx4 {vr(104+4*pr,4)}, v14, {sOUT}, {sT1} offen offset:{64*pr}")
    A.stamp(17)
    lb = A.lab("Lnobump")
    A(f"s_or_b32 {sT0}, s2, {sW}\ns_cmp_lg_u32 {sT0}, 0\ns_cbranch_scc1 {lb}")
    A(f"v_mov_b32 v11, {EPOCH}\ns_mov_b64 exec, 1\nbuffer_store_dwordx2 v[38:39], v11, {sWS}, 0 offen sc1\ns_mov_b64 exec, -1\n{lb}:")
    if OPT["prof"]:
        A("s_memrealtime s[100:101]\ns_waitcnt lgkmcnt(0)\ns_mov_b32 s99, s100")
        A(f"s_lshl_b32 {sT0}, s2, 2\ns_add_u32 {sT0}, {sT0}, {sW}\ns_lshl_b32 {sT0}, {sT0}, 7\ns_add_u32 {sT0}, {sT0}, {TS}\nv_mov_b32 v11, 0\ns_mov_b64 exec, 1")
        for k in range(20): A(f"v_mov_b32 v12, s{80+k}\nbuffer_store_dword v12, v11, {sWS}, {sT0} offen offset:{4*k}\ns_nop 1")

prologue()
A(f"s_cmp_eq_u32 {sC}, 7\ns_cbranch_scc1 Lpref")
st = (list(A.vm), list(A.lg))
front_main()
assert not A.bg
A("Ljoin:")
st_main = (list(A.vm), list(A.lg))
back()
A("s_branch Lend")
A("Lpref:")
A.vm, A.lg = st; A.tok = {}; A.per = OPT["per"]
front_pref()
assert not A.bg
A("s_waitcnt vmcnt(0) lgkmcnt(0)\ns_branch Ljoin")
A("Lend:\ns_endpgm")

hdr = open("cdna_kernels/%s.s.ref" % NAME).read().split("; Override launch")[0]
out = hdr + "; @launch grid=(256,1,1) block=(256,1,1) lds=%d\n" % LDS_SIZE
out += '.amdgcn_target "amdgcn-amd-amdhsa--gfx950"\n.text\n.globl %s_kernel\n.p2align 8\n.type %s_kernel,@function\n%s_kernel:\n' % (NAME, NAME, NAME)
def addnt(l):
    t = l.strip()
    if OPT["nt"] and (t.startswith("buffer_load") or t.startswith("global_load")) and sWS not in t:
        return l[:-4] + " nt lds" if t.endswith(" lds") else l + " nt"
    return l
out += "\n".join(addnt(l) for l in A.L) + "\n"
out += """.section .rodata,"a"
.p2align 6
.amdhsa_kernel %s_kernel
  .amdhsa_next_free_vgpr 512
  .amdhsa_next_free_sgpr 102
  .amdhsa_accum_offset 256
  .amdhsa_group_segment_fixed_size 0
  .amdhsa_kernarg_size 112
  .amdhsa_user_sgpr_count 2
  .amdhsa_user_sgpr_kernarg_segment_ptr 1
  .amdhsa_system_sgpr_workgroup_id_x 1
.end_amdhsa_kernel
""" % NAME
open(sys.argv[1], "w").write(out)
```

```python
import sys, struct
from collections import deque
NAME = "gated_mix__spectral_fnet__mixer_gmlp__prompt"
OPT = dict(hl=10, p2st=0, lead=1, rot2=0, fakez=0, zsc=1, strip=0, ahead=0, fb0=1, sleep=4, npf=60, nt=0, ntc=0, rota=1, rotc=1, prof=0, xmap=2, per=56, pera=40, look=6)
for a in sys.argv[2:]:
    k, v = a.split("="); OPT[k] = int(v)

def fbits(x): return "0x%08x" % struct.unpack("<I", struct.pack("<f", x))[0]
def cost(ln):
    op = ln.split()[0]
    if op.startswith("v_mfma"): return 16
    if op in ("v_exp_f32", "v_rcp_f32", "v_rsq_f32"): return 8
    if op == "s_nop": return 4 * (int(ln.split()[1]) + 1)
    return 4

class Asm:
    def __init__(s):
        s.L = []; s.vm = []; s.lg = []; s.n = 0; s.nlab = 0; s.nst = 0
        s.bg = deque(); s.acc = 0; s.lock = 0; s.tok = {}; s.per = OPT["per"]
    def raw(s, t):
        for ln in t.split("\n"):
            ln = ln.strip()
            if not ln: continue
            if ln.endswith(":"): s.L.append(ln)
            else: s.L.append("    " + ln); s.acc += cost(ln)
    def __call__(s, t):
        s.raw(t); s.tick()
    def tick(s):
        if s.lock or not s.bg:
            if not s.bg: s.acc = min(s.acc, s.per)
            return
        if s.acc >= s.per: s.pop()
    def pop(s):
        pre, ins, name = s.bg.popleft()
        s.lock += 1
        if pre: s.raw(pre)
        t = s.vmem(ins)
        s.lock -= 1
        if name: s.tok[name] = t
        s.acc = 0
    def push(s, items, name=None):
        for i, (pre, ins) in enumerate(items): s.bg.append((pre, ins, name if i == len(items) - 1 else None))
    def front(s, items, name):
        while s.bg and "m0" not in s.bg[0][0]: s.pop()
        new = [(p, i, name if k == len(items) - 1 else None) for k, (p, i) in enumerate(items)]
        s.bg.extendleft(reversed(new))
    def flush(s, name=None):
        while s.bg and (name is None or name not in s.tok): s.pop()
    def wait_named(s, name):
        s.flush(name)
        t = s.tok[name]
        while s.bg and t in s.vm and len(s.vm) - 1 - s.vm.index(t) < OPT["ahead"]: s.pop()
        s.wait_vm(t)
    def c(s, t): s.L.append("    ; " + t)
    def lab(s, p="L"):
        s.nlab += 1; return "%s%d" % (p, s.nlab)
    def vmem(s, t):
        if len(s.vm) >= 62: s.wait_vm(s.vm[len(s.vm) - 62])
        s.raw(t); s.n += 1; s.vm.append(s.n); return s.n
    def ds(s, t):
        if len(s.lg) >= 15: s.wait_lg(s.lg[len(s.lg) - 15])
        s.raw(t); s.n += 1; s.lg.append(s.n); n = s.n; s.tick(); return n
    def wait_vm(s, tok):
        if tok not in s.vm: return
        i = s.vm.index(tok); s.raw("s_waitcnt vmcnt(%d)" % (len(s.vm) - 1 - i)); s.vm = s.vm[i + 1:]
    def wait_lg(s, tok):
        if tok not in s.lg: return
        i = s.lg.index(tok); s.raw("s_waitcnt lgkmcnt(%d)" % (len(s.lg) - 1 - i)); s.lg = s.lg[i + 1:]
    def wait_all_lg(s):
        if s.lg: s.raw("s_waitcnt lgkmcnt(0)")
        s.lg = []
    def stamp(s, k):
        if not OPT["prof"]: return
        s.raw("s_memtime s[78:79]\ns_waitcnt lgkmcnt(0)\ns_mov_b32 s%d, s78" % (80 + k)); s.lg = []; s.nst = max(s.nst, k + 1)
        assert k < 18
A = Asm()
def vr(b, n=1): return "v%d" % b if n == 1 else "v[%d:%d]" % (b, b + n - 1)
def ar(b, n=1): return "a%d" % b if n == 1 else "a[%d:%d]" % (b, b + n - 1)
def mfma(d, a, b, c=None): A("v_mfma_f32_16x16x32_bf16 %s, %s, %s, %s" % (d, a, b, d if c is None else c))

EPOCH, FLAGZ, FLAGF, FLAGH, STAT = 0x0, 0x1000, 0x3000, 0x4000, 0x10000
Z2N, HB, F2, TS, WS_SIZE = 0x100000, 0x500000, 0x900000, 0xC00000, 0x1000000
SL = [16384 * i for i in range(10)]
PR = [32768 * i for i in range(5)]
GATE = PR[0] + 28672
SCR = SL[8]; Z1B = SL[9]
LDS_SIZE = 163840
sX, sWIN, sWSP, sWOUT = ["s[%d:%d]" % (b, b + 3) for b in range(4, 20, 4)]
sAX = ["s20", "s21", "s22", "s23"]; sAW = ["s24", "s25", "s26", "s27"]
sWS, sOUT, sBSP, sGW, sTMP = ["s[%d:%d]" % (b, b + 3) for b in range(28, 48, 4)]
sROT, sBG2, sET, sSH = "s48", "s49", "s50", "s51"
sR, sC, sW = "s54", "s55", "s56"
sW2048, sW7168, sW8192 = "s57", "s58", "s59"
sCU = ["s60", "s61", "s62", "s63"]
sCA = "s95"
sSEL = ["s64", "s65"]; sM0, sM1 = "s68", "s69"
sT0, sT1, sT2, sT3, sSPIN, sKB = "s70", "s71", "s72", "s73", "s74", "s75"
sGC = "s[76:77]"; sBG = "s3"
vLane, vI16, vQ, vXrd0, vXrd1, vWrd, vL16, vTrow, vB, vG = ["v%d" % i for i in range(1, 11)]
vWoff = list(range(20, 27)); vXA = [27, 28]; vXR = [29, 30]; vWrd2 = "v31"; vCb = [32, 33]; vCo = [34, 35]; vOMG = "v36"
vR32 = 40; vWD = 48; vZ = 80; vAB = 112; vGA = 176; vFR = 180
vWA = list(range(112, 120)); vTA = list(range(120, 128))


def masked(mask_lo, mask_hi, fn):
    A.lock += 1
    A.raw(f"s_mov_b32 exec_lo, {mask_lo}\ns_mov_b32 exec_hi, {mask_hi}")
    r = fn()
    A.raw("s_mov_b64 exec, -1")
    A.lock -= 1
    return r

def poll(loads, cmps, tok=None, skip7=False):
    l, d = A.lab("Lspin"), A.lab("Ldone")
    if tok is None:
        for t in loads: tok = A.vmem(t)
    A.lock += 1
    A.wait_vm(tok)
    if skip7: A.raw(f"s_cmp_eq_u32 {sCA}, 7\ns_cbranch_scc1 {d}")
    A.raw(cmps); A.raw(f"s_cbranch_vccz {d}\ns_mov_b32 {sSPIN}, 0x40000\n{l}:\ns_sleep {OPT['sleep']}")
    for t in loads: A.raw(t)
    A.raw("s_waitcnt vmcnt(0)"); A.raw(cmps)
    A.raw(f"s_cbranch_vccz {d}\ns_sub_u32 {sSPIN}, {sSPIN}, 1\ns_cmp_lg_u32 {sSPIN}, 0\ns_cbranch_scc1 {l}\n{d}:")
    A.lock -= 1
def tagcmp(regs):
    cm = f"v_cmp_ne_u64 vcc, s[52:53], {vr(regs[0],2)}"
    for k in regs[1:]: cm += f"\nv_cmp_ne_u64 s[78:79], s[52:53], {vr(k,2)}\ns_or_b64 vcc, vcc, s[78:79]"
    return cm

def gelu(base, n, t):
    for p0 in range(0, n, 4):
        ps = (p0, p0 + 2)
        for k, p in enumerate(ps): A(f"v_pk_mul_f32 {vr(t+2*k,2)}, {vr(base+p,2)}, {vr(base+p,2)}")
        for k, p in enumerate(ps): A(f"v_pk_fma_f32 {vr(t+2*k,2)}, {vr(t+2*k,2)}, {sGC}, {sGC} op_sel:[0,0,1] op_sel_hi:[1,0,1]")
        for k, p in enumerate(ps): A(f"v_pk_mul_f32 {vr(t+2*k,2)}, {vr(t+2*k,2)}, {vr(base+p,2)}")
        for k in range(4): A(f"v_exp_f32 {vr(t+k)}, {vr(t+k)}")
        for k, p in enumerate(ps): A(f"v_pk_add_f32 {vr(t+2*k,2)}, {vr(t+2*k,2)}, 1.0 op_sel_hi:[1,0]")
        for k in range(4): A(f"v_rcp_f32 {vr(t+k)}, {vr(t+k)}")
        for k, p in enumerate(ps): A(f"v_pk_mul_f32 {vr(base+p,2)}, {vr(base+p,2)}, {vr(t+2*k,2)}")

def xreduce(ops, regs, tmps):
    for op in ops:
        for r, t in zip(regs, tmps): A(f"v_mov_b32 {vr(t)}, {vr(r)}")
        A("s_nop 1")
        for r, t in zip(regs, tmps): A(f"{op} {vr(t)}, {vr(r)}")
        A("s_nop 1")
        for r, t in zip(regs, tmps): A(f"v_add_f32 {vr(r)}, {vr(r)}, {vr(t)}")
P16, P32 = "v_permlane16_swap_b32", "v_permlane32_swap_b32"

def gen_cos(dst, nd, freq, base, kfun):
    for i in range(0, nd, 2):
        ks = [kfun(2 * i + z) for z in range(4)]
        for z in range(4): A(f"v_fmamk_f32 v{16+z}, {freq}, {fbits(float(ks[z]))}, {base}")
        for z in range(4): A(f"v_fract_f32 v{16+z}, v{16+z}")
        for z in range(4): A(f"v_cos_f32 v{16+z}, v{16+z}")
        A(f"v_cvt_pk_bf16_f32 {vr(dst(i))}, v16, v17\nv_cvt_pk_bf16_f32 {vr(dst(i+1))}, v18, v19")

def it_xa(G):
    return [(f"s_add_u32 m0, {sW2048}, {SL[6+G] + sub*8192 - 128*sub}\ns_nop 0" if h == 0 else "",
             f"buffer_load_dwordx4 {vr(vXA[h])}, {sX}, {sAX[G]} offen offset:{1024*h+128*sub} lds") for sub in (0, 1) for h in (0, 1)]
def it_xr(dst, G):
    return [(f"s_add_u32 m0, {sW2048}, {dst + sub*8192 - 128*(2*G+sub)}\ns_nop 0" if h == 0 else "",
             f"buffer_load_dwordx4 {vr(vXR[h])}, {sX}, 0 offen offset:{1024*h+128*(2*G+sub)} lds") for sub in (0, 1) for h in (0, 1)]
def it_w1(dst, G):
    return [(f"s_add_u32 m0, {sW7168}, {dst + (4096 if i else 0)}\ns_mov_b32 {sBG}, {G*458752}" if i in (0, 4) else "",
             f"buffer_load_dwordx4 {vr(vWoff[i])}, {sWIN}, {sBG} offen offset:{1024*(i&3)} lds") for i in range(7)]
def it_w2(dst, G):
    return [(f"s_add_u32 m0, {sW8192}, {dst + (4096 if i else 0)}\ns_nop 0" if i in (0, 4) else "",
             f"buffer_load_dwordx4 {vr(vWA[i])}, {sWIN}, {sAW[G]} offen offset:{1024*(i&3)} lds") for i in range(8)]
def it_c(j, dst):
    it = []
    for u in range(4):
        for h in (0, 1):
            pre = ""
            if u == 0 and h == 0:
                pre = f"s_bfe_u32 {sBG2}, {sROT}, {(4<<16)|(4*j)}\ns_lshl_b32 {sBG2}, {sBG2}, 7\nv_or_b32 {vr(vCo[0])}, {sBG2}, {vr(vCb[0])}\nv_or_b32 {vr(vCo[1])}, {sBG2}, {vr(vCb[1])}\n"
            if h == 0: pre += f"s_add_u32 m0, {sW8192}, {dst + u*2048}\ns_nop 0"
            it.append((pre, f"buffer_load_dwordx4 {vr(vCo[h])}, {sWSP}, {sCU[u]} offen offset:{1024*h}{' nt' if j < OPT['ntc'] else ''} lds"))
    return it
IT_GATE = [(f"s_mov_b32 m0, {GATE}\ns_nop 0", f"buffer_load_dwordx4 {vL16}, {sGW}, 0 offen lds"), ("", f"buffer_load_ushort {vB}, v246, {sBSP}, 0 offen")]

class Pipe:
    def __init__(s): s.items = []; s.hooks = {}; s.post = {}
    def add(s, reads, fn): s.items.append((reads, fn))
    def hook(s, fn): s.hooks[len(s.items)] = fn
    def after(s, fn): s.post[len(s.items) - 1] = fn
    def run(s, look):
        toks = {}
        def issue(i):
            if i < len(s.items):
                if i in s.hooks: s.hooks[i]()
                toks[i] = [A.ds(t) for t in s.items[i][0]]
        for i in range(look): issue(i)
        for i, (reads, fn) in enumerate(s.items):
            if toks[i]: A.wait_lg(toks[i][-1])
            fn()
            if i in s.post: s.post[i]()
            issue(i + look)

def gbar(name, flush=True):
    A.wait_all_lg()
    if flush: A.flush()
    if name: A.wait_named(name)
    A("s_barrier")

NF = 8
cnt = [0]
XB = [SL[9], SL[8], SL[9], SL[8]]; WB = [PR[2], PR[0], PR[2], PR[0]]
CS = [PR[1], PR[3]] * 4
def stageB_setup():
    A(f"s_add_u32 {sT0}, {sW2048}, {SL[6]}\nv_add_u32 v13, {sT0}, {vXrd0}\nv_add_u32 v14, {sT0}, {vXrd1}\nv_xor_b32 v15, 2048, v13\nv_xor_b32 v16, 2048, v14")
    A(f"v_lshlrev_b32 v12, 4, {vQ}\nv_add_u32 v12, {GATE}, v12")
def stageB(P, G):
    xo = XB[G] - SL[6]
    wreg, wo = (vWrd, WB[G]) if WB[G] < 65536 else (vWrd2, WB[G] - 65536)
    for kk in range(4):
        par = kk & 1
        fb = vFR + 32 + 12 * par
        so = xo + (kk >> 1) * 8192
        z0 = "0" if (G == 0 and kk == 0) else None
        a0 = "0" if kk == 0 else None
        def f1(fb=fb, z0=z0, a0=a0, kk=kk):
            mfma(vr(vGA, 4), vr(fb + 8, 4), vr(fb, 4), z0)
            for ty in (0, 1): mfma(vr(vAB + 16 * G + 8 * ty, 4), vr(fb, 4), vr(vWD + 8 * kk + 4 * ty, 4), a0)
        P.add([f"ds_read_b128 {vr(fb,4)}, v{13+par} offset:{so}", f"ds_read_b128 {vr(fb+8,4)}, v12 offset:{(4*G+kk)*64}"], f1)
        def f2(fb=fb, a0=a0, kk=kk):
            for ty in (0, 1): mfma(vr(vAB + 16 * G + 8 * ty + 4, 4), vr(fb + 4, 4), vr(vWD + 8 * kk + 4 * ty, 4), a0)
        P.add([f"ds_read_b128 {vr(fb+4,4)}, v{15+par} offset:{so}"], f2)
        for i in range(4):
            wf = vFR + 4 * (cnt[0] % NF); cnt[0] += 1
            reads = [f"ds_read_b64_tr_b16 {vr(wf+2*half,2)}, {wreg} offset:{wo + kk*7168 + i*32 + half*3584}" for half in (0, 1)]
            def f3(wf=wf, fb=fb, i=i, z0=z0):
                for xt in (0, 1): mfma(vr(vZ + 16 * xt + 4 * i, 4), vr(wf, 4), vr(fb + 4 * xt, 4), z0)
            P.add(reads, f3)

def c_read(j):
    dst = CS[j]
    A.wait_named("C%d" % j)
    for par in (0, 1):
        for u in range(4):
            A.ds(f"ds_read_b128 {ar(((2*j+par)*4+u)*4,4)}, v{240+2*(dst>>16)+par} offset:{(dst&0xffff)+u*2048}")

def b_epilogue():
    t = vFR
    A(f"v_and_b32 v15, 1, v0\nv_and_b32 v16, 2, v0\nv_sub_u32 v17, 1, v16\nv_sub_u32 v18, 1, v15\nv_mul_i32_i24 v12, v17, v18\nv_mul_i32_i24 v13, v17, v15\nv_sub_u32 v14, v18, v15")
    A("v_cvt_f32_i32 v12, v12\nv_cvt_f32_i32 v13, v13\nv_cvt_f32_i32 v14, v14\ns_nop 1")
    for p in range(0, 8, 2):
        a = [vr(vAB + 16 * m + p, 2) for m in range(4)]; b = [vr(vAB + 16 * m + 8 + p, 2) for m in range(4)]
        A(f"v_pk_fma_f32 {a[0]}, {a[2]}, v[14:15], {a[0]} op_sel_hi:[1,0,1]\nv_pk_fma_f32 {b[0]}, {b[2]}, v[14:15], {b[0]} op_sel_hi:[1,0,1]")
        A(f"v_pk_add_f32 {a[2]}, {a[1]}, {a[3]}\nv_pk_add_f32 {b[2]}, {b[1]}, {b[3]}")
        A(f"v_pk_add_f32 {a[1]}, {a[1]}, {a[3]} neg_lo:[0,1] neg_hi:[0,1]\nv_pk_add_f32 {b[1]}, {b[1]}, {b[3]} neg_lo:[0,1] neg_hi:[0,1]")
        A(f"v_pk_fma_f32 {a[0]}, {a[2]}, v[12:13], {a[0]} op_sel_hi:[1,0,1]\nv_pk_fma_f32 {b[0]}, {b[2]}, v[12:13], {b[0]} op_sel_hi:[1,0,1]")
        A(f"v_pk_fma_f32 {a[0]}, {b[1]}, v[12:13], {a[0]} op_sel:[0,1,0] op_sel_hi:[1,1,1]")
        A(f"v_pk_fma_f32 {b[0]}, {a[1]}, v[12:13], {b[0]} op_sel:[0,1,0] op_sel_hi:[1,1,1] neg_lo:[1,0,0] neg_hi:[1,0,0]")
    for ty in (0, 1):
        for k in range(4): A(f"v_cvt_pk_bf16_f32 {vr(t+4*ty+k)}, {vr(vAB+8*ty+2*k)}, {vr(vAB+8*ty+2*k+1)}")
    A("s_nop 1")
    D = vAB + 16
    for ty in (0, 1):
        for J in (0, 1): mfma(vr(D + 8 * ty + 4 * J, 4), vr(vR32 + 4 * J, 4), vr(t + 4 * ty, 4), "0")
    A(f"v_mul_f32 v11, {fbits(1.4426950408889634)}, {vr(vGA)}\nv_exp_f32 v12, v11\nv_exp_f32 v13, -v11\ns_nop 0\nv_add_f32 v12, 1.0, v12\nv_add_f32 v13, 1.0, v13\nv_rcp_f32 {vOMG}, v12\nv_rcp_f32 {vG}, v13")
    A(f"s_mul_i32 {sT0}, {sR}, 4352\ns_lshl_b32 {sT1}, {sC}, 9\ns_add_u32 {sT0}, {sT0}, {sT1}\ns_lshl_b32 {sT2}, {sET}, 8\ns_add_u32 {sT0}, {sT0}, {sT2}")
    A(f"s_lshl_b32 {sT2}, {sSH}, 3\ns_add_u32 {sT0}, {sT0}, {sT2}\ns_add_u32 {sT0}, {sT0}, {F2}\ns_mov_b32 {sT3}, {2*139264}")
    A(f"v_lshlrev_b32 v14, 4, {vI16}\nv_mad_u32_u24 v14, {vQ}, {sT3}, v14\nv_add_u32 v14, {sT0}, v14")
    for J in (0, 1):
        for z in (0, 1):
            u = t + 8 + 2 * (2 * J + z)
            A(f"v_cvt_pk_bf16_f32 {vr(u)}, {vr(D+4*J+2*z)}, {vr(D+4*J+2*z+1)}\nv_cvt_pk_bf16_f32 {vr(u+1)}, {vr(D+8+4*J+2*z)}, {vr(D+8+4*J+2*z+1)}")
    lsk = A.lab("Lnosp")
    A.lock += 1
    A(f"s_add_u32 {sT1}, {sET}, {sC}\ns_cmp_lg_u32 {sT1}, 0\ns_cbranch_scc1 {lsk}")
    A(f"s_mov_b32 exec_lo, 0x00010001\ns_mov_b32 exec_hi, 0x00010001\nv_mov_b32 {vr(t+17)}, 0")
    for k in range(4):
        A(f"v_mov_b32 {vr(t+16)}, {vr(t+9+2*k)}\nv_mov_b32 {vr(t+9+2*k)}, 0\ns_mov_b32 {sT1}, {(8*(k>>1)+(k&1))*139264+4096}")
        A(f"buffer_store_dwordx2 {vr(t+16,2)}, v14, {sWS}, {sT1} offen sc1\ns_nop 1")
    A(f"s_mov_b64 exec, -1\n{lsk}:")
    A.lock -= 1
    for k in range(4):
        A(f"s_mov_b32 {sT1}, {(8*(k>>1)+(k&1))*139264}")
        tokF = A.vmem(f"buffer_store_dwordx2 {vr(t+8+2*k,2)}, v14, {sWS}, {sT1} offen sc1")
    gelu(vZ, 32, vFR + 20)
    A(f"s_lshl_b32 {sT0}, {sW}, 12\ns_add_u32 {sT0}, {sT0}, {Z1B}\nv_lshlrev_b32 v12, 3, {vLane}\nv_add_u32 v17, {sT0}, v12\ns_lshl_b32 {sT0}, {sET}, 11\nv_add_u32 v12, {sT0}, v17\nv_xor_b32 v13, 4096, v12")
    for xt in (0, 1):
        for i in range(4):
            b = vZ + 16 * xt + 4 * i
            A(f"v_cvt_pk_bf16_f32 {vr(b)}, {vr(b)}, {vr(b+1)}\nv_cvt_pk_bf16_f32 {vr(b+1)}, {vr(b+2)}, {vr(b+3)}")
            A.ds(f"ds_write_b64 v{12+xt}, {vr(b,2)} offset:{i*512}")
    A(f"v_lshlrev_b32 {vB}, 16, {vB}")
    return tokF
Z1P = 100
def flagF(tokF):
    A.wait_all_lg(); A.flush(); A.wait_vm(tokF); A("s_barrier")
    A(f"s_lshl_b32 {sT0}, {sC}, 8\ns_lshl_b32 {sT1}, {sR}, 3\ns_add_u32 {sT0}, {sT0}, {sT1}\ns_add_u32 {sT0}, {sT0}, {FLAGF}\nv_mov_b32 v11, 0")
    masked(1, 0, lambda: A.vmem(f"buffer_store_dwordx2 v[38:39], v11, {sWS}, {sT0} offen sc1"))
    for ft in range(7): A.ds(f"ds_read_b64 {vr(Z1P+2*ft,2)}, v17 offset:{ft*512}")
LDZ = [f"buffer_load_dwordx2 v[18:19], v17, {sWS}, {sT3} offen sc1"]
def flagZ_issue():
    A(f"s_mul_i32 {sT0}, {sC}, 7\ns_add_u32 {sT1}, {sT0}, 6\ns_lshr_b32 {sT0}, {sT0}, 3\ns_lshr_b32 {sT1}, {sT1}, 3\ns_sub_u32 {sT1}, {sT1}, {sT0}\ns_lshl_b32 {sT1}, {sT1}, 10")
    A(f"s_lshl_b32 {sT0}, {sT0}, 10\ns_lshl_b32 {sT2}, {sW}, 8\ns_add_u32 {sT0}, {sT0}, {sT2}\ns_add_u32 {sT3}, {sT0}, {FLAGZ}")
    A(f"v_and_b32 v17, 31, v0\nv_lshlrev_b32 v17, 3, v17\nv_lshrrev_b32 v11, 5, {vLane}\nv_mad_u32_u24 v17, v11, {sT1}, v17")
    return A.vmem(LDZ[0])

def srd(b, src, size): A(f"s_mov_b32 s{b}, s{src}\ns_mov_b32 s{b+1}, s{src+1}\ns_mov_b32 s{b+2}, {size}\ns_mov_b32 s{b+3}, 0x20000")

def prologue():
    A("s_cmp_ge_u32 s2, 256\ns_cbranch_scc1 Lend")
    A("s_load_dwordx16 s[60:75], s[0:1], 0\ns_load_dwordx8 s[80:87], s[0:1], 64\ns_load_dwordx4 s[88:91], s[0:1], 96")
    if OPT["prof"]: A("s_memrealtime s[98:99]\ns_memtime s[96:97]")
    A(f"s_getpc_b64 s[44:45]\ns_mov_b32 s46, Lend-{NAME}_kernel\ns_mov_b32 s47, 0x20000")
    A("s_lshr_b32 s3, s2, 3\ns_mul_i32 s76, s3, 1536\nv_and_b32 v11, 15, v0\nv_lshlrev_b32 v11, 7, v11\nv_add_u32 v11, s76, v11")
    A.vmem(f"buffer_load_dword v12, v11, {sTMP}, 0 offen")
    A("s_and_b32 s76, s2, 7")
    if OPT["xmap"] == 1:
        A(f"s_lshr_b32 {sR}, s3, 3\ns_lshl_b32 s77, s76, 2\ns_add_u32 {sR}, {sR}, s77\ns_and_b32 {sC}, s3, 7")
        A(f"s_mov_b32 s78, 0x76543210\ns_mov_b32 s79, s78\ns_lshl_b32 s77, {sC}, 2\ns_lshr_b64 s[78:79], s[78:79], s77\ns_mov_b32 {sROT}, s78")
    else:
        A(f"s_lshr_b32 {sR}, s76, 1\ns_lshl_b32 {sR}, {sR}, 3\ns_lshr_b32 s77, s3, 2\ns_add_u32 {sR}, {sR}, s77")
        A(f"s_and_b32 {sC}, s76, 1\ns_lshl_b32 {sC}, {sC}, 2\ns_and_b32 s77, s3, 3\ns_add_u32 {sC}, {sC}, s77")
        A(f"s_lshl_b32 s77, s77, 2\ns_lshr_b32 {sROT}, 0x64206420, s77\ns_and_b32 {sROT}, {sROT}, 0xffff\ns_or_b32 {sROT}, {sROT}, 0x64200000\ns_bitcmp1_b32 s76, 0\ns_cselect_b32 s77, 0, 16\ns_lshl_b32 s77, 0x1111, s77\ns_or_b32 {sROT}, {sROT}, s77")
    if OPT["lead"]:
        A(f"s_and_b32 s77, {sR}, 7\ns_cmp_eq_u32 {sC}, 7\ns_cselect_b32 {sCA}, s77, {sC}\ns_cmp_eq_u32 {sC}, s77\ns_cselect_b32 {sCA}, 7, {sCA}")
    else: A(f"s_mov_b32 {sCA}, {sC}")
    if not OPT["rotc"]: A(f"s_mov_b32 {sROT}, 0x76543210")
    A(f"v_lshrrev_b32 v11, 6, v0\nv_and_b32 {vLane}, 63, v0\nv_readfirstlane_b32 {sW}, v11")
    A(f"v_and_b32 {vI16}, 15, v0\nv_lshrrev_b32 {vQ}, 4, {vLane}\nv_lshlrev_b32 {vL16}, 4, {vLane}")
    A(f"s_lshl_b32 {sW2048}, {sW}, 11\ns_lshl_b32 {sW8192}, {sW}, 13\ns_add_u32 s76, {sR}, {sC}")
    if not OPT["rota"]: A("s_mov_b32 s76, 0")
    for G in range(4):
        A(f"s_add_u32 s77, s76, {G}\ns_and_b32 s77, s77, 3\ns_lshl_b32 {sAX[G]}, s77, 8\ns_mul_i32 {sAW[G]}, s77, 458752")
    A(f"v_lshrrev_b32 v11, 3, {vLane}\nv_and_b32 v15, 7, v0\nv_lshrrev_b32 v16, 1, v11")
    A("v_xor_b32 v13, v15, v16\nv_lshlrev_b32 v13, 4, v13\nv_xor_b32 v14, 64, v13")
    A(f"s_lshl_b32 s76, {sR}, 16\ns_lshl_b32 s77, {sW}, 14\ns_add_u32 s76, s76, s77\nv_lshl_add_u32 v15, v11, 10, s76")
    A(f"v_add_u32 {vr(vXA[0])}, v15, v13\nv_add_u32 {vr(vXA[1])}, v15, v14\nv_add_u32 {vr(vXA[1])}, 7168, {vr(vXA[1])}")
    A(f"s_lshl_b32 s76, {sCA}, 8\ns_mul_i32 s77, {sW}, 114688\ns_add_u32 s76, s76, s77\ns_add_u32 s76, s76, 1792\ns_movk_i32 s77, 3584")
    A(f"v_lshlrev_b32 v15, 1, {vQ}\nv_xor_b32 v15, v15, {vI16}\nv_lshlrev_b32 v15, 4, v15\nv_mad_u32_u24 v16, {vQ}, s77, v15\nv_add_u32 v16, s76, v16\nv_xor_b32 v17, 128, v16")
    for i in range(8):
        A(f"v_add_u32 {vr(vWA[i])}, {(8*(i&3)+4*(i>>2))*3584 - 1024*(i&3)}, v{16+(i&1)}")
    A("s_waitcnt lgkmcnt(0)")
    srd(4, 60, 2097152); srd(8, 72, 1835008)
    A(f"s_load_dwordx2 s[92:93], s[90:91], {EPOCH}")

def setup2():
    srd(12, 74, 8388608); srd(16, 82, 917504)
    if OPT['fakez']: srd(44, 62, 8388608)
    srd(28, 90, WS_SIZE); srd(32, 86, 2097152); srd(36, 80, 4096); srd(40, 84, 1024)
    A(f"s_mul_i32 {sW7168}, {sW}, 7168\ns_and_b32 {sET}, {sW}, 1\ns_lshr_b32 {sSH}, {sW}, 1")
    A(f"s_mul_i32 s76, {sC}, 224\ns_mul_i32 s77, {sW}, 114688\ns_add_u32 s76, s76, s77\ns_movk_i32 s77, 3584\ns_movk_i32 s78, 4682")
    for i in range(7):
        A(f"v_add_u32 v15, {64*i}, {vLane}\nv_mul_u32_u24 v16, s78, v15\nv_lshrrev_b32 v16, 16, v16\nv_mul_u32_u24 v17, 14, v16\nv_sub_u32 v17, v15, v17")
        A("v_and_b32 v18, 12, v16\nv_lshlrev_b32 v18, 1, v18\nv_and_or_b32 v18, v16, 3, v18\nv_lshrrev_b32 v16, 4, v16\nv_lshl_add_u32 v18, v16, 2, v18")
        A(f"v_lshl_add_u32 v17, v17, 4, s76\nv_mad_u32_u24 {vr(vWoff[i])}, v18, s77, v17")
        if i & 3: A(f"v_subrev_u32 {vr(vWoff[i])}, {1024*(i&3)}, {vr(vWoff[i])}")
    A("v_and_b32 v17, 4, v11\nv_lshlrev_b32 v17, 1, v17\nv_and_or_b32 v17, v11, 3, v17")
    A(f"s_lshl_b32 s76, {sET}, 8\ns_lshl_b32 s77, {sSH}, 5\ns_add_u32 s76, s76, s77\ns_add_u32 s76, s76, {sR}")
    A("s_lshl_b32 s77, s76, 10\nv_lshl_add_u32 v15, v17, 16, s77")
    A(f"v_add_u32 {vr(vXR[0])}, v15, v13\nv_add_u32 {vr(vXR[1])}, v15, v14\nv_add_u32 {vr(vXR[1])}, {1024*1024-1024}, {vr(vXR[1])}")
    A(f"v_and_b32 v15, 12, {vI16}\nv_lshlrev_b32 v15, 1, v15\nv_and_or_b32 v15, {vI16}, 3, v15\nv_lshl_add_u32 {vTrow}, v15, 6, s76")
    A(f"s_lshl_b32 s77, {sR}, 12\ns_lshl_b32 s78, {sW}, 10\ns_add_u32 s77, s77, s78\nv_lshl_add_u32 v15, v17, 18, s77")
    A(f"v_add_u32 {vr(vCb[0])}, v15, v13\nv_add_u32 {vr(vCb[1])}, v15, v14\nv_add_u32 {vr(vCb[1])}, {1024*4096-1024}, {vr(vCb[1])}")
    for u in range(4):
        A(f"s_add_u32 s77, {sW}, {u}\ns_and_b32 s78, s77, 1\ns_lshl_b32 s78, s78, 20\ns_and_b32 s77, s77, 2\ns_lshl_b32 s77, s77, 16\ns_add_u32 {sCU[u]}, s77, s78")
    A(f"v_lshlrev_b32 v246, 1, {vTrow}")
    A(f"v_lshrrev_b32 v15, 1, {vI16}\nv_xor_b32 v15, v15, {vQ}\nv_lshlrev_b32 v15, 4, v15\nv_lshl_add_u32 {vXrd0}, {vI16}, 7, v15\nv_xor_b32 {vXrd1}, 64, {vXrd0}")
    A(f"v_lshrrev_b32 v15, 2, {vLane}\nv_mul_u32_u24 v15, 224, v15\nv_and_b32 v16, 3, v0\nv_lshl_add_u32 v15, v16, 3, v15\ns_lshl_b32 s76, {sET}, 7\nv_add_u32 {vWrd}, s76, v15\nv_add_u32 {vWrd2}, 0x10000, {vWrd}")
    A(f"v_add_u32 v240, {sW8192}, {vXrd0}\nv_add_u32 v241, {sW8192}, {vXrd1}")
    A("v_add_u32 v242, 0x10000, v240\nv_add_u32 v243, 0x10000, v241\nv_add_u32 v244, 0x20000, v240\nv_add_u32 v245, 0x20000, v241")
def twiddles():
    A(f"s_lshl_b32 s70, {sC}, 5\ns_lshl_b32 s71, {sET}, 4\ns_add_u32 s70, s70, s71\nv_add_u32 v11, s70, {vI16}\nv_cmp_eq_u32 vcc, 0, v11\nv_cvt_f32_u32 v11, v11\nv_lshlrev_b32 v15, 3, {vQ}\nv_cvt_f32_u32 v15, v15")
    A(f"v_mul_f32 v11, {fbits(1/512)}, v11\nv_mul_f32 v13, v11, v15\nv_cndmask_b32 v247, v11, 0.5, vcc\nv_add_f32 v14, {fbits(0.25)}, v13\nv_cndmask_b32 v14, v14, 0, vcc")
    gen_cos(lambda i: vWD + 8 * (i >> 2) + (i & 3), 16, "v11", "v13", lambda n: 32 * (n >> 3) + (n & 7))
    gen_cos(lambda i: vWD + 8 * (i >> 2) + 4 + (i & 3), 16, "v247", "v14", lambda n: 32 * (n >> 3) + (n & 7))
    A(f"v_lshrrev_b32 v11, 1, {vI16}\nv_cvt_f32_u32 v11, v11\nv_mul_f32 v11, {fbits(1/32)}, v11\nv_add_f32 v247, {fbits(0.25)}, v11")
    A(f"v_and_b32 v13, 1, v0\nv_cvt_f32_u32 v13, v13\nv_mul_f32 v13, {fbits(0.25)}, v13\nv_cmp_eq_u32 vcc, 1, {vI16}\nv_mov_b32 v14, v13\ns_nop 0\nv_cndmask_b32 v11, v11, 0.5, vcc\nv_cndmask_b32 v13, v13, 0, vcc")
    A(f"s_lshl_b32 s70, {sET}, 2\nv_cvt_f32_u32 v248, s70\nv_sub_f32 v252, v15, v248\nv_add_f32 v248, v15, v248")
    for J, (fr, ph) in enumerate((("v11", "v13"), ("v247", "v14"))):
        A(f"v_fma_f32 v253, {fr}, v248, {ph}\nv_fma_f32 v254, {fr}, v252, {ph}")
        gen_cos(lambda i: vR32 + 4 * J + i, 2, fr, "v253", lambda n: n)
        gen_cos(lambda i: vR32 + 4 * J + 2 + i, 2, fr, "v254", lambda n: 4 + n)
def consts():
    A("s_waitcnt lgkmcnt(0)")
    A("s_mul_i32 s52, s92, 0x9E3779B1\ns_add_u32 s52, s52, 0x7F4A7C15\ns_mul_i32 s53, s93, 0x85EBCA6B\ns_add_u32 s53, s53, 0xC2B2AE35")
    c0 = -2 * 0.7978845608028654 * 1.4426950408889634
    A(f"s_mov_b32 s76, {fbits(c0*0.044715)}\ns_mov_b32 s77, {fbits(c0)}\nv_mov_b32 v38, s52\nv_mov_b32 v39, s53")
    if OPT["prof"]: A("s_mov_b32 s80, s96")

def pushc(j): A.push(it_c(j, CS[j]), "C%d" % j)
def cnext(j):
    c_read(j); A.wait_all_lg()
    if j + 2 < 8: pushc(j + 2)
ring = [48, 52, 56, 60, 64, 20, 24, 28, 228, 232, 236] + [40, 44, 32, 240, 244, 248, 252]
NPRE = 11
tz = {}
def z_item(n):
    ks, ft = divmod(n, 7); pre = ""
    if ft == 0: pre = f"s_bfe_u32 s66, {sROT}, {(4<<16)|(4*(ks>>1))}\ns_mul_i32 s66, s66, 114688" + ("\ns_add_u32 s66, s66, 57344" if ks & 1 else "")
    if ft == 4: pre = "s_add_u32 s66, s66, 4096"
    return (pre, f"buffer_load_dwordx4 {vr(ring[n%len(ring)],4)}, v37, {sWS}, s66 offen offset:{(ft&3)*1024} sc1")
def mid_B(fz):
    stageB_setup()
    P = Pipe()
    st = {}
    def h0(): gbar("B0", False); A.front(it_xr(XB[1], 1), "B1x")
    def h1():
        fz(); A.stamp(7)
        A.wait_named("B1w"); gbar("B1x", False); A.push(it_xr(XB[2], 2) + it_w1(WB[2], 2), "B2"); cnext(2)
    def h2():
        gbar(None, False); A.front(it_xr(XB[3], 3) + it_w1(WB[3], 3), "B3") if "B2" in A.tok else A.push(it_xr(XB[3], 3) + it_w1(WB[3], 3), "B3")
        cnext(3); gbar("B2", False)
    def h3():
        cnext(4); gbar("B3", False); st["z"] = flagZ_issue()
    for G, h in enumerate((h0, h1, h2, h3)):
        P.hook(h); stageB(P, G)
    P.run(OPT["look"])
    cnext(5)
    A.stamp(8)
    poll(LDZ, tagcmp([18]), st["z"])
    A(f"s_mul_i32 {sT0}, {sC}, 7168\ns_mul_i32 {sT1}, {sW}, {16*57344}\ns_add_u32 {sT0}, {sT0}, {sT1}\ns_add_u32 {sT0}, {sT0}, {Z2N}\nv_add_u32 v37, {sT0}, {vL16}")
    for n in range(NPRE): A.push([z_item(n)], "z%d" % n)
    tokF = b_epilogue()
    A.stamp(9)
    flagF(tokF)
    for n in range(NPRE): tz[n] = A.tok["z%d" % n]

def front_main():
    for G in range(3): A.push(it_xa(G) + it_w2(PR[G], G), "A%d" % G)
    A.push(it_xa(3))
    A.flush("A0")
    A.lock += 1
    setup2(); consts()
    A(f"v_lshrrev_b32 v15, 2, {vLane}\nv_lshlrev_b32 v16, 8, v15\nv_and_b32 v15, 7, v15\nv_lshl_add_u32 v16, v15, 5, v16\nv_and_b32 v15, 3, v0\nv_lshl_add_u32 v16, v15, 3, v16\ns_lshl_b32 {sT0}, {sET}, 7\nv_xor_b32 v16, {sT0}, v16")
    for i in range(4): A(f"v_xor_b32 {vr(vTA[i])}, {32*i}, v16\nv_add_u32 {vr(vTA[4+i])}, 0x10000, {vr(vTA[i])}")
    A(f"s_lshl_b32 {sT0}, {sSH}, 12\ns_add_u32 {sT0}, {sT0}, {SL[6]}\nv_add_u32 v13, {sT0}, {vXrd0}\nv_add_u32 v14, {sT0}, {vXrd1}")
    A.lock -= 1
    A.flush("A1")
    A.stamp(1)
    A.per = OPT["pera"]
    P = Pipe()
    for G in range(4):
        def h(G=G):
            gbar("A%d" % G, False)
            if G == 1: A.push(it_w2(PR[0], 3), "A3")
            if G == 2: pushc(0)
        P.hook(h); slot = G % 3
        for kk in range(4):
            xf = vFR + 32 + 8 * ((4 * G + kk) % 3)
            for i in range(4):
                wf = vFR + 4 * (cnt[0] % NF); cnt[0] += 1
                reads = []
                if i == 0: reads += [f"ds_read_b128 {vr(xf+4*xt,4)}, v{13+(kk&1)} offset:{G*16384+(kk>>1)*8192+xt*2048}" for xt in (0, 1)]
                for half in (0, 1):
                    reads.append(f"ds_read_b64_tr_b16 {vr(wf+2*half,2)}, {vr(vTA[i + (4 if slot == 2 else 0)])} offset:{(PR[slot]&0xffff) + kk*8192 + half*4096}")
                z0 = "0" if (G == 0 and kk == 0) else None
                def f(wf=wf, xf=xf, i=i, z0=z0):
                    for xt in (0, 1): mfma(vr(vZ + 16 * xt + 4 * i, 4), vr(wf, 4), vr(xf + 4 * xt, 4), z0)
                P.add(reads, f)
    P.run(OPT["look"])
    A.flush()
    A.per = OPT["per"]
    A("s_barrier")
    A.stamp(2)
    A("s_nop 7")
    gelu(vZ, 32, vFR)
    t = vFR
    for xt in (0, 1):
        z = vZ + 16 * xt
        A(f"v_pk_add_f32 {vr(t,2)}, {vr(z,2)}, {vr(z+2,2)}\nv_pk_mul_f32 {vr(t+2,2)}, {vr(z,2)}, {vr(z,2)}")
        for p in range(2, 16, 2):
            if p > 2: A(f"v_pk_add_f32 {vr(t,2)}, {vr(t,2)}, {vr(z+p,2)}")
            A(f"v_pk_fma_f32 {vr(t+2,2)}, {vr(z+p,2)}, {vr(z+p,2)}, {vr(t+2,2)}")
        A(f"v_add_f32 {vr(t+4+2*xt)}, {vr(t)}, {vr(t+1)}\nv_add_f32 {vr(t+5+2*xt)}, {vr(t+2)}, {vr(t+3)}")
    xreduce((P16, P32), [t + 4, t + 5, t + 6, t + 7], [t, t + 1, t + 2, t + 3])
    A(f"v_cmp_eq_u32 vcc, 1, {vQ}\ns_lshl_b32 {sT0}, {sR}, 1\ns_add_u32 {sT0}, {sT0}, {sSH}\nv_cndmask_b32 {vr(t+4)}, {vr(t+4)}, {vr(t+6)}, vcc\nv_cndmask_b32 {vr(t+5)}, {vr(t+5)}, {vr(t+7)}, vcc")
    A(f"v_mov_b32 {vr(t+6)}, s52\nv_mov_b32 {vr(t+7)}, s53\ns_lshl_b32 {sT0}, {sT0}, 13\ns_add_u32 {sT0}, {sT0}, {STAT}\nv_add_u32 v249, {sT0}, {vL16}")
    A(f"s_lshl_b32 {sT1}, {sCA}, 10\ns_lshl_b32 {sT2}, {sET}, 9\ns_add_u32 {sT1}, {sT1}, {sT2}\nv_add_u32 v250, 4096, v249")
    masked(-1, 0, lambda: A.vmem(f"buffer_store_dwordx4 {vr(t+4,4)}, v249, {sWS}, {sT1} offen sc1"))

def front2():
    twiddles()
    A.stamp(3)
    pushc(1); A.flush()
    g = 128
    ld = [f"buffer_load_dwordx4 {vr(g+4*k,4)}, v{249 + (k>>2)}, {sWS}, 0 offen offset:{1024*(k&3)} sc1" for k in range(7)]
    for l in ld: tokS = A.vmem(l)
    A.push(IT_GATE + it_xr(XB[0], 0) + it_w1(WB[0], 0), "B0"); A.push(it_w1(WB[1], 1), "B1w")
    cnext(0)
    A(f"v_and_b32 v11, 3, {vI16}\nv_bfe_u32 v12, {vI16}, 3, 1\nv_lshl_add_u32 v11, v12, 2, v11\nv_bfe_u32 v15, v11, 1, 2\nv_bfe_u32 v12, {vI16}, 2, 1\nv_lshl_add_u32 v11, v12, 4, v11")
    A(f"s_lshl_b32 {sT0}, {sW}, 12\ns_add_u32 {sT0}, {sT0}, {SCR}\nv_lshlrev_b32 v11, 7, v11\nv_lshl_add_u32 v11, v15, 5, v11\nv_lshl_add_u32 v11, {vQ}, 3, v11\nv_add_u32 v11, {sT0}, v11")
    A(f"v_lshrrev_b32 v12, 2, {vLane}\nv_lshlrev_b32 v12, 7, v12\nv_bfe_u32 v15, {vLane}, 3, 2\nv_lshl_add_u32 v12, v15, 5, v12\nv_and_b32 v15, 3, v0\nv_lshl_add_u32 v12, v15, 3, v12\nv_add_u32 v12, {sT0}, v12")
    for i in range(4): A(f"v_xor_b32 v{160+i}, {32*i}, v11\nv_xor_b32 v{164+i}, {32*i}, v12")
    A(f"s_lshl_b32 {sT1}, {sR}, 1\ns_add_u32 {sT1}, {sT1}, {sSH}\ns_mul_i32 {sT0}, {sT1}, 57344\ns_lshl_b32 {sT1}, {sCA}, 13\ns_add_u32 {sT0}, {sT0}, {sT1}")
    A(f"s_lshl_b32 {sT1}, {sET}, 12\ns_add_u32 {sT0}, {sT0}, {sT1}\ns_add_u32 {sT0}, {sT0}, {Z2N}\ns_cmp_eq_u32 {sCA}, 7\ns_cselect_b32 {sT0}, {WS_SIZE}, {sT0}")
    if OPT["fb0"]: A.flush("B0")
    poll(ld, tagcmp([g + 4 * k + 2 for k in range(7)]), tokS, True)
    A.stamp(4)
    for k in range(1, 7): A(f"v_pk_add_f32 {vr(g,2)}, {vr(g,2)}, {vr(g+4*k,2)}")
    xreduce((P32,), [g, g + 1], [g + 2, g + 3])
    A(f"v_mul_f32 {vr(g)}, {fbits(1/896)}, {vr(g)}\nv_mul_f32 {vr(g+1)}, {fbits(1/896)}, {vr(g+1)}")
    A(f"v_fma_f32 {vr(g+1)}, -{vr(g)}, {vr(g)}, {vr(g+1)}\nv_max_f32 {vr(g+1)}, 0, {vr(g+1)}\nv_add_f32 {vr(g+1)}, {fbits(1e-5)}, {vr(g+1)}\nv_rsq_f32 {vr(g+2)}, {vr(g+1)}\ns_nop 0")
    A(f"v_mul_f32_e64 {vr(g+3)}, -{vr(g)}, {vr(g+2)}\nv_mov_b32 {vr(g+4)}, {vr(g+2)}\nv_mov_b32 {vr(g+5)}, {vr(g+3)}\ns_nop 1\n{P16} {vr(g+2)}, {vr(g+4)}\n{P16} {vr(g+3)}, {vr(g+5)}\ns_nop 1")
    for xt in (0, 1):
        for i in range(4):
            b = vZ + 16 * xt + 4 * i; pp = vr(g + 2 + 2 * xt, 2)
            for p in (0, 2): A(f"v_pk_fma_f32 {vr(b+p,2)}, {vr(b+p,2)}, {pp}, {pp} op_sel:[0,0,1] op_sel_hi:[1,0,1]")
            A(f"v_cvt_pk_bf16_f32 {vr(b)}, {vr(b)}, {vr(b+1)}\nv_cvt_pk_bf16_f32 {vr(b+1)}, {vr(b+2)}, {vr(b+3)}")
            A.ds(f"ds_write_b64 v{160+i}, {vr(b,2)} offset:{xt*1024}")
    A.wait_all_lg()
    tk = []
    for i in range(4):
        A.ds(f"ds_read_b64_tr_b16 {vr(144+4*i,2)}, v{164+i}")
        tk.append(A.ds(f"ds_read_b64_tr_b16 {vr(144+4*i+2,2)}, v{164+i} offset:2048"))
    for i in range(4):
        A.wait_lg(tk[i])
        tokZ = A.vmem(f"buffer_store_dwordx4 {vr(144+4*i,4)}, {vL16}, {sWS}, {sT0} offen offset:{1024*i} sc1")
    A.stamp(5)
    cnext(1)
    def fz():
        A.wait_vm(tokZ)
        A(f"s_lshl_b32 {sT0}, {sCA}, 10\ns_lshl_b32 {sT1}, {sR}, 5\ns_add_u32 {sT0}, {sT0}, {sT1}\ns_lshl_b32 {sT1}, {sW}, 3\ns_add_u32 {sT0}, {sT0}, {sT1}\ns_add_u32 {sT0}, {sT0}, {FLAGZ}\nv_mov_b32 v11, 0")
        masked(1, 0, lambda: A.vmem(f"buffer_store_dwordx2 v[38:39], v11, {sWS}, {sT0} offen sc1"))
    A.stamp(6)
    return fz

def front_pref():
    setup2()
    A(f"s_lshl_b32 {sT0}, {sR}, 4\ns_lshl_b32 {sT1}, {sW}, 2\ns_add_u32 {sT0}, {sT0}, {sT1}\ns_mul_i32 {sT0}, {sT0}, 3584\ns_movk_i32 {sT1}, 3584")
    A(f"v_lshlrev_b32 v15, 7, {vI16}\nv_mad_u32_u24 v15, {vQ}, {sT1}, v15")
    A.vmem(f"buffer_load_dword v12, v15, {sWIN}, {sT0} offen")
    consts()
    pushc(0); A.flush()
    A(f"s_lshl_b32 {sT0}, {sR}, 2\ns_add_u32 {sT0}, {sT0}, {sW}\ns_mul_i32 {sT0}, {sT0}, 7168\nv_lshlrev_b32 v15, 7, {vLane}\nv_mov_b32 v249, {WS_SIZE}\nv_mov_b32 v250, {WS_SIZE}")
    A.vmem(f"buffer_load_dword v255, v15, {sWOUT}, {sT0} offen")
    for k in range(1, 3): A.stamp(k)

def back():
    A.stamp(10); A.stamp(11)
    ACC = 116; CF = 68; R = len(ring)
    def zload(n):
        if n >= 112: return
        pre, ins = z_item(n)
        if pre: A.raw(pre)
        tz[n] = A.vmem(ins)
    F = []
    F += [f"v_lshrrev_b32 v14, 3, {vLane}", "v_and_b32 v15, 7, v0", "v_and_b32 v16, 6, v14", "v_xor_b32 v15, v15, v16", "v_lshlrev_b32 v15, 4, v15", "v_lshl_add_u32 v14, v14, 10, v15"]
    F += [f"s_mul_i32 {sT0}, {sW}, {224*1024}\ns_lshl_b32 {sT1}, {sC}, 7", f"s_add_u32 {sT0}, {sT0}, {sT1}\nv_add_u32 v14, {sT0}, v14", "v_add_u32 v15, 7168, v14"]
    F += [f"s_mul_i32 s20, {sW}, 20480\ns_lshl_b32 s21, {sW}, 10"]
    for u in (1, 2, 3):
        F += [f"s_add_u32 {sT0}, {sW}, {u}\ns_and_b32 {sT0}, {sT0}, 3", f"s_mul_i32 {sT0}, {sT0}, 21504\ns_add_u32 {sT0}, {sT0}, {(u-1)*7168}", f"v_add_u32 v{15+u}, {sT0}, {vL16}"]
    F += [f"s_mul_i32 {sT0}, {sW}, 21504\nv_add_u32 v19, {sT0}, {vL16}"]
    F += [f"s_sub_u32 {sT0}, 32, {sR}\ns_min_u32 {sT0}, {sT0}, {sR}", f"s_and_b32 {sT0}, {sT0}, 15\ns_mul_i32 {sT0}, {sT0}, 139264", f"s_add_u32 {sT0}, {sT0}, {F2}\ns_lshl_b32 {sT1}, {sC}, 6",
          f"s_lshl_b32 {sT3}, {sW}, 4\ns_add_u32 {sT1}, {sT1}, {sT3}", f"v_add_u32 v12, {sT1}, {vI16}", "v_sub_u32 v13, 512, v12", "v_min_u32 v12, v12, v13",
          f"s_mov_b32 {sT2}, {8*4352}\nv_lshlrev_b32 v12, 4, v12", f"v_mad_u32_u24 v12, {vQ}, {sT2}, v12", f"v_add_u32 v12, {sT0}, v12"]
    F += [f"v_lshrrev_b32 v13, 5, {vLane}", "v_mul_u32_u24 v13, 15, v13", f"v_add_u32 v13, {sT1}, v13", "v_sub_u32 v114, 512, v13", "v_min_u32 v13, v13, v114",
          "v_bfe_u32 v13, v13, 5, 3", "v_and_b32 v114, 31, v0", "v_lshl_add_u32 v13, v13, 5, v114", "v_lshlrev_b32 v13, 3, v13", f"v_add_u32 v13, {FLAGF}, v13"]
    F += [f"s_mov_b32 {sSEL[0]}, 0x03020100\ns_mov_b32 {sSEL[1]}, 0x01000302", f"s_cmp_lt_u32 {sR}, 16\ns_cselect_b32 {sM0}, 0x80000000, 0", f"s_or_b32 {sM1}, {sM0}, 0x8000",
          f"s_cmp_eq_u32 {sR}, 0\ns_cselect_b32 {sSEL[0]}, 0x0c0c0100, {sSEL[0]}\ns_cselect_b32 {sSEL[1]}, 0x0c0c0302, {sSEL[1]}",
          f"s_cmp_eq_u32 {sR}, 16\ns_cselect_b32 {sSEL[0]}, 0x01000c0c, {sSEL[0]}\ns_cselect_b32 {sSEL[1]}, 0x03020c0c, {sSEL[1]}\ns_cselect_b32 {sM1}, 0x80000000, {sM1}",
          f"s_cmp_ge_u32 {sC}, 4\ns_cselect_b32 {sT3}, 0x80008000, 0\ns_xor_b32 {sM1}, {sM1}, {sT3}"]
    F += [f"v_cvt_f32_u32 v4, {vTrow}", f"v_lshlrev_b32 v5, 3, {vQ}", "v_cvt_f32_u32 v5, v5", f"v_mul_f32 v4, {fbits(1/2048)}, v4", "v_mul_f32 v5, v4, v5"]
    F += [f"v_lshlrev_b32 v6, 10, {vTrow}", f"v_and_b32 v114, 1, {vQ}", "v_lshl_add_u32 v6, v114, 5, v6", f"v_lshrrev_b32 v114, 1, {vQ}", "v_lshl_add_u32 v6, v114, 4, v6"]
    F += [f"s_mul_i32 {sKB}, {sR}, {4*28672}\ns_add_u32 {sKB}, {sKB}, {HB}", f"s_lshr_b32 {sT1}, {sC}, 1\ns_mul_i32 {sT1}, {sT1}, 7168", f"s_mul_i32 {sT0}, {sW}, 28672\ns_add_u32 {sT1}, {sT1}, {sT0}",
          f"s_add_u32 {sT1}, {sT1}, {sKB}\ns_and_b32 {sT2}, {sC}, 1", f"s_lshl_b32 s22, {sT2}, 12\ns_add_u32 s22, s22, {sT1}", f"s_lshl_b32 s23, {sT2}, 9\ns_add_u32 s23, s23, {sT1}", f"s_add_u32 {sKB}, {sKB}, {sW7168}"]
    for u in range(4):
        F += [f"s_add_u32 {sT0}, {sW}, {u}\ns_and_b32 {sT0}, {sT0}, 3", f"s_mul_i32 {sT0}, {sT0}, 28672\ns_add_u32 s{24+u}, {sT0}, {sKB}"]
    F += [f"s_lshl_b32 {sT0}, {sR}, 8\ns_add_u32 {sT0}, {sT0}, {FLAGH}", f"s_lshl_b32 {sT1}, {sW}, 6\ns_add_u32 s45, {sT0}, {sT1}",
          f"s_lshl_b32 {sT1}, {sC}, 5\ns_add_u32 {sT0}, {sT0}, {sT1}", f"s_lshl_b32 {sT1}, {sW}, 3\ns_add_u32 s44, {sT0}, {sT1}", f"v_lshlrev_b32 v11, 3, {vLane}"]
    nsetup = len(F)
    for k in range(8):
        for g2 in (0, 1):
            d = CF + 4 * k + 2 * g2
            F += [f"v_fmamk_f32 v114, v4, {fbits(float(k+32*g2))}, v5", "v_fract_f32 v114, v114", "v_sin_f32 v115, -v114", "v_cos_f32 v114, v114",
                  f"v_mul_f32 v115, {vG}, v115", f"v_mul_f32 v114, {vG}, v114", "v_cvt_pk_bf16_f32 v114, v114, v115",
                  f"v_perm_b32 {vr(d)}, v114, v114, {sSEL[0]}", f"v_perm_b32 {vr(d+1)}, v114, v114, {sSEL[1]}",
                  f"v_xor_b32 {vr(d)}, {sM0}, {vr(d)}", f"v_xor_b32 {vr(d+1)}, {sM1}, {vr(d+1)}"]
    F = deque(F)
    def wout_tiles(ls):
        if ls < 3: return (32 * ls, 32 * ls + 16)
        if ls == 3: return (96, 208)
        return (112 + 32 * (ls - 4), 112 + 32 * (ls - 4) + 16)
    FL = 98304
    def it_wout(ls):
        it = []
        for hh, f0 in enumerate(wout_tiles(ls)):
            m = f"s_add_u32 m0, {sW8192}, {131072 + ls*4096 + hh*2048}" if ls < 2 else f"s_add_u32 m0, s20, {(ls-2)*4096 + hh*2048}"
            it.append((m + f"\ns_mov_b32 {sBG}, {f0*1024}", f"buffer_load_dwordx4 v14, {sWOUT}, {sBG} offen lds"))
            it.append(("", f"buffer_load_dwordx4 v15, {sWOUT}, {sBG} offen offset:1024 lds"))
        return it
    def red_write(ft):
        for u in (1, 2, 3): A.ds(f"ds_write_b128 v{15+u}, {vr(ACC+(ft*4+u)*4,4)} offset:{ft*1024}")
    ldF = [f"buffer_load_dwordx2 v[2:3], v13, {sWS}, 0 offen sc1"]
    A.per = 60
    NPF = OPT["npf"]
    c_read(6); c_read(7)
    nxt = NPRE
    for n in range(112):
        ks, ft = divmod(n, 7)
        if n == 4: A.wait_all_lg()
        if n == 40: A("s_barrier")
        if n == NPF + R + 1: poll(ldF, tagcmp([2]), tokPF)
        A.wait_vm(tz[n])
        if OPT["p2st"] and n in (0, 14, 28, 42, 56, 70, 84, 93, 105): A.stamp(1 + (0, 14, 28, 42, 56, 70, 84, 93, 105).index(n))
        for u in range(4):
            mfma(vr(ACC + (ft * 4 + u) * 4, 4), vr(ring[n % R], 4), ar((ks * 4 + u) * 4, 4), "0" if ks == 0 else None)
            if n >= 4 and F: A.raw(F.popleft())
            if u == 1 and nxt < n + R and nxt < 112: zload(nxt); nxt += 1
        if nxt <= n + R and nxt < 112: zload(nxt); nxt += 1
        if n == NPF:
            assert n * 4 - 16 > nsetup
            for l in ldF: tokPF = A.vmem(l)
        if n + R == 112:
            A.push([(f"s_add_u32 m0, s21, {FL+k*4096}\ns_mov_b32 {sBG}, {k*4352}", f"buffer_load_dwordx4 v12, {sWS}, {sBG} offen sc1 lds") for k in range(8)])
            A.push(it_wout(0) + it_wout(1), "W1")
        if ks == 15 and ft >= 2: red_write(ft - 2)
    assert not F
    A.flush()
    A("s_nop 3"); red_write(5); A("s_nop 1"); red_write(6)
    A.stamp(12)
    hp = 40
    A(f"v_mov_b32 v37, {vB}")
    Z = 228
    for k in range(14):
        A(f"v_lshlrev_b32 {vr(Z+2*k)}, 16, {vr(Z1P+k)}\nv_and_b32 {vr(Z+2*k+1)}, 0xffff0000, {vr(Z1P+k)}\nv_pk_mul_f32 {vr(Z+2*k,2)}, {vr(Z+2*k,2)}, v[36:37] op_sel_hi:[1,0]")
    A.wait_all_lg(); A("s_barrier")
    tk = {}
    def rr(ft):
        if ft < 7:
            for u in (1, 2, 3): tk[ft] = A.ds(f"ds_read_b128 {vr(ACC+(ft*4+u)*4,4)}, v19 offset:{(u-1)*7168+ft*1024}")
    for ft in range(4): rr(ft)
    for ft in range(7):
        b = ACC + ft * 16
        for p in (0, 2): A(f"v_pk_add_f32 {vr(b+p,2)}, {vr(b+p,2)}, v[36:37] op_sel:[0,1] op_sel_hi:[1,1]")
        A.wait_lg(tk[ft]); rr(ft + 4)
        for p in (0, 2): A(f"v_pk_add_f32 {vr(b+p,2)}, {vr(b+p,2)}, {vr(b+4+p,2)}\nv_pk_add_f32 {vr(b+8+p,2)}, {vr(b+8+p,2)}, {vr(b+12+p,2)}")
        for p in (0, 2): A(f"v_pk_add_f32 {vr(b+p,2)}, {vr(b+p,2)}, {vr(b+8+p,2)}")
        for p in (0, 2): A(f"v_pk_mul_f32 {vr(b+p,2)}, {vr(b+p,2)}, {vr(Z+4*ft+p,2)}")
        A(f"v_cvt_pk_bf16_f32 {vr(hp+2*ft)}, {vr(b)}, {vr(b+1)}\nv_cvt_pk_bf16_f32 {vr(hp+1+2*ft)}, {vr(b+2)}, {vr(b+3)}")
        if ft in (1, 3, 5): A.vmem(f"buffer_store_dwordx4 {vr(hp+2*ft-2,4)}, {vL16}, {sWS}, s22 offen offset:{1024*(ft>>1)} sc1")
    tokH = A.vmem(f"buffer_store_dwordx2 {vr(hp+12,2)}, v11, {sWS}, s23 offen offset:3072 sc1")
    A.stamp(13)
    A.wait_named("W1"); A("s_barrier")
    for ls in range(2, 7): A.push(it_wout(ls), "W%d" % ls)
    A.per = 48
    A(f"v_lshrrev_b32 v12, 2, {vLane}\nv_bfe_u32 v13, {vLane}, 3, 2\nv_and_b32 v4, 3, v0\nv_lshlrev_b32 v4, 3, v4\nv_lshl_add_u32 v4, v12, 7, v4\nv_lshl_add_u32 v4, v13, 5, v4\ns_add_u32 {sT0}, {sW8192}, 131072")
    for et in range(4): A(f"v_xor_b32 v5, {32*et}, v4\nv_add_u32 v{100+et}, s20, v5\nv_add_u32 v{104+et}, {sT0}, v5")
    A(f"v_add_u32 v12, {FL}, {vL16}\nv_and_b32 v13, 7, v0\nv_lshlrev_b32 v13, 3, v13\nv_mov_b32 v4, 0")
    OA = 116
    fr = [20, 24, 28, 32, 56, 60, 64, 108]
    P = Pipe()
    for k in range(8):
        for et in range(4):
            f = fr[(k * 4 + et) % 8]
            P.add([f"ds_read_b128 {vr(f,4)}, v12 offset:{(k*4+et)*1024}"],
                  lambda f=f, k=k, et=et: mfma(vr(OA + 4 * et, 4), vr(f, 4), vr(CF + 4 * k, 4), "0" if k == 0 else None))
    P.run(6)
    A.wait_vm(tokH)
    masked(1, 0, lambda: A.vmem(f"buffer_store_dwordx2 v[38:39], v4, {sWS}, s44 offen sc1"))
    A.stamp(14)
    def wread(ls):
        for et in range(4):
            for half in (0, 1):
                base, off = (104, ls * 4096) if ls < 2 else (100, (ls - 2) * 4096)
                A.ds(f"ds_read_b64_tr_b16 {ar((ls*4+et)*4+2*half,2)}, v{base+et} offset:{off+half*2048}")
    wread(0); wread(1)
    A.flush()
    ldH = [f"buffer_load_dwordx2 v[2:3], v13, {sWS}, s45 offen sc1"]
    tokPH = A.vmem(ldH[0])
    for ls in range(2, 7):
        A.wait_named("W%d" % ls); wread(ls)
    RED2 = 81920
    for u in (1, 2, 3):
        A(f"s_add_u32 {sT0}, {sW}, {u}\ns_and_b32 {sT0}, {sT0}, 3\ns_mul_i32 {sT0}, {sT0}, 12288\ns_add_u32 {sT0}, {sT0}, {RED2+(u-1)*4096}\nv_add_u32 v{15+u}, {sT0}, {vL16}")
    A(f"s_mul_i32 {sT0}, {sW}, 12288\ns_add_u32 {sT0}, {sT0}, {RED2}\nv_add_u32 v19, {sT0}, {vL16}\ns_lshl_b32 {sT1}, {sC}, 7")
    for u in range(4): A(f"s_add_u32 {sCU[u]}, s{24+u}, 4096")
    A("s_barrier")
    A.stamp(15)
    poll(ldH, tagcmp([2]), tokPH)
    A.stamp(16)
    hr = list(range(180, 256, 4)) + [20, 24, 28, 32, 56, 60, 64, 68, 72]
    th = {}
    order = [(u, ls) for u in (1, 2, 3, 0) for ls in range(7)]
    def hload(n):
        if n >= 28: return
        u, ls = order[n]; h = hr[n]
        sb = f"s{24+u}" if ls < 4 else sCU[u]; io = (ls & 3) * 1024
        if ls == 3:
            A.vmem(f"buffer_load_dwordx2 {vr(h,2)}, v11, {sWS}, {sb} offen offset:{io} sc1")
            th[n] = A.vmem(f"buffer_load_dwordx2 {vr(h+2,2)}, v11, {sWS}, {sb} offen offset:{io+512} sc1")
        else:
            th[n] = A.vmem(f"buffer_load_dwordx4 {vr(h,4)}, {vL16}, {sWS}, {sb} offen offset:{io} sc1")
    HL = OPT["hl"]
    for n in range(HL): hload(n)
    A.wait_all_lg()
    for n in range(28):
        u, ls = order[n]
        A.wait_vm(th[n])
        for et in range(4): mfma(vr(OA + 16 * u + 4 * et, 4), ar((ls * 4 + et) * 4, 4), vr(hr[n], 4), "0" if (ls == 0 and u) else None)
        hload(n + HL)
        if n in (8, 15, 22):
            up = order[n - 2][0]
            for et in range(4): A.ds(f"ds_write_b128 v{15+up}, {vr(OA+16*up+4*et,4)} offset:{et*1024}")
        if n == 25:
            A.wait_all_lg(); A("s_barrier")
            for k in range(12): A.ds(f"ds_read_b128 {vr(OA+16+4*k,4)}, v19 offset:{k*1024}")
    A.wait_all_lg()
    for p in range(0, 16, 2): A(f"v_pk_add_f32 {vr(OA+16+p,2)}, {vr(OA+16+p,2)}, {vr(OA+32+p,2)}")
    for p in range(0, 16, 2): A(f"v_pk_add_f32 {vr(OA+p,2)}, {vr(OA+p,2)}, {vr(OA+48+p,2)}")
    for p in range(0, 16, 2): A(f"v_pk_add_f32 {vr(OA+p,2)}, {vr(OA+p,2)}, {vr(OA+16+p,2)}")
    for et in range(4):
        A(f"v_cvt_pk_bf16_f32 v{40+2*et}, {vr(OA+4*et)}, {vr(OA+4*et+1)}\nv_cvt_pk_bf16_f32 v{41+2*et}, {vr(OA+4*et+2)}, {vr(OA+4*et+3)}")
    A("s_nop 1")
    for pr in (0, 1): A(f"{P16} v{40+4*pr}, v{42+4*pr}\n{P16} v{41+4*pr}, v{43+4*pr}")
    A("s_nop 1")
    for pr in (0, 1): A.vmem(f"buffer_store_dwordx4 {vr(40+4*pr,4)}, v6, {sOUT}, {sT1} offen offset:{64*pr}")
    A.stamp(17)
    lb = A.lab("Lnobump")
    A(f"s_or_b32 {sT0}, s2, {sW}\ns_cmp_lg_u32 {sT0}, 0\ns_cbranch_scc1 {lb}")
    A(f"v_mov_b32 v11, {EPOCH}\ns_mov_b64 exec, 1\nbuffer_store_dwordx2 v[38:39], v11, {sWS}, 0 offen sc1\ns_mov_b64 exec, -1\n{lb}:")
    if OPT["prof"]:
        A("s_memrealtime s[100:101]\ns_waitcnt lgkmcnt(0)\ns_mov_b32 s99, s100")
        A(f"s_lshl_b32 {sT0}, s2, 2\ns_add_u32 {sT0}, {sT0}, {sW}\ns_lshl_b32 {sT0}, {sT0}, 7\ns_add_u32 {sT0}, {sT0}, {TS}\nv_mov_b32 v11, 0\ns_mov_b64 exec, 1")
        for k in range(20): A(f"v_mov_b32 v12, s{80+k}\nbuffer_store_dword v12, v11, {sWS}, {sT0} offen offset:{4*k}\ns_nop 1")

prologue()
A(f"s_cmp_eq_u32 {sCA}, 7\ns_cbranch_scc1 Lpref")
st = (list(A.vm), list(A.lg))
front_main()
assert not A.bg
A.raw("Ljoin:")
mid_B(front2())
back()
A("s_branch Lend")
A.raw("Lpref:")
A.vm, A.lg = st; A.tok = {}; A.per = OPT["per"]
front_pref()
assert not A.bg
A("s_branch Ljoin")
A("Lend:\ns_endpgm")

hdr = open("cdna_kernels/%s.s.ref" % NAME).read().split("; Override launch")[0]
out = hdr + "; @launch grid=(256,1,1) block=(256,1,1) lds=%d\n" % LDS_SIZE
out += '.amdgcn_target "amdgcn-amd-amdhsa--gfx950"\n.text\n.globl %s_kernel\n.p2align 8\n.type %s_kernel,@function\n%s_kernel:\n' % (NAME, NAME, NAME)
def addnt(l):
    t = l.strip()
    if OPT["nt"] and (t.startswith("buffer_load") or t.startswith("global_load")) and sWS not in t:
        return l[:-4] + " nt lds" if t.endswith(" lds") else l + " nt"
    return l
def keep(l):
    t = l.strip()
    if OPT["strip"] == 1: return not t.startswith(("v_mfma", "ds_", "v_pk_", "v_exp", "v_rcp", "v_cos", "v_sin", "v_fract", "v_fmamk", "v_cvt_pk", "v_perm_b32"))
    if OPT["strip"] == 2: return not (t.endswith(" lds") or (t.startswith("buffer_load_dwordx4") and (", v37, " in t or ", v7, " in t)))
    return True
out += "\n".join(addnt(l) for l in A.L if keep(l)) + "\n"
out += """.section .rodata,"a"
.p2align 6
.amdhsa_kernel %s_kernel
  .amdhsa_next_free_vgpr 512
  .amdhsa_next_free_sgpr 102
  .amdhsa_accum_offset 256
  .amdhsa_group_segment_fixed_size 0
  .amdhsa_kernarg_size 112
  .amdhsa_user_sgpr_count 2
  .amdhsa_user_sgpr_kernarg_segment_ptr 1
  .amdhsa_system_sgpr_workgroup_id_x 1
.end_amdhsa_kernel
""" % NAME
open(sys.argv[1], "w").write(out)
```

```python
import sys, struct
from collections import deque
NAME = "gated_mix__spectral_fnet__mixer_gmlp__prompt"
OPT = dict(diag=-1, hl=10, p2st=0, lead=1, rot2=0, fakez=0, zsc=1, strip=0, ahead=0, fb0=1, sleep=4, npf=60, nt=0, ntc=0, rota=1, rotc=1, prof=0, xmap=2, per=56, pera=40, look=6)
for a in sys.argv[2:]:
    k, v = a.split("="); OPT[k] = int(v)

def fbits(x): return "0x%08x" % struct.unpack("<I", struct.pack("<f", x))[0]
def cost(ln):
    op = ln.split()[0]
    if op.startswith("v_mfma"): return 16
    if op in ("v_exp_f32", "v_rcp_f32", "v_rsq_f32"): return 8
    if op == "s_nop": return 4 * (int(ln.split()[1]) + 1)
    return 4

class Asm:
    def __init__(s):
        s.L = []; s.vm = []; s.lg = []; s.n = 0; s.nlab = 0; s.nst = 0
        s.bg = deque(); s.acc = 0; s.lock = 0; s.tok = {}; s.per = OPT["per"]
    def raw(s, t):
        for ln in t.split("\n"):
            ln = ln.strip()
            if not ln: continue
            if ln.endswith(":"): s.L.append(ln)
            else: s.L.append("    " + ln); s.acc += cost(ln)
    def __call__(s, t):
        s.raw(t); s.tick()
    def tick(s):
        if s.lock or not s.bg:
            if not s.bg: s.acc = min(s.acc, s.per)
            return
        if s.acc >= s.per: s.pop()
    def pop(s):
        pre, ins, name = s.bg.popleft()
        s.lock += 1
        if pre: s.raw(pre)
        t = s.vmem(ins)
        s.lock -= 1
        if name: s.tok[name] = t
        s.acc = 0
    def push(s, items, name=None):
        for i, (pre, ins) in enumerate(items): s.bg.append((pre, ins, name if i == len(items) - 1 else None))
    def front(s, items, name):
        while s.bg and "m0" not in s.bg[0][0]: s.pop()
        new = [(p, i, name if k == len(items) - 1 else None) for k, (p, i) in enumerate(items)]
        s.bg.extendleft(reversed(new))
    def flush(s, name=None):
        while s.bg and (name is None or name not in s.tok): s.pop()
    def wait_named(s, name):
        s.flush(name)
        t = s.tok[name]
        while s.bg and t in s.vm and len(s.vm) - 1 - s.vm.index(t) < OPT["ahead"]: s.pop()
        s.wait_vm(t)
    def c(s, t): s.L.append("    ; " + t)
    def lab(s, p="L"):
        s.nlab += 1; return "%s%d" % (p, s.nlab)
    def vmem(s, t):
        if len(s.vm) >= 62: s.wait_vm(s.vm[len(s.vm) - 62])
        s.raw(t); s.n += 1; s.vm.append(s.n); return s.n
    def ds(s, t):
        if len(s.lg) >= 15: s.wait_lg(s.lg[len(s.lg) - 15])
        s.raw(t); s.n += 1; s.lg.append(s.n); n = s.n; s.tick(); return n
    def wait_vm(s, tok):
        if tok not in s.vm: return
        i = s.vm.index(tok); s.raw("s_waitcnt vmcnt(%d)" % (len(s.vm) - 1 - i)); s.vm = s.vm[i + 1:]
    def wait_lg(s, tok):
        if tok not in s.lg: return
        i = s.lg.index(tok); s.raw("s_waitcnt lgkmcnt(%d)" % (len(s.lg) - 1 - i)); s.lg = s.lg[i + 1:]
    def wait_all_lg(s):
        if s.lg: s.raw("s_waitcnt lgkmcnt(0)")
        s.lg = []
    def stamp(s, k):
        if OPT["diag"] == k: s.raw("s_memrealtime s[96:97]\ns_waitcnt lgkmcnt(0)"); s.lg = []
        if not OPT["prof"]: return
        s.raw("s_memtime s[78:79]\ns_waitcnt lgkmcnt(0)\ns_mov_b32 s%d, s78" % (80 + k)); s.lg = []; s.nst = max(s.nst, k + 1)
        assert k < 18
A = Asm()
def vr(b, n=1): return "v%d" % b if n == 1 else "v[%d:%d]" % (b, b + n - 1)
def ar(b, n=1): return "a%d" % b if n == 1 else "a[%d:%d]" % (b, b + n - 1)
def mfma(d, a, b, c=None): A("v_mfma_f32_16x16x32_bf16 %s, %s, %s, %s" % (d, a, b, d if c is None else c))

EPOCH, FLAGZ, FLAGF, FLAGH, STAT = 0x0, 0x1000, 0x3000, 0x4000, 0x10000
Z2N, HB, F2, TS, WS_SIZE = 0x100000, 0x500000, 0x900000, 0xC00000, 0x1000000
SL = [16384 * i for i in range(10)]
PR = [32768 * i for i in range(5)]
GATE = PR[0] + 28672
SCR = SL[8]; Z1B = SL[9]
LDS_SIZE = 163840
sX, sWIN, sWSP, sWOUT = ["s[%d:%d]" % (b, b + 3) for b in range(4, 20, 4)]
sAX = ["s20", "s21", "s22", "s23"]; sAW = ["s24", "s25", "s26", "s27"]
sWS, sOUT, sBSP, sGW, sTMP = ["s[%d:%d]" % (b, b + 3) for b in range(28, 48, 4)]
sROT, sBG2, sET, sSH = "s48", "s49", "s50", "s51"
sR, sC, sW = "s54", "s55", "s56"
sW2048, sW7168, sW8192 = "s57", "s58", "s59"
sCU = ["s60", "s61", "s62", "s63"]
sCA = "s95"
sSEL = ["s64", "s65"]; sM0, sM1 = "s68", "s69"
sT0, sT1, sT2, sT3, sSPIN, sKB = "s70", "s71", "s72", "s73", "s74", "s75"
sGC = "s[76:77]"; sBG = "s3"
vLane, vI16, vQ, vXrd0, vXrd1, vWrd, vL16, vTrow, vB, vG = ["v%d" % i for i in range(1, 11)]
vWoff = list(range(20, 27)); vXA = [27, 28]; vXR = [29, 30]; vWrd2 = "v31"; vCb = [32, 33]; vCo = [34, 35]; vOMG = "v36"
vR32 = 40; vWD = 48; vZ = 80; vAB = 112; vGA = 176; vFR = 180
vWA = list(range(112, 120)); vTA = list(range(120, 128))


def masked(mask_lo, mask_hi, fn):
    A.lock += 1
    A.raw(f"s_mov_b32 exec_lo, {mask_lo}\ns_mov_b32 exec_hi, {mask_hi}")
    r = fn()
    A.raw("s_mov_b64 exec, -1")
    A.lock -= 1
    return r

def poll(loads, cmps, tok=None, skip7=False):
    l, d = A.lab("Lspin"), A.lab("Ldone")
    if tok is None:
        for t in loads: tok = A.vmem(t)
    A.lock += 1
    A.wait_vm(tok)
    if skip7: A.raw(f"s_cmp_eq_u32 {sCA}, 7\ns_cbranch_scc1 {d}")
    A.raw(cmps); A.raw(f"s_cbranch_vccz {d}\ns_mov_b32 {sSPIN}, 0x40000\n{l}:\ns_sleep {OPT['sleep']}")
    for t in loads: A.raw(t)
    A.raw("s_waitcnt vmcnt(0)"); A.raw(cmps)
    A.raw(f"s_cbranch_vccz {d}\ns_sub_u32 {sSPIN}, {sSPIN}, 1\ns_cmp_lg_u32 {sSPIN}, 0\ns_cbranch_scc1 {l}\n{d}:")
    A.lock -= 1
def tagcmp(regs):
    cm = f"v_cmp_ne_u64 vcc, s[52:53], {vr(regs[0],2)}"
    for k in regs[1:]: cm += f"\nv_cmp_ne_u64 s[78:79], s[52:53], {vr(k,2)}\ns_or_b64 vcc, vcc, s[78:79]"
    return cm

def gelu(base, n, t):
    for p0 in range(0, n, 4):
        ps = (p0, p0 + 2)
        for k, p in enumerate(ps): A(f"v_pk_mul_f32 {vr(t+2*k,2)}, {vr(base+p,2)}, {vr(base+p,2)}")
        for k, p in enumerate(ps): A(f"v_pk_fma_f32 {vr(t+2*k,2)}, {vr(t+2*k,2)}, {sGC}, {sGC} op_sel:[0,0,1] op_sel_hi:[1,0,1]")
        for k, p in enumerate(ps): A(f"v_pk_mul_f32 {vr(t+2*k,2)}, {vr(t+2*k,2)}, {vr(base+p,2)}")
        for k in range(4): A(f"v_exp_f32 {vr(t+k)}, {vr(t+k)}")
        for k, p in enumerate(ps): A(f"v_pk_add_f32 {vr(t+2*k,2)}, {vr(t+2*k,2)}, 1.0 op_sel_hi:[1,0]")
        for k in range(4): A(f"v_rcp_f32 {vr(t+k)}, {vr(t+k)}")
        for k, p in enumerate(ps): A(f"v_pk_mul_f32 {vr(base+p,2)}, {vr(base+p,2)}, {vr(t+2*k,2)}")

def xreduce(ops, regs, tmps):
    for op in ops:
        for r, t in zip(regs, tmps): A(f"v_mov_b32 {vr(t)}, {vr(r)}")
        A("s_nop 1")
        for r, t in zip(regs, tmps): A(f"{op} {vr(t)}, {vr(r)}")
        A("s_nop 1")
        for r, t in zip(regs, tmps): A(f"v_add_f32 {vr(r)}, {vr(r)}, {vr(t)}")
P16, P32 = "v_permlane16_swap_b32", "v_permlane32_swap_b32"

def gen_cos(dst, nd, freq, base, kfun):
    for i in range(0, nd, 2):
        ks = [kfun(2 * i + z) for z in range(4)]
        for z in range(4): A(f"v_fmamk_f32 v{16+z}, {freq}, {fbits(float(ks[z]))}, {base}")
        for z in range(4): A(f"v_fract_f32 v{16+z}, v{16+z}")
        for z in range(4): A(f"v_cos_f32 v{16+z}, v{16+z}")
        A(f"v_cvt_pk_bf16_f32 {vr(dst(i))}, v16, v17\nv_cvt_pk_bf16_f32 {vr(dst(i+1))}, v18, v19")

def it_xa(G):
    return [(f"s_add_u32 m0, {sW2048}, {SL[6+G] + sub*8192 - 128*sub}\ns_nop 0" if h == 0 else "",
             f"buffer_load_dwordx4 {vr(vXA[h])}, {sX}, {sAX[G]} offen offset:{1024*h+128*sub} lds") for sub in (0, 1) for h in (0, 1)]
def it_xr(dst, G):
    return [(f"s_add_u32 m0, {sW2048}, {dst + sub*8192 - 128*(2*G+sub)}\ns_nop 0" if h == 0 else "",
             f"buffer_load_dwordx4 {vr(vXR[h])}, {sX}, 0 offen offset:{1024*h+128*(2*G+sub)} lds") for sub in (0, 1) for h in (0, 1)]
def it_w1(dst, G):
    return [(f"s_add_u32 m0, {sW7168}, {dst + (4096 if i else 0)}\ns_mov_b32 {sBG}, {G*458752}" if i in (0, 4) else "",
             f"buffer_load_dwordx4 {vr(vWoff[i])}, {sWIN}, {sBG} offen offset:{1024*(i&3)} lds") for i in range(7)]
def it_w2(dst, G):
    return [(f"s_add_u32 m0, {sW8192}, {dst + (4096 if i else 0)}\ns_nop 0" if i in (0, 4) else "",
             f"buffer_load_dwordx4 {vr(vWA[i])}, {sWIN}, {sAW[G]} offen offset:{1024*(i&3)} lds") for i in range(8)]
def it_c(j, dst):
    it = []
    for u in range(4):
        for h in (0, 1):
            pre = ""
            if u == 0 and h == 0:
                pre = f"s_bfe_u32 {sBG2}, {sROT}, {(4<<16)|(4*j)}\ns_lshl_b32 {sBG2}, {sBG2}, 7\nv_or_b32 {vr(vCo[0])}, {sBG2}, {vr(vCb[0])}\nv_or_b32 {vr(vCo[1])}, {sBG2}, {vr(vCb[1])}\n"
            if h == 0: pre += f"s_add_u32 m0, {sW8192}, {dst + u*2048}\ns_nop 0"
            it.append((pre, f"buffer_load_dwordx4 {vr(vCo[h])}, {sWSP}, {sCU[u]} offen offset:{1024*h}{' nt' if j < OPT['ntc'] else ''} lds"))
    return it
IT_GATE = [(f"s_mov_b32 m0, {GATE}\ns_nop 0", f"buffer_load_dwordx4 {vL16}, {sGW}, 0 offen lds"), ("", f"buffer_load_ushort {vB}, v246, {sBSP}, 0 offen")]

class Pipe:
    def __init__(s): s.items = []; s.hooks = {}; s.post = {}
    def add(s, reads, fn): s.items.append((reads, fn))
    def hook(s, fn): s.hooks[len(s.items)] = fn
    def after(s, fn): s.post[len(s.items) - 1] = fn
    def run(s, look):
        toks = {}
        def issue(i):
            if i < len(s.items):
                if i in s.hooks: s.hooks[i]()
                toks[i] = [A.ds(t) for t in s.items[i][0]]
        for i in range(look): issue(i)
        for i, (reads, fn) in enumerate(s.items):
            if toks[i]: A.wait_lg(toks[i][-1])
            fn()
            if i in s.post: s.post[i]()
            issue(i + look)

def gbar(name, flush=True):
    A.wait_all_lg()
    if flush: A.flush()
    if name: A.wait_named(name)
    A("s_barrier")

NF = 8
cnt = [0]
XB = [SL[9], SL[8], SL[9], SL[8]]; WB = [PR[2], PR[0], PR[2], PR[0]]
CS = [PR[1], PR[3]] * 4
def stageB_setup():
    A(f"s_add_u32 {sT0}, {sW2048}, {SL[6]}\nv_add_u32 v13, {sT0}, {vXrd0}\nv_add_u32 v14, {sT0}, {vXrd1}\nv_xor_b32 v15, 2048, v13\nv_xor_b32 v16, 2048, v14")
    A(f"v_lshlrev_b32 v12, 4, {vQ}\nv_add_u32 v12, {GATE}, v12")
def stageB(P, G):
    xo = XB[G] - SL[6]
    wreg, wo = (vWrd, WB[G]) if WB[G] < 65536 else (vWrd2, WB[G] - 65536)
    for kk in range(4):
        par = kk & 1
        fb = vFR + 32 + 12 * par
        so = xo + (kk >> 1) * 8192
        z0 = "0" if (G == 0 and kk == 0) else None
        a0 = "0" if kk == 0 else None
        def f1(fb=fb, z0=z0, a0=a0, kk=kk):
            mfma(vr(vGA, 4), vr(fb + 8, 4), vr(fb, 4), z0)
            for ty in (0, 1): mfma(vr(vAB + 16 * G + 8 * ty, 4), vr(fb, 4), vr(vWD + 8 * kk + 4 * ty, 4), a0)
        P.add([f"ds_read_b128 {vr(fb,4)}, v{13+par} offset:{so}", f"ds_read_b128 {vr(fb+8,4)}, v12 offset:{(4*G+kk)*64}"], f1)
        def f2(fb=fb, a0=a0, kk=kk):
            for ty in (0, 1): mfma(vr(vAB + 16 * G + 8 * ty + 4, 4), vr(fb + 4, 4), vr(vWD + 8 * kk + 4 * ty, 4), a0)
        P.add([f"ds_read_b128 {vr(fb+4,4)}, v{15+par} offset:{so}"], f2)
        for i in range(4):
            wf = vFR + 4 * (cnt[0] % NF); cnt[0] += 1
            reads = [f"ds_read_b64_tr_b16 {vr(wf+2*half,2)}, {wreg} offset:{wo + kk*7168 + i*32 + half*3584}" for half in (0, 1)]
            def f3(wf=wf, fb=fb, i=i, z0=z0):
                for xt in (0, 1): mfma(vr(vZ + 16 * xt + 4 * i, 4), vr(wf, 4), vr(fb + 4 * xt, 4), z0)
            P.add(reads, f3)

def c_read(j):
    dst = CS[j]
    A.wait_named("C%d" % j)
    for par in (0, 1):
        for u in range(4):
            A.ds(f"ds_read_b128 {ar(((2*j+par)*4+u)*4,4)}, v{240+2*(dst>>16)+par} offset:{(dst&0xffff)+u*2048}")

def b_epilogue():
    t = vFR
    A(f"v_and_b32 v15, 1, v0\nv_and_b32 v16, 2, v0\nv_sub_u32 v17, 1, v16\nv_sub_u32 v18, 1, v15\nv_mul_i32_i24 v12, v17, v18\nv_mul_i32_i24 v13, v17, v15\nv_sub_u32 v14, v18, v15")
    A("v_cvt_f32_i32 v12, v12\nv_cvt_f32_i32 v13, v13\nv_cvt_f32_i32 v14, v14\ns_nop 1")
    for p in range(0, 8, 2):
        a = [vr(vAB + 16 * m + p, 2) for m in range(4)]; b = [vr(vAB + 16 * m + 8 + p, 2) for m in range(4)]
        A(f"v_pk_fma_f32 {a[0]}, {a[2]}, v[14:15], {a[0]} op_sel_hi:[1,0,1]\nv_pk_fma_f32 {b[0]}, {b[2]}, v[14:15], {b[0]} op_sel_hi:[1,0,1]")
        A(f"v_pk_add_f32 {a[2]}, {a[1]}, {a[3]}\nv_pk_add_f32 {b[2]}, {b[1]}, {b[3]}")
        A(f"v_pk_add_f32 {a[1]}, {a[1]}, {a[3]} neg_lo:[0,1] neg_hi:[0,1]\nv_pk_add_f32 {b[1]}, {b[1]}, {b[3]} neg_lo:[0,1] neg_hi:[0,1]")
        A(f"v_pk_fma_f32 {a[0]}, {a[2]}, v[12:13], {a[0]} op_sel_hi:[1,0,1]\nv_pk_fma_f32 {b[0]}, {b[2]}, v[12:13], {b[0]} op_sel_hi:[1,0,1]")
        A(f"v_pk_fma_f32 {a[0]}, {b[1]}, v[12:13], {a[0]} op_sel:[0,1,0] op_sel_hi:[1,1,1]")
        A(f"v_pk_fma_f32 {b[0]}, {a[1]}, v[12:13], {b[0]} op_sel:[0,1,0] op_sel_hi:[1,1,1] neg_lo:[1,0,0] neg_hi:[1,0,0]")
    for ty in (0, 1):
        for k in range(4): A(f"v_cvt_pk_bf16_f32 {vr(t+4*ty+k)}, {vr(vAB+8*ty+2*k)}, {vr(vAB+8*ty+2*k+1)}")
    A("s_nop 1")
    D = vAB + 16
    for ty in (0, 1):
        for J in (0, 1): mfma(vr(D + 8 * ty + 4 * J, 4), vr(vR32 + 4 * J, 4), vr(t + 4 * ty, 4), "0")
    A(f"v_mul_f32 v11, {fbits(1.4426950408889634)}, {vr(vGA)}\nv_exp_f32 v12, v11\nv_exp_f32 v13, -v11\ns_nop 0\nv_add_f32 v12, 1.0, v12\nv_add_f32 v13, 1.0, v13\nv_rcp_f32 {vOMG}, v12\nv_rcp_f32 {vG}, v13")
    A(f"s_mul_i32 {sT0}, {sR}, 4352\ns_lshl_b32 {sT1}, {sC}, 9\ns_add_u32 {sT0}, {sT0}, {sT1}\ns_lshl_b32 {sT2}, {sET}, 8\ns_add_u32 {sT0}, {sT0}, {sT2}")
    A(f"s_lshl_b32 {sT2}, {sSH}, 3\ns_add_u32 {sT0}, {sT0}, {sT2}\ns_add_u32 {sT0}, {sT0}, {F2}\ns_mov_b32 {sT3}, {2*139264}")
    A(f"v_lshlrev_b32 v14, 4, {vI16}\nv_mad_u32_u24 v14, {vQ}, {sT3}, v14\nv_add_u32 v14, {sT0}, v14")
    for J in (0, 1):
        for z in (0, 1):
            u = t + 8 + 2 * (2 * J + z)
            A(f"v_cvt_pk_bf16_f32 {vr(u)}, {vr(D+4*J+2*z)}, {vr(D+4*J+2*z+1)}\nv_cvt_pk_bf16_f32 {vr(u+1)}, {vr(D+8+4*J+2*z)}, {vr(D+8+4*J+2*z+1)}")
    lsk = A.lab("Lnosp")
    A.lock += 1
    A(f"s_add_u32 {sT1}, {sET}, {sC}\ns_cmp_lg_u32 {sT1}, 0\ns_cbranch_scc1 {lsk}")
    A(f"s_mov_b32 exec_lo, 0x00010001\ns_mov_b32 exec_hi, 0x00010001\nv_mov_b32 {vr(t+17)}, 0")
    for k in range(4):
        A(f"v_mov_b32 {vr(t+16)}, {vr(t+9+2*k)}\nv_mov_b32 {vr(t+9+2*k)}, 0\ns_mov_b32 {sT1}, {(8*(k>>1)+(k&1))*139264+4096}")
        A(f"buffer_store_dwordx2 {vr(t+16,2)}, v14, {sWS}, {sT1} offen sc1\ns_nop 1")
    A(f"s_mov_b64 exec, -1\n{lsk}:")
    A.lock -= 1
    for k in range(4):
        A(f"s_mov_b32 {sT1}, {(8*(k>>1)+(k&1))*139264}")
        tokF = A.vmem(f"buffer_store_dwordx2 {vr(t+8+2*k,2)}, v14, {sWS}, {sT1} offen sc1")
    gelu(vZ, 32, vFR + 20)
    A(f"s_lshl_b32 {sT0}, {sW}, 12\ns_add_u32 {sT0}, {sT0}, {Z1B}\nv_lshlrev_b32 v12, 3, {vLane}\nv_add_u32 v17, {sT0}, v12\ns_lshl_b32 {sT0}, {sET}, 11\nv_add_u32 v12, {sT0}, v17\nv_xor_b32 v13, 4096, v12")
    for xt in (0, 1):
        for i in range(4):
            b = vZ + 16 * xt + 4 * i
            A(f"v_cvt_pk_bf16_f32 {vr(b)}, {vr(b)}, {vr(b+1)}\nv_cvt_pk_bf16_f32 {vr(b+1)}, {vr(b+2)}, {vr(b+3)}")
            A.ds(f"ds_write_b64 v{12+xt}, {vr(b,2)} offset:{i*512}")
    A(f"v_lshlrev_b32 {vB}, 16, {vB}")
    return tokF
Z1P = 100
def flagF(tokF):
    A.wait_all_lg(); A.flush(); A.wait_vm(tokF); A("s_barrier")
    A(f"s_lshl_b32 {sT0}, {sC}, 8\ns_lshl_b32 {sT1}, {sR}, 3\ns_add_u32 {sT0}, {sT0}, {sT1}\ns_add_u32 {sT0}, {sT0}, {FLAGF}\nv_mov_b32 v11, 0")
    masked(1, 0, lambda: A.vmem(f"buffer_store_dwordx2 v[38:39], v11, {sWS}, {sT0} offen sc1"))
    for ft in range(7): A.ds(f"ds_read_b64 {vr(Z1P+2*ft,2)}, v17 offset:{ft*512}")
LDZ = [f"buffer_load_dwordx2 v[18:19], v17, {sWS}, {sT3} offen sc1"]
def flagZ_issue():
    A(f"s_mul_i32 {sT0}, {sC}, 7\ns_add_u32 {sT1}, {sT0}, 6\ns_lshr_b32 {sT0}, {sT0}, 3\ns_lshr_b32 {sT1}, {sT1}, 3\ns_sub_u32 {sT1}, {sT1}, {sT0}\ns_lshl_b32 {sT1}, {sT1}, 10")
    A(f"s_lshl_b32 {sT0}, {sT0}, 10\ns_lshl_b32 {sT2}, {sW}, 8\ns_add_u32 {sT0}, {sT0}, {sT2}\ns_add_u32 {sT3}, {sT0}, {FLAGZ}")
    A(f"v_and_b32 v17, 31, v0\nv_lshlrev_b32 v17, 3, v17\nv_lshrrev_b32 v11, 5, {vLane}\nv_mad_u32_u24 v17, v11, {sT1}, v17")
    return A.vmem(LDZ[0])

def srd(b, src, size): A(f"s_mov_b32 s{b}, s{src}\ns_mov_b32 s{b+1}, s{src+1}\ns_mov_b32 s{b+2}, {size}\ns_mov_b32 s{b+3}, 0x20000")

def prologue():
    A("s_cmp_ge_u32 s2, 256\ns_cbranch_scc1 Lend")
    A("s_load_dwordx16 s[60:75], s[0:1], 0\ns_load_dwordx8 s[80:87], s[0:1], 64\ns_load_dwordx4 s[88:91], s[0:1], 96")
    if OPT["prof"]: A("s_memrealtime s[98:99]\ns_memtime s[96:97]")
    if OPT["diag"] >= 0: A("s_memrealtime s[98:99]\ns_memrealtime s[96:97]")
    A(f"s_getpc_b64 s[44:45]\ns_mov_b32 s46, Lend-{NAME}_kernel\ns_mov_b32 s47, 0x20000")
    A("s_lshr_b32 s3, s2, 3\ns_mul_i32 s76, s3, 1536\nv_and_b32 v11, 15, v0\nv_lshlrev_b32 v11, 7, v11\nv_add_u32 v11, s76, v11")
    A.vmem(f"buffer_load_dword v12, v11, {sTMP}, 0 offen")
    A("s_and_b32 s76, s2, 7")
    if OPT["xmap"] == 1:
        A(f"s_lshr_b32 {sR}, s3, 3\ns_lshl_b32 s77, s76, 2\ns_add_u32 {sR}, {sR}, s77\ns_and_b32 {sC}, s3, 7")
        A(f"s_mov_b32 s78, 0x76543210\ns_mov_b32 s79, s78\ns_lshl_b32 s77, {sC}, 2\ns_lshr_b64 s[78:79], s[78:79], s77\ns_mov_b32 {sROT}, s78")
    else:
        A(f"s_lshr_b32 {sR}, s76, 1\ns_lshl_b32 {sR}, {sR}, 3\ns_lshr_b32 s77, s3, 2\ns_add_u32 {sR}, {sR}, s77")
        A(f"s_and_b32 {sC}, s76, 1\ns_lshl_b32 {sC}, {sC}, 2\ns_and_b32 s77, s3, 3\ns_add_u32 {sC}, {sC}, s77")
        A(f"s_lshl_b32 s77, s77, 2\ns_lshr_b32 {sROT}, 0x64206420, s77\ns_and_b32 {sROT}, {sROT}, 0xffff\ns_or_b32 {sROT}, {sROT}, 0x64200000\ns_bitcmp1_b32 s76, 0\ns_cselect_b32 s77, 0, 16\ns_lshl_b32 s77, 0x1111, s77\ns_or_b32 {sROT}, {sROT}, s77")
    if OPT["lead"]:
        A(f"s_and_b32 s77, {sR}, 7\ns_cmp_eq_u32 {sC}, 7\ns_cselect_b32 {sCA}, s77, {sC}\ns_cmp_eq_u32 {sC}, s77\ns_cselect_b32 {sCA}, 7, {sCA}")
    else: A(f"s_mov_b32 {sCA}, {sC}")
    if not OPT["rotc"]: A(f"s_mov_b32 {sROT}, 0x76543210")
    A(f"v_lshrrev_b32 v11, 6, v0\nv_and_b32 {vLane}, 63, v0\nv_readfirstlane_b32 {sW}, v11")
    A(f"v_and_b32 {vI16}, 15, v0\nv_lshrrev_b32 {vQ}, 4, {vLane}\nv_lshlrev_b32 {vL16}, 4, {vLane}")
    A(f"s_lshl_b32 {sW2048}, {sW}, 11\ns_lshl_b32 {sW8192}, {sW}, 13\ns_add_u32 s76, {sR}, {sC}")
    if not OPT["rota"]: A("s_mov_b32 s76, 0")
    for G in range(4):
        A(f"s_add_u32 s77, s76, {G}\ns_and_b32 s77, s77, 3\ns_lshl_b32 {sAX[G]}, s77, 8\ns_mul_i32 {sAW[G]}, s77, 458752")
    A(f"v_lshrrev_b32 v11, 3, {vLane}\nv_and_b32 v15, 7, v0\nv_lshrrev_b32 v16, 1, v11")
    A("v_xor_b32 v13, v15, v16\nv_lshlrev_b32 v13, 4, v13\nv_xor_b32 v14, 64, v13")
    A(f"s_lshl_b32 s76, {sR}, 16\ns_lshl_b32 s77, {sW}, 14\ns_add_u32 s76, s76, s77\nv_lshl_add_u32 v15, v11, 10, s76")
    A(f"v_add_u32 {vr(vXA[0])}, v15, v13\nv_add_u32 {vr(vXA[1])}, v15, v14\nv_add_u32 {vr(vXA[1])}, 7168, {vr(vXA[1])}")
    A(f"s_lshl_b32 s76, {sCA}, 8\ns_mul_i32 s77, {sW}, 114688\ns_add_u32 s76, s76, s77\ns_add_u32 s76, s76, 1792\ns_movk_i32 s77, 3584")
    A(f"v_lshlrev_b32 v15, 1, {vQ}\nv_xor_b32 v15, v15, {vI16}\nv_lshlrev_b32 v15, 4, v15\nv_mad_u32_u24 v16, {vQ}, s77, v15\nv_add_u32 v16, s76, v16\nv_xor_b32 v17, 128, v16")
    for i in range(8):
        A(f"v_add_u32 {vr(vWA[i])}, {(8*(i&3)+4*(i>>2))*3584 - 1024*(i&3)}, v{16+(i&1)}")
    A("s_waitcnt lgkmcnt(0)")
    srd(4, 60, 2097152); srd(8, 72, 1835008)
    A(f"s_load_dwordx2 s[92:93], s[90:91], {EPOCH}")

def setup2():
    srd(12, 74, 8388608); srd(16, 82, 917504)
    if OPT['fakez']: srd(44, 62, 8388608)
    srd(28, 90, WS_SIZE); srd(32, 86, 2097152); srd(36, 80, 4096); srd(40, 84, 1024)
    A(f"s_mul_i32 {sW7168}, {sW}, 7168\ns_and_b32 {sET}, {sW}, 1\ns_lshr_b32 {sSH}, {sW}, 1")
    A(f"s_mul_i32 s76, {sC}, 224\ns_mul_i32 s77, {sW}, 114688\ns_add_u32 s76, s76, s77\ns_movk_i32 s77, 3584\ns_movk_i32 s78, 4682")
    for i in range(7):
        A(f"v_add_u32 v15, {64*i}, {vLane}\nv_mul_u32_u24 v16, s78, v15\nv_lshrrev_b32 v16, 16, v16\nv_mul_u32_u24 v17, 14, v16\nv_sub_u32 v17, v15, v17")
        A("v_and_b32 v18, 12, v16\nv_lshlrev_b32 v18, 1, v18\nv_and_or_b32 v18, v16, 3, v18\nv_lshrrev_b32 v16, 4, v16\nv_lshl_add_u32 v18, v16, 2, v18")
        A(f"v_lshl_add_u32 v17, v17, 4, s76\nv_mad_u32_u24 {vr(vWoff[i])}, v18, s77, v17")
        if i & 3: A(f"v_subrev_u32 {vr(vWoff[i])}, {1024*(i&3)}, {vr(vWoff[i])}")
    A("v_and_b32 v17, 4, v11\nv_lshlrev_b32 v17, 1, v17\nv_and_or_b32 v17, v11, 3, v17")
    A(f"s_lshl_b32 s76, {sET}, 8\ns_lshl_b32 s77, {sSH}, 5\ns_add_u32 s76, s76, s77\ns_add_u32 s76, s76, {sR}")
    A("s_lshl_b32 s77, s76, 10\nv_lshl_add_u32 v15, v17, 16, s77")
    A(f"v_add_u32 {vr(vXR[0])}, v15, v13\nv_add_u32 {vr(vXR[1])}, v15, v14\nv_add_u32 {vr(vXR[1])}, {1024*1024-1024}, {vr(vXR[1])}")
    A(f"v_and_b32 v15, 12, {vI16}\nv_lshlrev_b32 v15, 1, v15\nv_and_or_b32 v15, {vI16}, 3, v15\nv_lshl_add_u32 {vTrow}, v15, 6, s76")
    A(f"s_lshl_b32 s77, {sR}, 12\ns_lshl_b32 s78, {sW}, 10\ns_add_u32 s77, s77, s78\nv_lshl_add_u32 v15, v17, 18, s77")
    A(f"v_add_u32 {vr(vCb[0])}, v15, v13\nv_add_u32 {vr(vCb[1])}, v15, v14\nv_add_u32 {vr(vCb[1])}, {1024*4096-1024}, {vr(vCb[1])}")
    for u in range(4):
        A(f"s_add_u32 s77, {sW}, {u}\ns_and_b32 s78, s77, 1\ns_lshl_b32 s78, s78, 20\ns_and_b32 s77, s77, 2\ns_lshl_b32 s77, s77, 16\ns_add_u32 {sCU[u]}, s77, s78")
    A(f"v_lshlrev_b32 v246, 1, {vTrow}")
    A(f"v_lshrrev_b32 v15, 1, {vI16}\nv_xor_b32 v15, v15, {vQ}\nv_lshlrev_b32 v15, 4, v15\nv_lshl_add_u32 {vXrd0}, {vI16}, 7, v15\nv_xor_b32 {vXrd1}, 64, {vXrd0}")
    A(f"v_lshrrev_b32 v15, 2, {vLane}\nv_mul_u32_u24 v15, 224, v15\nv_and_b32 v16, 3, v0\nv_lshl_add_u32 v15, v16, 3, v15\ns_lshl_b32 s76, {sET}, 7\nv_add_u32 {vWrd}, s76, v15\nv_add_u32 {vWrd2}, 0x10000, {vWrd}")
    A(f"v_add_u32 v240, {sW8192}, {vXrd0}\nv_add_u32 v241, {sW8192}, {vXrd1}")
    A("v_add_u32 v242, 0x10000, v240\nv_add_u32 v243, 0x10000, v241\nv_add_u32 v244, 0x20000, v240\nv_add_u32 v245, 0x20000, v241")
def twiddles():
    A(f"s_lshl_b32 s70, {sC}, 5\ns_lshl_b32 s71, {sET}, 4\ns_add_u32 s70, s70, s71\nv_add_u32 v11, s70, {vI16}\nv_cmp_eq_u32 vcc, 0, v11\nv_cvt_f32_u32 v11, v11\nv_lshlrev_b32 v15, 3, {vQ}\nv_cvt_f32_u32 v15, v15")
    A(f"v_mul_f32 v11, {fbits(1/512)}, v11\nv_mul_f32 v13, v11, v15\nv_cndmask_b32 v247, v11, 0.5, vcc\nv_add_f32 v14, {fbits(0.25)}, v13\nv_cndmask_b32 v14, v14, 0, vcc")
    gen_cos(lambda i: vWD + 8 * (i >> 2) + (i & 3), 16, "v11", "v13", lambda n: 32 * (n >> 3) + (n & 7))
    gen_cos(lambda i: vWD + 8 * (i >> 2) + 4 + (i & 3), 16, "v247", "v14", lambda n: 32 * (n >> 3) + (n & 7))
    A(f"v_lshrrev_b32 v11, 1, {vI16}\nv_cvt_f32_u32 v11, v11\nv_mul_f32 v11, {fbits(1/32)}, v11\nv_add_f32 v247, {fbits(0.25)}, v11")
    A(f"v_and_b32 v13, 1, v0\nv_cvt_f32_u32 v13, v13\nv_mul_f32 v13, {fbits(0.25)}, v13\nv_cmp_eq_u32 vcc, 1, {vI16}\nv_mov_b32 v14, v13\ns_nop 0\nv_cndmask_b32 v11, v11, 0.5, vcc\nv_cndmask_b32 v13, v13, 0, vcc")
    A(f"s_lshl_b32 s70, {sET}, 2\nv_cvt_f32_u32 v248, s70\nv_sub_f32 v252, v15, v248\nv_add_f32 v248, v15, v248")
    for J, (fr, ph) in enumerate((("v11", "v13"), ("v247", "v14"))):
        A(f"v_fma_f32 v253, {fr}, v248, {ph}\nv_fma_f32 v254, {fr}, v252, {ph}")
        gen_cos(lambda i: vR32 + 4 * J + i, 2, fr, "v253", lambda n: n)
        gen_cos(lambda i: vR32 + 4 * J + 2 + i, 2, fr, "v254", lambda n: 4 + n)
def consts():
    A("s_waitcnt lgkmcnt(0)")
    A("s_mul_i32 s52, s92, 0x9E3779B1\ns_add_u32 s52, s52, 0x7F4A7C15\ns_mul_i32 s53, s93, 0x85EBCA6B\ns_add_u32 s53, s53, 0xC2B2AE35")
    c0 = -2 * 0.7978845608028654 * 1.4426950408889634
    A(f"s_mov_b32 s76, {fbits(c0*0.044715)}\ns_mov_b32 s77, {fbits(c0)}\nv_mov_b32 v38, s52\nv_mov_b32 v39, s53")
    if OPT["prof"]: A("s_mov_b32 s80, s96")

def pushc(j): A.push(it_c(j, CS[j]), "C%d" % j)
def cnext(j):
    c_read(j); A.wait_all_lg()
    if j + 2 < 8: pushc(j + 2)
ring = [48, 52, 56, 60, 64, 20, 24, 28, 228, 232, 236] + [40, 44, 32, 240, 244, 248, 252]
NPRE = 11
tz = {}
def z_item(n):
    ks, ft = divmod(n, 7); pre = ""
    if ft == 0: pre = f"s_bfe_u32 s66, {sROT}, {(4<<16)|(4*(ks>>1))}\ns_mul_i32 s66, s66, 114688" + ("\ns_add_u32 s66, s66, 57344" if ks & 1 else "")
    if ft == 4: pre = "s_add_u32 s66, s66, 4096"
    return (pre, f"buffer_load_dwordx4 {vr(ring[n%len(ring)],4)}, v37, {sWS}, s66 offen offset:{(ft&3)*1024} sc1")
def mid_B(fz):
    stageB_setup()
    P = Pipe()
    st = {}
    def h0(): gbar("B0", False); A.front(it_xr(XB[1], 1), "B1x")
    def h1():
        fz(); A.stamp(7)
        A.wait_named("B1w"); gbar("B1x", False); A.push(it_xr(XB[2], 2) + it_w1(WB[2], 2), "B2"); cnext(2)
    def h2():
        gbar(None, False); A.front(it_xr(XB[3], 3) + it_w1(WB[3], 3), "B3") if "B2" in A.tok else A.push(it_xr(XB[3], 3) + it_w1(WB[3], 3), "B3")
        cnext(3); gbar("B2", False)
    def h3():
        cnext(4); gbar("B3", False); st["z"] = flagZ_issue()
    for G, h in enumerate((h0, h1, h2, h3)):
        P.hook(h); stageB(P, G)
    P.run(OPT["look"])
    cnext(5)
    A.stamp(8)
    poll(LDZ, tagcmp([18]), st["z"])
    A(f"s_mul_i32 {sT0}, {sC}, 7168\ns_mul_i32 {sT1}, {sW}, {16*57344}\ns_add_u32 {sT0}, {sT0}, {sT1}\ns_add_u32 {sT0}, {sT0}, {Z2N}\nv_add_u32 v37, {sT0}, {vL16}")
    for n in range(NPRE): A.push([z_item(n)], "z%d" % n)
    tokF = b_epilogue()
    A.stamp(9)
    flagF(tokF)
    for n in range(NPRE): tz[n] = A.tok["z%d" % n]

def front_main():
    for G in range(3): A.push(it_xa(G) + it_w2(PR[G], G), "A%d" % G)
    A.push(it_xa(3))
    A.flush("A0")
    A.lock += 1
    setup2(); consts()
    A(f"v_lshrrev_b32 v15, 2, {vLane}\nv_lshlrev_b32 v16, 8, v15\nv_and_b32 v15, 7, v15\nv_lshl_add_u32 v16, v15, 5, v16\nv_and_b32 v15, 3, v0\nv_lshl_add_u32 v16, v15, 3, v16\ns_lshl_b32 {sT0}, {sET}, 7\nv_xor_b32 v16, {sT0}, v16")
    for i in range(4): A(f"v_xor_b32 {vr(vTA[i])}, {32*i}, v16\nv_add_u32 {vr(vTA[4+i])}, 0x10000, {vr(vTA[i])}")
    A(f"s_lshl_b32 {sT0}, {sSH}, 12\ns_add_u32 {sT0}, {sT0}, {SL[6]}\nv_add_u32 v13, {sT0}, {vXrd0}\nv_add_u32 v14, {sT0}, {vXrd1}")
    A.lock -= 1
    A.flush("A1")
    A.stamp(1)
    A.per = OPT["pera"]
    P = Pipe()
    for G in range(4):
        def h(G=G):
            gbar("A%d" % G, False)
            if G == 1: A.push(it_w2(PR[0], 3), "A3")
            if G == 2: pushc(0)
        P.hook(h); slot = G % 3
        for kk in range(4):
            xf = vFR + 32 + 8 * ((4 * G + kk) % 3)
            for i in range(4):
                wf = vFR + 4 * (cnt[0] % NF); cnt[0] += 1
                reads = []
                if i == 0: reads += [f"ds_read_b128 {vr(xf+4*xt,4)}, v{13+(kk&1)} offset:{G*16384+(kk>>1)*8192+xt*2048}" for xt in (0, 1)]
                for half in (0, 1):
                    reads.append(f"ds_read_b64_tr_b16 {vr(wf+2*half,2)}, {vr(vTA[i + (4 if slot == 2 else 0)])} offset:{(PR[slot]&0xffff) + kk*8192 + half*4096}")
                z0 = "0" if (G == 0 and kk == 0) else None
                def f(wf=wf, xf=xf, i=i, z0=z0):
                    for xt in (0, 1): mfma(vr(vZ + 16 * xt + 4 * i, 4), vr(wf, 4), vr(xf + 4 * xt, 4), z0)
                P.add(reads, f)
    P.run(OPT["look"])
    A.flush()
    A.per = OPT["per"]
    A("s_barrier")
    A.stamp(2)
    A("s_nop 7")
    gelu(vZ, 32, vFR)
    t = vFR
    for xt in (0, 1):
        z = vZ + 16 * xt
        A(f"v_pk_add_f32 {vr(t,2)}, {vr(z,2)}, {vr(z+2,2)}\nv_pk_mul_f32 {vr(t+2,2)}, {vr(z,2)}, {vr(z,2)}")
        for p in range(2, 16, 2):
            if p > 2: A(f"v_pk_add_f32 {vr(t,2)}, {vr(t,2)}, {vr(z+p,2)}")
            A(f"v_pk_fma_f32 {vr(t+2,2)}, {vr(z+p,2)}, {vr(z+p,2)}, {vr(t+2,2)}")
        A(f"v_add_f32 {vr(t+4+2*xt)}, {vr(t)}, {vr(t+1)}\nv_add_f32 {vr(t+5+2*xt)}, {vr(t+2)}, {vr(t+3)}")
    xreduce((P16, P32), [t + 4, t + 5, t + 6, t + 7], [t, t + 1, t + 2, t + 3])
    A(f"v_cmp_eq_u32 vcc, 1, {vQ}\ns_lshl_b32 {sT0}, {sR}, 1\ns_add_u32 {sT0}, {sT0}, {sSH}\nv_cndmask_b32 {vr(t+4)}, {vr(t+4)}, {vr(t+6)}, vcc\nv_cndmask_b32 {vr(t+5)}, {vr(t+5)}, {vr(t+7)}, vcc")
    A(f"v_mov_b32 {vr(t+6)}, s52\nv_mov_b32 {vr(t+7)}, s53\ns_lshl_b32 {sT0}, {sT0}, 13\ns_add_u32 {sT0}, {sT0}, {STAT}\nv_add_u32 v249, {sT0}, {vL16}")
    A(f"s_lshl_b32 {sT1}, {sCA}, 10\ns_lshl_b32 {sT2}, {sET}, 9\ns_add_u32 {sT1}, {sT1}, {sT2}\nv_add_u32 v250, 4096, v249")
    masked(-1, 0, lambda: A.vmem(f"buffer_store_dwordx4 {vr(t+4,4)}, v249, {sWS}, {sT1} offen sc1"))

def front2():
    twiddles()
    A.stamp(3)
    pushc(1); A.flush()
    g = 128
    ld = [f"buffer_load_dwordx4 {vr(g+4*k,4)}, v{249 + (k>>2)}, {sWS}, 0 offen offset:{1024*(k&3)} sc1" for k in range(7)]
    for l in ld: tokS = A.vmem(l)
    A.push(IT_GATE + it_xr(XB[0], 0) + it_w1(WB[0], 0), "B0"); A.push(it_w1(WB[1], 1), "B1w")
    cnext(0)
    A(f"v_and_b32 v11, 3, {vI16}\nv_bfe_u32 v12, {vI16}, 3, 1\nv_lshl_add_u32 v11, v12, 2, v11\nv_bfe_u32 v15, v11, 1, 2\nv_bfe_u32 v12, {vI16}, 2, 1\nv_lshl_add_u32 v11, v12, 4, v11")
    A(f"s_lshl_b32 {sT0}, {sW}, 12\ns_add_u32 {sT0}, {sT0}, {SCR}\nv_lshlrev_b32 v11, 7, v11\nv_lshl_add_u32 v11, v15, 5, v11\nv_lshl_add_u32 v11, {vQ}, 3, v11\nv_add_u32 v11, {sT0}, v11")
    A(f"v_lshrrev_b32 v12, 2, {vLane}\nv_lshlrev_b32 v12, 7, v12\nv_bfe_u32 v15, {vLane}, 3, 2\nv_lshl_add_u32 v12, v15, 5, v12\nv_and_b32 v15, 3, v0\nv_lshl_add_u32 v12, v15, 3, v12\nv_add_u32 v12, {sT0}, v12")
    for i in range(4): A(f"v_xor_b32 v{160+i}, {32*i}, v11\nv_xor_b32 v{164+i}, {32*i}, v12")
    A(f"s_lshl_b32 {sT1}, {sR}, 1\ns_add_u32 {sT1}, {sT1}, {sSH}\ns_mul_i32 {sT0}, {sT1}, 57344\ns_lshl_b32 {sT1}, {sCA}, 13\ns_add_u32 {sT0}, {sT0}, {sT1}")
    A(f"s_lshl_b32 {sT1}, {sET}, 12\ns_add_u32 {sT0}, {sT0}, {sT1}\ns_add_u32 {sT0}, {sT0}, {Z2N}\ns_cmp_eq_u32 {sCA}, 7\ns_cselect_b32 {sT0}, {WS_SIZE}, {sT0}")
    if OPT["fb0"]: A.flush("B0")
    poll(ld, tagcmp([g + 4 * k + 2 for k in range(7)]), tokS, True)
    A.stamp(4)
    for k in range(1, 7): A(f"v_pk_add_f32 {vr(g,2)}, {vr(g,2)}, {vr(g+4*k,2)}")
    xreduce((P32,), [g, g + 1], [g + 2, g + 3])
    A(f"v_mul_f32 {vr(g)}, {fbits(1/896)}, {vr(g)}\nv_mul_f32 {vr(g+1)}, {fbits(1/896)}, {vr(g+1)}")
    A(f"v_fma_f32 {vr(g+1)}, -{vr(g)}, {vr(g)}, {vr(g+1)}\nv_max_f32 {vr(g+1)}, 0, {vr(g+1)}\nv_add_f32 {vr(g+1)}, {fbits(1e-5)}, {vr(g+1)}\nv_rsq_f32 {vr(g+2)}, {vr(g+1)}\ns_nop 0")
    A(f"v_mul_f32_e64 {vr(g+3)}, -{vr(g)}, {vr(g+2)}\nv_mov_b32 {vr(g+4)}, {vr(g+2)}\nv_mov_b32 {vr(g+5)}, {vr(g+3)}\ns_nop 1\n{P16} {vr(g+2)}, {vr(g+4)}\n{P16} {vr(g+3)}, {vr(g+5)}\ns_nop 1")
    for xt in (0, 1):
        for i in range(4):
            b = vZ + 16 * xt + 4 * i; pp = vr(g + 2 + 2 * xt, 2)
            for p in (0, 2): A(f"v_pk_fma_f32 {vr(b+p,2)}, {vr(b+p,2)}, {pp}, {pp} op_sel:[0,0,1] op_sel_hi:[1,0,1]")
            A(f"v_cvt_pk_bf16_f32 {vr(b)}, {vr(b)}, {vr(b+1)}\nv_cvt_pk_bf16_f32 {vr(b+1)}, {vr(b+2)}, {vr(b+3)}")
            A.ds(f"ds_write_b64 v{160+i}, {vr(b,2)} offset:{xt*1024}")
    A.wait_all_lg()
    tk = []
    for i in range(4):
        A.ds(f"ds_read_b64_tr_b16 {vr(144+4*i,2)}, v{164+i}")
        tk.append(A.ds(f"ds_read_b64_tr_b16 {vr(144+4*i+2,2)}, v{164+i} offset:2048"))
    for i in range(4):
        A.wait_lg(tk[i])
        tokZ = A.vmem(f"buffer_store_dwordx4 {vr(144+4*i,4)}, {vL16}, {sWS}, {sT0} offen offset:{1024*i} sc1")
    A.stamp(5)
    cnext(1)
    def fz():
        A.wait_vm(tokZ)
        A(f"s_lshl_b32 {sT0}, {sCA}, 10\ns_lshl_b32 {sT1}, {sR}, 5\ns_add_u32 {sT0}, {sT0}, {sT1}\ns_lshl_b32 {sT1}, {sW}, 3\ns_add_u32 {sT0}, {sT0}, {sT1}\ns_add_u32 {sT0}, {sT0}, {FLAGZ}\nv_mov_b32 v11, 0")
        masked(1, 0, lambda: A.vmem(f"buffer_store_dwordx2 v[38:39], v11, {sWS}, {sT0} offen sc1"))
    A.stamp(6)
    return fz

def front_pref():
    setup2()
    A(f"s_lshl_b32 {sT0}, {sR}, 4\ns_lshl_b32 {sT1}, {sW}, 2\ns_add_u32 {sT0}, {sT0}, {sT1}\ns_mul_i32 {sT0}, {sT0}, 3584\ns_movk_i32 {sT1}, 3584")
    A(f"v_lshlrev_b32 v15, 7, {vI16}\nv_mad_u32_u24 v15, {vQ}, {sT1}, v15")
    A.vmem(f"buffer_load_dword v12, v15, {sWIN}, {sT0} offen")
    consts()
    pushc(0); A.flush()
    A(f"s_lshl_b32 {sT0}, {sR}, 2\ns_add_u32 {sT0}, {sT0}, {sW}\ns_mul_i32 {sT0}, {sT0}, 7168\nv_lshlrev_b32 v15, 7, {vLane}\nv_mov_b32 v249, {WS_SIZE}\nv_mov_b32 v250, {WS_SIZE}")
    A.vmem(f"buffer_load_dword v255, v15, {sWOUT}, {sT0} offen")
    for k in range(1, 3): A.stamp(k)

def back():
    A.stamp(10); A.stamp(11)
    ACC = 116; CF = 68; R = len(ring)
    def zload(n):
        if n >= 112: return
        pre, ins = z_item(n)
        if pre: A.raw(pre)
        tz[n] = A.vmem(ins)
    F = []
    F += [f"v_lshrrev_b32 v14, 3, {vLane}", "v_and_b32 v15, 7, v0", "v_and_b32 v16, 6, v14", "v_xor_b32 v15, v15, v16", "v_lshlrev_b32 v15, 4, v15", "v_lshl_add_u32 v14, v14, 10, v15"]
    F += [f"s_mul_i32 {sT0}, {sW}, {224*1024}\ns_lshl_b32 {sT1}, {sC}, 7", f"s_add_u32 {sT0}, {sT0}, {sT1}\nv_add_u32 v14, {sT0}, v14", "v_add_u32 v15, 7168, v14"]
    F += [f"s_mul_i32 s20, {sW}, 20480\ns_lshl_b32 s21, {sW}, 10"]
    for u in (1, 2, 3):
        F += [f"s_add_u32 {sT0}, {sW}, {u}\ns_and_b32 {sT0}, {sT0}, 3", f"s_mul_i32 {sT0}, {sT0}, 21504\ns_add_u32 {sT0}, {sT0}, {(u-1)*7168}", f"v_add_u32 v{15+u}, {sT0}, {vL16}"]
    F += [f"s_mul_i32 {sT0}, {sW}, 21504\nv_add_u32 v19, {sT0}, {vL16}"]
    F += [f"s_sub_u32 {sT0}, 32, {sR}\ns_min_u32 {sT0}, {sT0}, {sR}", f"s_and_b32 {sT0}, {sT0}, 15\ns_mul_i32 {sT0}, {sT0}, 139264", f"s_add_u32 {sT0}, {sT0}, {F2}\ns_lshl_b32 {sT1}, {sC}, 6",
          f"s_lshl_b32 {sT3}, {sW}, 4\ns_add_u32 {sT1}, {sT1}, {sT3}", f"v_add_u32 v12, {sT1}, {vI16}", "v_sub_u32 v13, 512, v12", "v_min_u32 v12, v12, v13",
          f"s_mov_b32 {sT2}, {8*4352}\nv_lshlrev_b32 v12, 4, v12", f"v_mad_u32_u24 v12, {vQ}, {sT2}, v12", f"v_add_u32 v12, {sT0}, v12"]
    F += [f"v_lshrrev_b32 v13, 5, {vLane}", "v_mul_u32_u24 v13, 15, v13", f"v_add_u32 v13, {sT1}, v13", "v_sub_u32 v114, 512, v13", "v_min_u32 v13, v13, v114",
          "v_bfe_u32 v13, v13, 5, 3", "v_and_b32 v114, 31, v0", "v_lshl_add_u32 v13, v13, 5, v114", "v_lshlrev_b32 v13, 3, v13", f"v_add_u32 v13, {FLAGF}, v13"]
    F += [f"s_mov_b32 {sSEL[0]}, 0x03020100\ns_mov_b32 {sSEL[1]}, 0x01000302", f"s_cmp_lt_u32 {sR}, 16\ns_cselect_b32 {sM0}, 0x80000000, 0", f"s_or_b32 {sM1}, {sM0}, 0x8000",
          f"s_cmp_eq_u32 {sR}, 0\ns_cselect_b32 {sSEL[0]}, 0x0c0c0100, {sSEL[0]}\ns_cselect_b32 {sSEL[1]}, 0x0c0c0302, {sSEL[1]}",
          f"s_cmp_eq_u32 {sR}, 16\ns_cselect_b32 {sSEL[0]}, 0x01000c0c, {sSEL[0]}\ns_cselect_b32 {sSEL[1]}, 0x03020c0c, {sSEL[1]}\ns_cselect_b32 {sM1}, 0x80000000, {sM1}",
          f"s_cmp_ge_u32 {sC}, 4\ns_cselect_b32 {sT3}, 0x80008000, 0\ns_xor_b32 {sM1}, {sM1}, {sT3}"]
    F += [f"v_cvt_f32_u32 v4, {vTrow}", f"v_lshlrev_b32 v5, 3, {vQ}", "v_cvt_f32_u32 v5, v5", f"v_mul_f32 v4, {fbits(1/2048)}, v4", "v_mul_f32 v5, v4, v5"]
    F += [f"v_lshlrev_b32 v6, 10, {vTrow}", f"v_and_b32 v114, 1, {vQ}", "v_lshl_add_u32 v6, v114, 5, v6", f"v_lshrrev_b32 v114, 1, {vQ}", "v_lshl_add_u32 v6, v114, 4, v6"]
    F += [f"s_mul_i32 {sKB}, {sR}, {4*28672}\ns_add_u32 {sKB}, {sKB}, {HB}", f"s_lshr_b32 {sT1}, {sC}, 1\ns_mul_i32 {sT1}, {sT1}, 7168", f"s_mul_i32 {sT0}, {sW}, 28672\ns_add_u32 {sT1}, {sT1}, {sT0}",
          f"s_add_u32 {sT1}, {sT1}, {sKB}\ns_and_b32 {sT2}, {sC}, 1", f"s_lshl_b32 s22, {sT2}, 12\ns_add_u32 s22, s22, {sT1}", f"s_lshl_b32 s23, {sT2}, 9\ns_add_u32 s23, s23, {sT1}", f"s_add_u32 {sKB}, {sKB}, {sW7168}"]
    for u in range(4):
        F += [f"s_add_u32 {sT0}, {sW}, {u}\ns_and_b32 {sT0}, {sT0}, 3", f"s_mul_i32 {sT0}, {sT0}, 28672\ns_add_u32 s{24+u}, {sT0}, {sKB}"]
    F += [f"s_lshl_b32 {sT0}, {sR}, 8\ns_add_u32 {sT0}, {sT0}, {FLAGH}", f"s_lshl_b32 {sT1}, {sW}, 6\ns_add_u32 s45, {sT0}, {sT1}",
          f"s_lshl_b32 {sT1}, {sC}, 5\ns_add_u32 {sT0}, {sT0}, {sT1}", f"s_lshl_b32 {sT1}, {sW}, 3\ns_add_u32 s44, {sT0}, {sT1}", f"v_lshlrev_b32 v11, 3, {vLane}"]
    nsetup = len(F)
    for k in range(8):
        for g2 in (0, 1):
            d = CF + 4 * k + 2 * g2
            F += [f"v_fmamk_f32 v114, v4, {fbits(float(k+32*g2))}, v5", "v_fract_f32 v114, v114", "v_sin_f32 v115, -v114", "v_cos_f32 v114, v114",
                  f"v_mul_f32 v115, {vG}, v115", f"v_mul_f32 v114, {vG}, v114", "v_cvt_pk_bf16_f32 v114, v114, v115",
                  f"v_perm_b32 {vr(d)}, v114, v114, {sSEL[0]}", f"v_perm_b32 {vr(d+1)}, v114, v114, {sSEL[1]}",
                  f"v_xor_b32 {vr(d)}, {sM0}, {vr(d)}", f"v_xor_b32 {vr(d+1)}, {sM1}, {vr(d+1)}"]
    F = deque(F)
    def wout_tiles(ls):
        if ls < 3: return (32 * ls, 32 * ls + 16)
        if ls == 3: return (96, 208)
        return (112 + 32 * (ls - 4), 112 + 32 * (ls - 4) + 16)
    FL = 98304
    def it_wout(ls):
        it = []
        for hh, f0 in enumerate(wout_tiles(ls)):
            m = f"s_add_u32 m0, {sW8192}, {131072 + ls*4096 + hh*2048}" if ls < 2 else f"s_add_u32 m0, s20, {(ls-2)*4096 + hh*2048}"
            it.append((m + f"\ns_mov_b32 {sBG}, {f0*1024}", f"buffer_load_dwordx4 v14, {sWOUT}, {sBG} offen lds"))
            it.append(("", f"buffer_load_dwordx4 v15, {sWOUT}, {sBG} offen offset:1024 lds"))
        return it
    def red_write(ft):
        for u in (1, 2, 3): A.ds(f"ds_write_b128 v{15+u}, {vr(ACC+(ft*4+u)*4,4)} offset:{ft*1024}")
    ldF = [f"buffer_load_dwordx2 v[2:3], v13, {sWS}, 0 offen sc1"]
    A.per = 60
    NPF = OPT["npf"]
    c_read(6); c_read(7)
    nxt = NPRE
    for n in range(112):
        ks, ft = divmod(n, 7)
        if n == 4: A.wait_all_lg()
        if n == 40: A("s_barrier")
        if n == NPF + R + 1: poll(ldF, tagcmp([2]), tokPF)
        A.wait_vm(tz[n])
        if OPT["p2st"] and n in (0, 14, 28, 42, 56, 70, 84, 93, 105): A.stamp(1 + (0, 14, 28, 42, 56, 70, 84, 93, 105).index(n))
        for u in range(4):
            mfma(vr(ACC + (ft * 4 + u) * 4, 4), vr(ring[n % R], 4), ar((ks * 4 + u) * 4, 4), "0" if ks == 0 else None)
            if n >= 4 and F: A.raw(F.popleft())
            if u == 1 and nxt < n + R and nxt < 112: zload(nxt); nxt += 1
        if nxt <= n + R and nxt < 112: zload(nxt); nxt += 1
        if n == NPF:
            assert n * 4 - 16 > nsetup
            for l in ldF: tokPF = A.vmem(l)
        if n + R == 112:
            A.push([(f"s_add_u32 m0, s21, {FL+k*4096}\ns_mov_b32 {sBG}, {k*4352}", f"buffer_load_dwordx4 v12, {sWS}, {sBG} offen sc1 lds") for k in range(8)])
            A.push(it_wout(0) + it_wout(1), "W1")
        if ks == 15 and ft >= 2: red_write(ft - 2)
    assert not F
    A.flush()
    A("s_nop 3"); red_write(5); A("s_nop 1"); red_write(6)
    A.stamp(12)
    hp = 40
    A(f"v_mov_b32 v37, {vB}")
    Z = 228
    for k in range(14):
        A(f"v_lshlrev_b32 {vr(Z+2*k)}, 16, {vr(Z1P+k)}\nv_and_b32 {vr(Z+2*k+1)}, 0xffff0000, {vr(Z1P+k)}\nv_pk_mul_f32 {vr(Z+2*k,2)}, {vr(Z+2*k,2)}, v[36:37] op_sel_hi:[1,0]")
    A.wait_all_lg(); A("s_barrier")
    tk = {}
    def rr(ft):
        if ft < 7:
            for u in (1, 2, 3): tk[ft] = A.ds(f"ds_read_b128 {vr(ACC+(ft*4+u)*4,4)}, v19 offset:{(u-1)*7168+ft*1024}")
    for ft in range(4): rr(ft)
    for ft in range(7):
        b = ACC + ft * 16
        for p in (0, 2): A(f"v_pk_add_f32 {vr(b+p,2)}, {vr(b+p,2)}, v[36:37] op_sel:[0,1] op_sel_hi:[1,1]")
        A.wait_lg(tk[ft]); rr(ft + 4)
        for p in (0, 2): A(f"v_pk_add_f32 {vr(b+p,2)}, {vr(b+p,2)}, {vr(b+4+p,2)}\nv_pk_add_f32 {vr(b+8+p,2)}, {vr(b+8+p,2)}, {vr(b+12+p,2)}")
        for p in (0, 2): A(f"v_pk_add_f32 {vr(b+p,2)}, {vr(b+p,2)}, {vr(b+8+p,2)}")
        for p in (0, 2): A(f"v_pk_mul_f32 {vr(b+p,2)}, {vr(b+p,2)}, {vr(Z+4*ft+p,2)}")
        A(f"v_cvt_pk_bf16_f32 {vr(hp+2*ft)}, {vr(b)}, {vr(b+1)}\nv_cvt_pk_bf16_f32 {vr(hp+1+2*ft)}, {vr(b+2)}, {vr(b+3)}")
        if ft in (1, 3, 5): A.vmem(f"buffer_store_dwordx4 {vr(hp+2*ft-2,4)}, {vL16}, {sWS}, s22 offen offset:{1024*(ft>>1)} sc1")
    tokH = A.vmem(f"buffer_store_dwordx2 {vr(hp+12,2)}, v11, {sWS}, s23 offen offset:3072 sc1")
    A.stamp(13)
    A.wait_named("W1"); A("s_barrier")
    for ls in range(2, 7): A.push(it_wout(ls), "W%d" % ls)
    A.per = 48
    A(f"v_lshrrev_b32 v12, 2, {vLane}\nv_bfe_u32 v13, {vLane}, 3, 2\nv_and_b32 v4, 3, v0\nv_lshlrev_b32 v4, 3, v4\nv_lshl_add_u32 v4, v12, 7, v4\nv_lshl_add_u32 v4, v13, 5, v4\ns_add_u32 {sT0}, {sW8192}, 131072")
    for et in range(4): A(f"v_xor_b32 v5, {32*et}, v4\nv_add_u32 v{100+et}, s20, v5\nv_add_u32 v{104+et}, {sT0}, v5")
    A(f"v_add_u32 v12, {FL}, {vL16}\nv_and_b32 v13, 7, v0\nv_lshlrev_b32 v13, 3, v13\nv_mov_b32 v4, 0")
    OA = 116
    fr = [20, 24, 28, 32, 56, 60, 64, 108]
    P = Pipe()
    for k in range(8):
        for et in range(4):
            f = fr[(k * 4 + et) % 8]
            P.add([f"ds_read_b128 {vr(f,4)}, v12 offset:{(k*4+et)*1024}"],
                  lambda f=f, k=k, et=et: mfma(vr(OA + 4 * et, 4), vr(f, 4), vr(CF + 4 * k, 4), "0" if k == 0 else None))
    P.run(6)
    A.wait_vm(tokH)
    masked(1, 0, lambda: A.vmem(f"buffer_store_dwordx2 v[38:39], v4, {sWS}, s44 offen sc1"))
    A.stamp(14)
    def wread(ls):
        for et in range(4):
            for half in (0, 1):
                base, off = (104, ls * 4096) if ls < 2 else (100, (ls - 2) * 4096)
                A.ds(f"ds_read_b64_tr_b16 {ar((ls*4+et)*4+2*half,2)}, v{base+et} offset:{off+half*2048}")
    wread(0); wread(1)
    A.flush()
    ldH = [f"buffer_load_dwordx2 v[2:3], v13, {sWS}, s45 offen sc1"]
    tokPH = A.vmem(ldH[0])
    for ls in range(2, 7):
        A.wait_named("W%d" % ls); wread(ls)
    RED2 = 81920
    for u in (1, 2, 3):
        A(f"s_add_u32 {sT0}, {sW}, {u}\ns_and_b32 {sT0}, {sT0}, 3\ns_mul_i32 {sT0}, {sT0}, 12288\ns_add_u32 {sT0}, {sT0}, {RED2+(u-1)*4096}\nv_add_u32 v{15+u}, {sT0}, {vL16}")
    A(f"s_mul_i32 {sT0}, {sW}, 12288\ns_add_u32 {sT0}, {sT0}, {RED2}\nv_add_u32 v19, {sT0}, {vL16}\ns_lshl_b32 {sT1}, {sC}, 7")
    for u in range(4): A(f"s_add_u32 {sCU[u]}, s{24+u}, 4096")
    A("s_barrier")
    A.stamp(15)
    poll(ldH, tagcmp([2]), tokPH)
    A.stamp(16)
    hr = list(range(180, 256, 4)) + [20, 24, 28, 32, 56, 60, 64, 68, 72]
    th = {}
    order = [(u, ls) for u in (1, 2, 3, 0) for ls in range(7)]
    def hload(n):
        if n >= 28: return
        u, ls = order[n]; h = hr[n]
        sb = f"s{24+u}" if ls < 4 else sCU[u]; io = (ls & 3) * 1024
        if ls == 3:
            A.vmem(f"buffer_load_dwordx2 {vr(h,2)}, v11, {sWS}, {sb} offen offset:{io} sc1")
            th[n] = A.vmem(f"buffer_load_dwordx2 {vr(h+2,2)}, v11, {sWS}, {sb} offen offset:{io+512} sc1")
        else:
            th[n] = A.vmem(f"buffer_load_dwordx4 {vr(h,4)}, {vL16}, {sWS}, {sb} offen offset:{io} sc1")
    HL = OPT["hl"]
    for n in range(HL): hload(n)
    A.wait_all_lg()
    for n in range(28):
        u, ls = order[n]
        A.wait_vm(th[n])
        for et in range(4): mfma(vr(OA + 16 * u + 4 * et, 4), ar((ls * 4 + et) * 4, 4), vr(hr[n], 4), "0" if (ls == 0 and u) else None)
        hload(n + HL)
        if n in (8, 15, 22):
            up = order[n - 2][0]
            for et in range(4): A.ds(f"ds_write_b128 v{15+up}, {vr(OA+16*up+4*et,4)} offset:{et*1024}")
        if n == 25:
            A.wait_all_lg(); A("s_barrier")
            for k in range(12): A.ds(f"ds_read_b128 {vr(OA+16+4*k,4)}, v19 offset:{k*1024}")
    A.wait_all_lg()
    for p in range(0, 16, 2): A(f"v_pk_add_f32 {vr(OA+16+p,2)}, {vr(OA+16+p,2)}, {vr(OA+32+p,2)}")
    for p in range(0, 16, 2): A(f"v_pk_add_f32 {vr(OA+p,2)}, {vr(OA+p,2)}, {vr(OA+48+p,2)}")
    for p in range(0, 16, 2): A(f"v_pk_add_f32 {vr(OA+p,2)}, {vr(OA+p,2)}, {vr(OA+16+p,2)}")
    for et in range(4):
        A(f"v_cvt_pk_bf16_f32 v{40+2*et}, {vr(OA+4*et)}, {vr(OA+4*et+1)}\nv_cvt_pk_bf16_f32 v{41+2*et}, {vr(OA+4*et+2)}, {vr(OA+4*et+3)}")
    A("s_nop 1")
    for pr in (0, 1): A(f"{P16} v{40+4*pr}, v{42+4*pr}\n{P16} v{41+4*pr}, v{43+4*pr}")
    A("s_nop 1")
    for pr in (0, 1): A.vmem(f"buffer_store_dwordx4 {vr(40+4*pr,4)}, v6, {sOUT}, {sT1} offen offset:{64*pr}")
    A.stamp(17)
    lb = A.lab("Lnobump")
    A(f"s_or_b32 {sT0}, s2, {sW}\ns_cmp_lg_u32 {sT0}, 0\ns_cbranch_scc1 {lb}")
    A(f"v_mov_b32 v11, {EPOCH}\ns_mov_b64 exec, 1\nbuffer_store_dwordx2 v[38:39], v11, {sWS}, 0 offen sc1\ns_mov_b64 exec, -1\n{lb}:")
    if OPT["diag"] >= 0:
        A(f"s_cmp_lg_u32 s2, 9\ns_cbranch_scc1 Lend\ns_sub_u32 s96, s96, s98\ns_lshl_b32 s96, s96, 3\ns_add_u32 s96, s96, 5000\nLdiag:\ns_memrealtime s[100:101]\ns_waitcnt lgkmcnt(0)\ns_sub_u32 s100, s100, s98\ns_cmp_lt_u32 s100, s96\ns_cbranch_scc1 Ldiag")
    if OPT["prof"]:
        A("s_memrealtime s[100:101]\ns_waitcnt lgkmcnt(0)\ns_mov_b32 s99, s100")
        A(f"s_lshl_b32 {sT0}, s2, 2\ns_add_u32 {sT0}, {sT0}, {sW}\ns_lshl_b32 {sT0}, {sT0}, 7\ns_add_u32 {sT0}, {sT0}, {TS}\nv_mov_b32 v11, 0\ns_mov_b64 exec, 1")
        for k in range(20): A(f"v_mov_b32 v12, s{80+k}\nbuffer_store_dword v12, v11, {sWS}, {sT0} offen offset:{4*k}\ns_nop 1")

prologue()
A(f"s_cmp_eq_u32 {sCA}, 7\ns_cbranch_scc1 Lpref")
st = (list(A.vm), list(A.lg))
front_main()
assert not A.bg
A.raw("Ljoin:")
mid_B(front2())
back()
A("s_branch Lend")
A.raw("Lpref:")
A.vm, A.lg = st; A.tok = {}; A.per = OPT["per"]
front_pref()
assert not A.bg
A("s_branch Ljoin")
A("Lend:\ns_endpgm")

hdr = open("cdna_kernels/%s.s.ref" % NAME).read().split("; Override launch")[0]
out = hdr + "; @launch grid=(256,1,1) block=(256,1,1) lds=%d\n" % LDS_SIZE
out += '.amdgcn_target "amdgcn-amd-amdhsa--gfx950"\n.text\n.globl %s_kernel\n.p2align 8\n.type %s_kernel,@function\n%s_kernel:\n' % (NAME, NAME, NAME)
def addnt(l):
    t = l.strip()
    if OPT["nt"] and (t.startswith("buffer_load") or t.startswith("global_load")) and sWS not in t:
        return l[:-4] + " nt lds" if t.endswith(" lds") else l + " nt"
    return l
def keep(l):
    t = l.strip()
    if OPT["strip"] == 1: return not t.startswith(("v_mfma", "ds_", "v_pk_", "v_exp", "v_rcp", "v_cos", "v_sin", "v_fract", "v_fmamk", "v_cvt_pk", "v_perm_b32"))
    if OPT["strip"] == 3 and t.startswith("ds_read"): return False
    if OPT["strip"] == 4 and t.startswith("s_waitcnt lgkmcnt") and not t.endswith("(0)"): return False
    if OPT["strip"] == 5 and t.startswith("v_mfma"): return False
    if OPT["strip"] == 6 and t.startswith("s_barrier"): return False
    if OPT["strip"] >= 2: return not (t.endswith(" lds") or (t.startswith("buffer_load_dwordx4") and (", v37, " in t or ", v7, " in t)))
    return True
out += "\n".join(addnt(l) for l in A.L if keep(l)) + "\n"
out += """.section .rodata,"a"
.p2align 6
.amdhsa_kernel %s_kernel
  .amdhsa_next_free_vgpr 512
  .amdhsa_next_free_sgpr 102
  .amdhsa_accum_offset 256
  .amdhsa_group_segment_fixed_size 0
  .amdhsa_kernarg_size 112
  .amdhsa_user_sgpr_count 2
  .amdhsa_user_sgpr_kernarg_segment_ptr 1
  .amdhsa_system_sgpr_workgroup_id_x 1
.end_amdhsa_kernel
""" % NAME
open(sys.argv[1], "w").write(out)
```

```python
import sys, struct
from collections import deque
NAME = "gated_mix__spectral_fnet__mixer_gmlp__prompt"
OPT = dict(diag=-1, hl=10, p2st=0, strip=0, ahead=0, sleep=4, npf=76, nt=0, rota=1, rotc=1, prof=0, xmap=1, per=40, pera=40, look=12, gat=3, prot=0, osc=0, pois=1, hsleep=1, xrot=0, fa1=1, ntc=1, ck=1, rt=0, fract=0)
for a in sys.argv[2:]:
    k, v = a.split("="); OPT[k] = int(v)

def fbits(x): return "0x%08x" % struct.unpack("<I", struct.pack("<f", x))[0]
def cost(ln):
    op = ln.split()[0]
    if op.startswith("v_mfma"): return 16
    if op in ("v_exp_f32", "v_rcp_f32", "v_rsq_f32", "v_sin_f32", "v_cos_f32"): return 8
    if op.startswith("ds_read"): return 0
    if op == "s_nop": return 4 * (int(ln.split()[1]) + 1)
    return 4

class Asm:
    def __init__(s):
        s.L = []; s.vm = []; s.lg = []; s.n = 0; s.nlab = 0; s.nst = 0
        s.names = []; s.bg = deque(); s.acc = 0; s.lock = 0; s.tok = {}; s.per = OPT["per"]
    def raw(s, t):
        for ln in t.split("\n"):
            ln = ln.strip()
            if not ln: continue
            if ln.endswith(":"): s.L.append(ln)
            else: s.L.append("    " + ln); s.acc += cost(ln)
    def __call__(s, t):
        s.raw(t); s.tick()
    def tick(s):
        if s.lock or not s.bg:
            if not s.bg: s.acc = min(s.acc, s.per)
            return
        if s.acc >= s.per: s.pop()
    def pop(s):
        pre, ins, name = s.bg.popleft()
        s.lock += 1
        if pre: s.raw(pre)
        if isinstance(ins, int): t = None; s.vm.append(("c", ins))
        else: t = s.vmem(ins)
        s.lock -= 1
        if name: s.tok[name] = t
        s.acc = 0
    def push(s, items, name=None):
        for i, (pre, ins) in enumerate(items): s.bg.append((pre, ins, name if i == len(items) - 1 else None))
    def front(s, items, name):
        while s.bg and "m0" not in s.bg[0][0]: s.pop()
        new = [(p, i, name if k == len(items) - 1 else None) for k, (p, i) in enumerate(items)]
        s.bg.extendleft(reversed(new))
    def flush(s, name=None):
        while s.bg and (name is None or name not in s.tok): s.pop()
    def wait_named(s, name):
        s.flush(name)
        t = s.tok[name]
        while s.bg and t in s.vm and len(s.vm) - 1 - s.vm.index(t) < OPT["ahead"]: s.pop()
        if t in s.vm and name[0] == "W" and name not in ("W11", "W15"): s.wait_vm(t)
        if t in s.vm:
            s.st("pre_" + name, 2); s.wait_vm(t); s.st("got_" + name, 2)
    def c(s, t): s.L.append("    ; " + t)
    def lab(s, p="L"):
        s.nlab += 1; return "%s%d" % (p, s.nlab)
    def vmem(s, t):
        if len(s.vm) >= 62: s.wait_vm(s.vm[len(s.vm) - 62])
        s.raw(t); s.n += 1; s.vm.append(s.n); return s.n
    def ds(s, t):
        if len(s.lg) >= 15: s.wait_lg(s.lg[len(s.lg) - 15])
        s.raw(t); s.n += 1; s.lg.append(s.n); n = s.n; s.tick(); return n
    def wait_vm(s, tok):
        if tok not in s.vm: return
        i = s.vm.index(tok); s.vm = s.vm[i + 1:]
        sites = [x[1] for x in s.vm if isinstance(x, tuple)]; n = len(s.vm) - len(sites)
        if sites:
            l = s.lab("Lw")
            s.raw("s_waitcnt vmcnt(%d)" % (n + 8))
            for x in sites: s.raw("s_cmp_eq_u32 s67, %d\ns_cbranch_scc1 %s" % (x, l))
            s.raw("s_waitcnt vmcnt(%d)\n%s:" % (n, l))
        else: s.raw("s_waitcnt vmcnt(%d)" % n)
    def wait_lg(s, tok):
        if tok not in s.lg: return
        i = s.lg.index(tok); s.raw("s_waitcnt lgkmcnt(%d)" % (len(s.lg) - 1 - i)); s.lg = s.lg[i + 1:]
    def wait_all_lg(s):
        if s.lg: s.raw("s_waitcnt lgkmcnt(0)")
        s.lg = []
    def stamp(s, k):
        if OPT["diag"] == k: s.raw("s_memrealtime s[96:97]\ns_waitcnt lgkmcnt(0)"); s.lg = []
        s.st(str(k))
    def st(s, name, lvl=1):
        if OPT["prof"] < lvl: return
        if name not in s.names: s.names.append(name)
        k = s.names.index(name); assert k < 61
        acc = s.acc
        s.raw(("s_memrealtime" if OPT["rt"] else "s_memtime") + " s[78:79]\ns_waitcnt lgkmcnt(0)\nv_writelane_b32 v0, s78, %d" % (k + 1)); s.lg = []; s.acc = acc
A = Asm()
def vr(b, n=1): return "v%d" % b if n == 1 else "v[%d:%d]" % (b, b + n - 1)
def ar(b, n=1): return "a%d" % b if n == 1 else "a[%d:%d]" % (b, b + n - 1)
def mfma(d, a, b, c=None): A("v_mfma_f32_16x16x32_bf16 %s, %s, %s, %s" % (d, a, b, d if c is None else c))

EPOCH, FLAGZ, FLAGF, FLAGP, FLAGQ, FLAGH, STAT = 0x0, 0x90000, 0x98000, 0x1000, 0x2000, 0xA0000, 0x10000
Z2N, HB, F2, W1P, WOP, TS, WS_SIZE = 0x100000, 0x480000, 0x800000, 0xA20000, 0xB00000, 0xC00000, 0x1000000
SL = [16384 * i for i in range(10)]
PR = [32768 * i for i in range(5)]
SCR = SL[0]; Z1B = SL[6]; GX = SL[7]
LDS_SIZE = 163840
sX, sWIN, sWSP, sWOUT = ["s[%d:%d]" % (b, b + 3) for b in range(4, 20, 4)]
sAX = ["s20", "s21", "s22", "s23"]; sAW = ["s24", "s25", "s26", "s27"]
sWS, sOUT, sBSP, sGW, sTMP = ["s[%d:%d]" % (b, b + 3) for b in range(28, 48, 4)]
sROT, sBG2, sET, sSH = "s48", "s49", "s50", "s51"
sR, sC, sW = "s54", "s55", "s56"
sW2048, sW7168, sW8192 = "s57", "s58", "s59"
sCU = ["s60", "s61", "s62", "s63"]
sSEL = ["s64", "s65"]; sZ = "s66"; sSG = "s67"; sM0, sM1 = "s68", "s69"
sT0, sT1, sT2, sT3, sSPIN, sKB = "s70", "s71", "s72", "s73", "s74", "s75"
sGC = "s[76:77]"; sBG = "s3"; sCA = "s95"
vLane, vI16, vQ, vXrd0, vXrd1, vWrd, vL16, vTrow, vB, vG = ["v%d" % i for i in range(1, 11)]
vW1 = [25, 26]; vXA = [27, 28]; vXR = [29, 30]; vCb = [32, 33]; vCo = [34, 35]; vOMG = "v36"; vZA = "v37"
vR32 = 40; vWD = 48; vZ = 80; vAB = 112; vGA = 176; vFR = 180
vWA = list(range(112, 120)); vTA = list(range(120, 128))
P16, P32 = "v_permlane16_swap_b32", "v_permlane32_swap_b32"

def masked(mask_lo, mask_hi, fn):
    A.lock += 1
    A.raw(f"s_mov_b32 exec_lo, {mask_lo}\ns_mov_b32 exec_hi, {mask_hi}")
    r = fn()
    A.raw("s_mov_b64 exec, -1")
    A.lock -= 1
    return r
def flag_store(soff, w0=False):
    A("v_mov_b32 v11, 0")
    if w0: A(f"s_cmp_lg_u32 {sW}, 0\ns_cselect_b32 {soff}, {WS_SIZE}, {soff}")
    return masked(1, 0, lambda: A.vmem(f"buffer_store_dwordx2 v[38:39], v11, {sWS}, {soff} offen sc1"))

def poll(loads, cmps, tok=None, skip7=False, sleep=None):
    l, d = A.lab("Lspin"), A.lab("Ldone")
    if tok is None:
        for t in loads: tok = A.vmem(t)
    A.lock += 1
    A.wait_vm(tok)
    if skip7: A.raw(f"s_cmp_eq_u32 {sCA}, 7\ns_cbranch_scc1 {d}")
    A.raw(cmps); A.raw(f"s_cbranch_vccz {d}\ns_mov_b32 {sSPIN}, 0x40000\n{l}:\ns_sleep {OPT['sleep'] if sleep is None else sleep}")
    for t in loads: A.raw(t)
    A.raw("s_waitcnt vmcnt(0)"); A.raw(cmps)
    A.raw(f"s_cbranch_vccz {d}\ns_sub_u32 {sSPIN}, {sSPIN}, 1\ns_cmp_lg_u32 {sSPIN}, 0\ns_cbranch_scc1 {l}\n{d}:")
    A.lock -= 1
def tagcmp(regs):
    cm = f"v_cmp_ne_u64 vcc, s[52:53], {vr(regs[0],2)}"
    for k in regs[1:]: cm += f"\nv_cmp_ne_u64 s[78:79], s[52:53], {vr(k,2)}\ns_or_b64 vcc, vcc, s[78:79]"
    return cm

def gelu(base, n, t):
    for p0 in range(0, n, 8):
        ps = (p0, p0 + 2, p0 + 4, p0 + 6)
        for k, p in enumerate(ps): A(f"v_pk_mul_f32 {vr(t+2*k,2)}, {vr(base+p,2)}, {vr(base+p,2)}")
        for k, p in enumerate(ps): A(f"v_pk_fma_f32 {vr(t+2*k,2)}, {vr(t+2*k,2)}, {sGC}, {sGC} op_sel:[0,0,1] op_sel_hi:[1,0,1]")
        for k, p in enumerate(ps): A(f"v_pk_mul_f32 {vr(t+2*k,2)}, {vr(t+2*k,2)}, {vr(base+p,2)}")
        for k in range(8): A(f"v_exp_f32 {vr(t+k)}, {vr(t+k)}")
        for k, p in enumerate(ps): A(f"v_pk_add_f32 {vr(t+2*k,2)}, {vr(t+2*k,2)}, 1.0 op_sel_hi:[1,0]")
        for k in range(8): A(f"v_rcp_f32 {vr(t+k)}, {vr(t+k)}")
        for k, p in enumerate(ps): A(f"v_pk_mul_f32 {vr(base+p,2)}, {vr(base+p,2)}, {vr(t+2*k,2)}")

def xreduce(ops, regs, tmps):
    for op in ops:
        for r, t in zip(regs, tmps): A(f"v_mov_b32 {vr(t)}, {vr(r)}")
        A("s_nop 1")
        for r, t in zip(regs, tmps): A(f"{op} {vr(t)}, {vr(r)}")
        A("s_nop 1")
        for r, t in zip(regs, tmps): A(f"v_add_f32 {vr(r)}, {vr(r)}, {vr(t)}")

def gen_cos(dst, nd, freq, base, kfun):
    for i in range(0, nd, 2):
        ks = [kfun(2 * i + z) for z in range(4)]
        for z in range(4): A(f"v_fmamk_f32 v{16+z}, {freq}, {fbits(float(ks[z]))}, {base}")
        if OPT["fract"]:
            for z in range(4): A(f"v_fract_f32 v{16+z}, v{16+z}")
        for z in range(4): A(f"v_cos_f32 v{16+z}, v{16+z}")
        A(f"v_cvt_pk_bf16_f32 {vr(dst(i))}, v16, v17\nv_cvt_pk_bf16_f32 {vr(dst(i+1))}, v18, v19")

def it_xa(G):
    return [(f"s_add_u32 m0, {sW2048}, {SL[6+G] + sub*8192 - 128*sub}\ns_nop 0" if h == 0 else "",
             f"buffer_load_dwordx4 {vr(vXA[h])}, {sX}, {sAX[G]} offen offset:{1024*h+128*sub} lds") for sub in (0, 1) for h in (0, 1)]
def it_xr(dst, G):
    return [(f"s_add_u32 m0, {sW2048}, {dst + sub*8192 - 128*(2*G+sub)}\ns_nop 0" if h == 0 else "",
             f"buffer_load_dwordx4 {vr(vXR[h])}, {sX}, 0 offen offset:{1024*h+128*(2*G+sub)} lds") for sub in (0, 1) for h in (0, 1)]
def it_w1(ks):
    return [(f"s_mov_b32 {sBG}, {ks*57344}", f"buffer_load_dwordx4 {ar(128+ks*8,4)}, {vr(vW1[0])}, {sWS}, {sBG} offen sc1"),
            (f"s_mul_i32 {sBG}, s94, {ks}", f"buffer_load_dwordx4 {ar(128+ks*8+4,4)}, {vr(vW1[1])}, {sGW}, {sBG} offen sc1")]
def it_w2(dst, G):
    return [(f"s_add_u32 m0, {sW8192}, {dst + (4096 if i else 0)}\ns_nop 0" if i in (0, 4) else "",
             f"buffer_load_dwordx4 {vr(vWA[i])}, {sWIN}, {sAW[G]} offen offset:{1024*(i&3)} lds") for i in range(8)]
def it_c(j, dst):
    it = []
    for u in range(4):
        for h in (0, 1):
            pre = ""
            if u == 0 and h == 0:
                pre = f"s_bfe_u32 {sBG2}, {sROT}, {(4<<16)|(4*j)}\ns_lshl_b32 {sBG2}, {sBG2}, 7\nv_or_b32 {vr(vCo[0])}, {sBG2}, {vr(vCb[0])}\nv_or_b32 {vr(vCo[1])}, {sBG2}, {vr(vCb[1])}\n"
            if h == 0: pre += f"s_add_u32 m0, {sW8192}, {dst + u*2048}\ns_nop 0"
            it.append((pre, f"buffer_load_dwordx4 {vr(vCo[h])}, {sWSP}, {sCU[u]} offen offset:{1024*h}{' nt' if j < OPT['ntc'] else ''} lds"))
    return it
IT_GATE = [("", f"buffer_load_ushort {vB}, v246, {sBSP}, 0 offen")]

class Pipe:
    def __init__(s): s.mf = []; s.rd = []; s.hooks = {}; s.pres = {}
    def pre(s, fn): s.pres[len(s.mf)] = fn
    def read(s, quad, text): s.rd.append([quad, text, len(s.mf)])
    def hook(s, fn): s.hooks[len(s.rd)] = fn
    def mfma(s, d, a, b, c, uses): s.mf.append((d, a, b, c, uses))
    def run(s, D):
        free = []
        for quad, text, need in s.rd:
            free.append(max([j for j in range(need) if quad in s.mf[j][4]], default=-1))
        toks = []
        def emit():
            k = len(toks)
            if k in s.hooks: s.hooks[k]()
            toks.append(A.ds(s.rd[k][1]))
        def ready(i, d):
            k = len(toks)
            return k < len(s.rd) and s.rd[k][2] <= i + d and free[k] <= i
        while ready(-1, D): emit()
        for i, (d, a, b, c, uses) in enumerate(s.mf):
            while len(toks) < len(s.rd) and s.rd[len(toks)][2] <= i: emit()
            need = [k for k in range(len(toks)) if s.rd[k][2] <= i]
            if need: A.wait_lg(toks[need[-1]])
            if i in s.pres: s.pres[i]()
            mfma(d, a, b, c)
            if ready(i, D): emit()
            if ready(i, D - 3): emit()

def gbar(name, flush=True):
    A.wait_all_lg()
    if flush: A.flush()
    if name: A.wait_named(name)
    A("s_barrier")
    if name: A.st("bar_" + name, 2)

NF = 8
cnt = [0]
WA = [PR[0], PR[1], PR[2], PR[0]]
CS = [PR[1], PR[2], PR[0], PR[1], PR[2], PR[0], PR[1], PR[2]]
CK = [int(x) for x in str(OPT['ck']).replace('0', ' ').split()] if False else [[7, 10, 13], [6, 9, 12, 15], [5, 7, 9, 12, 14]][OPT['ck']]
ZH = 220
def stageB(P, G, hk):
    for kk in range(4):
        if 4 * G + kk in hk: P.hook(hk[4 * G + kk])
        par = kk & 1; ks = 4 * G + kk
        fb = vFR + 20 * par
        so = G * 16384 + (kk >> 1) * 8192
        z0 = "0" if ks == 0 else None
        a0 = "0" if kk == 0 else None
        for x in range(4):
            P.read(fb + 4 * x, f"ds_read_b128 {vr(fb+4*x,4)}, v{12+2*x+par} offset:{so}")
            P.mfma(vr(vAB + 16 * G + 4 * x, 4), vr(fb + 4 * x, 4), vr(vWD + 4 * kk, 4), a0, (fb + 4 * x,))
            if x == 0: P.pre(lambda ks=ks: A.wait_named("W%d" % ks))
            for i in (0, 1): P.mfma(vr(vZ + 8 * x + 4 * i, 4), ar(128 + (ks * 2 + i) * 4, 4), vr(fb + 4 * x, 4), z0, (fb + 4 * x,))

def pushc(j): A.push(it_c(j, CS[j]), "C%d" % j)
def c_read(j):
    dst = CS[j]
    A.wait_named("C%d" % j)
    for par in (0, 1):
        for u in range(4):
            A.ds(f"ds_read_b128 {ar(((2*j+par)*4+u)*4,4)}, v{240+2*(dst>>16)+par} offset:{(dst&0xffff)+u*2048}")
def cnext(j):
    c_read(j); A.wait_all_lg()
    if j + 3 < 8: pushc(j + 3)

Z1P = 100
def poison():
    t = vFR
    A(f"s_lshl_b32 {sT0}, {sR}, 2\ns_add_u32 {sT0}, {sT0}, {sW}\ns_mul_i32 {sT0}, {sT0}, 28672\ns_lshr_b32 {sT1}, {sC}, 1\ns_mul_i32 {sT1}, {sT1}, 7168\ns_add_u32 {sT1}, {sT1}, {sT0}\ns_add_u32 {sT1}, {sT1}, {HB}")
    A(f"s_and_b32 {sT0}, {sC}, 1\ns_lshl_b32 s80, {sT0}, 12\ns_add_u32 s80, s80, {sT1}\ns_lshl_b32 s81, {sT0}, 9\ns_add_u32 s81, s81, {sT1}")
    A(f"v_mov_b32 {vr(t+16)}, -1\nv_mov_b32 {vr(t+17)}, -1\nv_mov_b32 {vr(t+18)}, -1\nv_mov_b32 {vr(t+19)}, -1")
    for k in range(3): A.vmem(f"buffer_store_dwordx4 {vr(t+16,4)}, {vL16}, {sWS}, s80 offen offset:{1024*k} sc1")
    masked(-1, 0, lambda: A.vmem(f"buffer_store_dwordx4 {vr(t+16,4)}, {vL16}, {sWS}, s81 offen offset:3072 sc1"))
def b_epilogue(fz):
    t = vFR
    A(f"v_and_b32 v15, 1, v1\nv_and_b32 v16, 2, v1\nv_sub_u32 v17, 1, v16\nv_sub_u32 v18, 1, v15\nv_mul_i32_i24 v12, v17, v18\nv_mul_i32_i24 v13, v17, v15\nv_sub_u32 v14, v18, v15")
    A("v_bfe_u32 v16, v1, 3, 1\nv_lshlrev_b32 v16, 31, v16\nv_cvt_f32_i32 v12, v12\nv_cvt_f32_i32 v13, v13\nv_cvt_f32_i32 v14, v14\nv_xor_b32 v13, v16, v13")
    for p in range(0, 16, 2):
        o = [vr(vAB + 16 * m + p, 2) for m in range(4)]
        A(f"v_pk_fma_f32 {o[0]}, {o[2]}, v[14:15], {o[0]} op_sel_hi:[1,0,1]\nv_pk_add_f32 {o[2]}, {o[1]}, {o[3]}\nv_pk_add_f32 {o[1]}, {o[1]}, {o[3]} neg_lo:[0,1] neg_hi:[0,1]")
        A(f"v_pk_fma_f32 {o[0]}, {o[2]}, v[12:13], {o[0]} op_sel_hi:[1,0,1]")
    for v in range(16): A(f"v_fmac_f32_dpp {vr(vAB+v)}, {vr(vAB+16+v)}, v13 row_ror:8 row_mask:0xf bank_mask:0xf")
    for k in range(8): A(f"v_cvt_pk_bf16_f32 {vr(t+k)}, {vr(vAB+2*k)}, {vr(vAB+2*k+1)}")
    A("s_nop 1")
    D = vAB + 32
    for lg in (0, 1):
        for J in (0, 1): mfma(vr(D + 8 * lg + 4 * J, 4), vr(vR32 + 4 * J, 4), vr(t + 4 * lg, 4), "0")
    A(f"s_cmp_eq_u32 {sW}, 3\ns_cselect_b32 {sT0}, 0, 1024\ns_add_u32 {sT0}, {sT0}, {GX}\nv_lshlrev_b32 v16, 2, {vI16}\nv_add_u32 v11, {sT0}, v16")
    for x in range(4): A.ds(f"ds_write2_b32 v11, {vr(vZ+8*x+4)}, {vr(vZ+8*x+4)} offset0:{(3^x)*16} offset1:{(3^x)*16+64}")
    A(f"s_mul_i32 {sT0}, {sR}, 4352\ns_lshl_b32 {sT1}, {sC}, 9\ns_add_u32 {sT0}, {sT0}, {sT1}\ns_lshl_b32 {sT2}, {sW}, 7\ns_add_u32 {sT0}, {sT0}, {sT2}\ns_add_u32 {sT0}, {sT0}, {F2}\ns_mov_b32 {sT3}, 139264")
    A(f"v_and_b32 v14, 7, v1\nv_lshlrev_b32 v14, 4, v14\nv_lshrrev_b32 v15, 3, v1\nv_mad_u32_u24 v14, v15, {sT3}, v14\nv_add_u32 v14, {sT0}, v14")
    A(f"s_lshl_b32 {sT0}, {sW}, 6\ns_add_u32 {sT0}, {sT0}, {GX}\nv_add_u32 v16, {sT0}, v16")
    U = t + 8
    for J in (0, 1):
        for lg in (0, 1):
            for z in (0, 1): A(f"v_cvt_pk_bf16_f32 {vr(U+4*J+2*lg+z)}, {vr(D+8*lg+4*J+2*z)}, {vr(D+8*lg+4*J+2*z+1)}")
    for k in range(4): A(f"v_mov_b32 {vr(t+k)}, {vr(U+2*k)}")
    for k in range(4): A(f"v_mov_b32_dpp {vr(U+2*k)}, {vr(U+2*k+1)} row_ror:8 row_mask:0xf bank_mask:0xc")
    for k in range(4): A(f"v_mov_b32_dpp {vr(U+2*k+1)}, {vr(t+k)} row_ror:8 row_mask:0xf bank_mask:0x3")
    l1, lsk = A.lab("Lnosw"), A.lab("Lnosp")
    A.lock += 1
    A(f"s_cmp_eq_u32 {sSH}, 0\ns_cbranch_scc1 {l1}")
    for J in (0, 1): A(f"v_swap_b32 {vr(U+4*J)}, {vr(U+4*J+2)}\nv_swap_b32 {vr(U+4*J+1)}, {vr(U+4*J+3)}")
    A(f"{l1}:\ns_mov_b32 {sT2}, {8*139264}\ns_add_u32 {sT1}, {sW}, {sC}\ns_cmp_lg_u32 {sT1}, 0\ns_cbranch_scc1 {lsk}")
    A(f"s_mov_b32 exec_lo, 0x01010101\ns_mov_b32 exec_hi, 0x01010101\nv_add_u32 v15, 4096, v14")
    for J in (0, 1):
        q_ = t + 4 * J
        A(f"v_mov_b32 {vr(q_)}, {vr(U+4*J+1)}\nv_mov_b32 {vr(q_+1)}, 0\nv_mov_b32 {vr(q_+2)}, {vr(U+4*J+3)}\nv_mov_b32 {vr(q_+3)}, 0\nv_mov_b32 {vr(U+4*J+1)}, 0\nv_mov_b32 {vr(U+4*J+3)}, 0")
        A(f"buffer_store_dwordx4 {vr(q_,4)}, v15, {sWS}, {sT2 if J else 0} offen sc1")
    A(f"s_mov_b64 exec, -1\n{lsk}:")
    A.lock -= 1
    if OPT["pois"] == 2: poison()
    for J in (0, 1): tokF = A.vmem(f"buffer_store_dwordx4 {vr(U+4*J,4)}, v14, {sWS}, {sT2 if J else 0} offen sc1")
    fz()
    gelu(vZ, 32, vFR + 20)
    A(f"s_lshl_b32 {sT0}, {sW}, 12\ns_add_u32 {sT0}, {sT0}, {Z1B}\nv_lshlrev_b32 v12, 3, {vLane}\nv_add_u32 v17, {sT0}, v12\ns_lshl_b32 {sT0}, {sW}, 10\nv_add_u32 v12, {sT0}, v17")
    for x in range(4):
        if x: A(f"v_xor_b32 v13, {4096*x}, v12")
        for i in (0, 1):
            b = vZ + 8 * x + 4 * i
            A(f"v_cvt_pk_bf16_f32 {vr(b)}, {vr(b)}, {vr(b+1)}\nv_cvt_pk_bf16_f32 {vr(b+1)}, {vr(b+2)}, {vr(b+3)}")
            A.ds(f"ds_write_b64 v{13 if x else 12}, {vr(b,2)} offset:{i*512}")
    A(f"v_lshlrev_b32 {vB}, 16, {vB}")
    A.st("epi_end", 2); A.wait_all_lg(); A.flush(); A.st("epi_fl", 2); A.wait_vm(tokF); A.st("epi_F", 2); A("s_barrier")
    A(f"s_lshl_b32 {sT0}, {sC}, 12\ns_lshl_b32 {sT1}, {sR}, 7\ns_add_u32 {sT0}, {sT0}, {sT1}\ns_add_u32 {sT0}, {sT0}, {FLAGF}")
    flag_store(sT0, True)
    for ft in range(7): A.ds(f"ds_read_b64 {vr(Z1P+2*ft,2)}, v17 offset:{ft*512}")
    A.ds("ds_read2_b32 v[14:15], v16 offset0:16 offset1:32"); A.ds("ds_read_b32 v6, v16 offset:192"); A.ds(f"ds_read_b32 {vG}, v16")
LDZ = [f"buffer_load_dwordx2 v[246:247], v19, {sWS}, s46 offen sc1"]
def flagZ_issue():
    A(f"s_mul_i32 {sT0}, {sC}, 7\ns_add_u32 {sT1}, {sT0}, 6\ns_lshr_b32 {sT0}, {sT0}, 3\ns_lshr_b32 {sT1}, {sT1}, 3\ns_sub_u32 {sT1}, {sT1}, {sT0}\ns_lshl_b32 {sT1}, {sT1}, 12")
    A(f"s_lshl_b32 {sT0}, {sT0}, 12\ns_lshl_b32 {sT2}, {sW}, 10\ns_add_u32 {sT0}, {sT0}, {sT2}\ns_add_u32 s46, {sT0}, {FLAGZ}")
    A(f"v_and_b32 v19, 7, v1\nv_lshlrev_b32 v19, 7, v19\nv_lshrrev_b32 v11, 5, {vLane}\nv_mad_u32_u24 v19, v11, {sT1}, v19")
    return A.vmem(LDZ[0])

def srd(b, src, size): A(f"s_mov_b32 s{b}, s{src}\ns_mov_b32 s{b+1}, s{src+1}\ns_mov_b32 s{b+2}, {size}\ns_mov_b32 s{b+3}, 0x20000")

def prologue():
    A("s_cmp_ge_u32 s2, 256\ns_cbranch_scc1 Lend")
    A("s_load_dwordx16 s[60:75], s[0:1], 0\ns_load_dwordx8 s[80:87], s[0:1], 64\ns_load_dwordx4 s[88:91], s[0:1], 96")
    if OPT["prof"]: A("s_memrealtime s[98:99]\ns_memtime s[96:97]")
    if OPT["diag"] >= 0: A("s_memrealtime s[98:99]\ns_memrealtime s[96:97]")
    A(f"s_getpc_b64 s[44:45]\ns_mov_b32 s46, Lend-{NAME}_kernel\ns_mov_b32 s47, 0x20000")
    A("s_lshr_b32 s3, s2, 3\ns_lshl_b32 s76, s3, 10\nv_and_b32 v11, 7, v0\nv_lshlrev_b32 v11, 7, v11\nv_add_u32 v11, s76, v11")
    A.vmem(f"buffer_load_dword v12, v11, {sTMP}, 0 offen")
    A("s_and_b32 s76, s2, 7")
    if OPT["xmap"] == 1:
        A(f"s_lshr_b32 {sR}, s3, 3\ns_lshl_b32 s77, s76, 2\ns_add_u32 {sR}, {sR}, s77\ns_and_b32 {sC}, s3, 7")
        A(f"s_mov_b32 s78, 0x76543210\ns_mov_b32 s79, s78\ns_mul_i32 s77, s76, {OPT['xrot']}\ns_add_u32 s77, s77, {sC}\ns_and_b32 s77, s77, 7\ns_lshl_b32 s77, s77, 2\ns_lshr_b64 s[78:79], s[78:79], s77\ns_mov_b32 {sROT}, s78")
    else:
        A(f"s_lshr_b32 {sR}, s76, 1\ns_lshl_b32 {sR}, {sR}, 3\ns_lshr_b32 s77, s3, 2\ns_add_u32 {sR}, {sR}, s77")
        A(f"s_and_b32 {sC}, s76, 1\ns_lshl_b32 {sC}, {sC}, 2\ns_and_b32 s77, s3, 3\ns_add_u32 {sC}, {sC}, s77")
        A(f"s_lshl_b32 s77, s77, 2\ns_lshr_b32 {sROT}, 0x64206420, s77\ns_and_b32 {sROT}, {sROT}, 0xffff\ns_or_b32 {sROT}, {sROT}, 0x64200000\ns_bitcmp1_b32 s76, 0\ns_cselect_b32 s77, 0, 16\ns_lshl_b32 s77, 0x1111, s77\ns_or_b32 {sROT}, {sROT}, s77")
    A(f"s_mov_b32 {sCA}, {sC}")
    if not OPT["rotc"]: A(f"s_mov_b32 {sROT}, 0x76543210")
    A(f"v_lshrrev_b32 v11, 6, v0\nv_and_b32 {vLane}, 63, v0\nv_readfirstlane_b32 {sW}, v11")
    A(f"v_and_b32 {vI16}, 15, v0\nv_lshrrev_b32 {vQ}, 4, {vLane}\nv_lshlrev_b32 {vL16}, 4, {vLane}")
    A(f"s_lshl_b32 {sW2048}, {sW}, 11\ns_lshl_b32 {sW8192}, {sW}, 13\ns_and_b32 {sET}, {sW}, 1\ns_lshr_b32 {sSH}, {sW}, 1\ns_add_u32 s76, {sR}, {sC}")
    if not OPT["rota"]: A("s_mov_b32 s76, 0")
    for G in range(4):
        A(f"s_add_u32 s77, s76, {G}\ns_and_b32 s77, s77, 3\ns_lshl_b32 {sAX[G]}, s77, 8\ns_mul_i32 {sAW[G]}, s77, 458752")
    A(f"v_lshrrev_b32 v11, 3, {vLane}\nv_and_b32 v15, 7, v0\nv_lshrrev_b32 v16, 1, v11")
    A("v_xor_b32 v13, v15, v16\nv_lshlrev_b32 v13, 4, v13\nv_xor_b32 v14, 64, v13")
    A(f"s_lshl_b32 s76, {sR}, 16\ns_lshl_b32 s77, {sW}, 14\ns_add_u32 s76, s76, s77\nv_lshl_add_u32 v15, v11, 10, s76")
    A(f"v_add_u32 {vr(vXA[0])}, v15, v13\nv_add_u32 {vr(vXA[1])}, v15, v14\nv_add_u32 {vr(vXA[1])}, 7168, {vr(vXA[1])}")
    A(f"s_lshl_b32 s76, {sCA}, 8\ns_mul_i32 s77, {sW}, 114688\ns_add_u32 s76, s76, s77\ns_add_u32 s76, s76, 1792\ns_movk_i32 s77, 3584")
    A(f"v_lshlrev_b32 v15, 1, {vQ}\nv_xor_b32 v15, v15, {vI16}\nv_lshlrev_b32 v15, 4, v15\nv_mad_u32_u24 v16, {vQ}, s77, v15\nv_add_u32 v16, s76, v16\nv_xor_b32 v17, 128, v16")
    for i in range(8):
        A(f"v_add_u32 {vr(vWA[i])}, {(8*(i&3)+4*(i>>2))*3584 - 1024*(i&3)}, v{16+(i&1)}")
    A("s_waitcnt lgkmcnt(0)")
    srd(4, 60, 2097152); srd(8, 72, 1835008); srd(16, 82, 917504)
    A(f"s_load_dwordx2 s[92:93], s[90:91], {EPOCH}")

def setup2():
    srd(12, 74, 8388608)
    srd(28, 90, WS_SIZE); srd(32, 86, 2097152); srd(36, 80, 4096)
    A(f"s_cmp_eq_u32 {sW}, 3\ns_cselect_b32 s40, s84, s90\ns_cselect_b32 s41, s85, s91\ns_movk_i32 s42, 1024\ns_cselect_b32 s42, s42, s30\ns_mov_b32 s43, 0x20000\ns_cselect_b32 s94, 64, 57344")
    A(f"s_mul_i32 {sW7168}, {sW}, 7168\ns_mul_i32 s77, {sC}, 7168\ns_add_u32 s76, {sW2048}, s77\ns_add_u32 s76, s76, {W1P}\nv_add_u32 {vr(vW1[0])}, s76, {vL16}\nv_add_u32 {vr(vW1[1])}, 1024, {vr(vW1[0])}\nv_lshlrev_b32 v15, 4, {vQ}\ns_cmp_eq_u32 {sW}, 3\ns_cselect_b64 vcc, -1, 0\nv_cndmask_b32 {vr(vW1[1])}, {vr(vW1[1])}, v15, vcc")
    A("v_and_b32 v17, 4, v11\nv_lshlrev_b32 v17, 1, v17\nv_and_or_b32 v17, v11, 3, v17")
    A(f"s_lshl_b32 s76, {sET}, 8\ns_lshl_b32 s77, {sSH}, 5\ns_add_u32 s76, s76, s77\ns_add_u32 s76, s76, {sR}")
    A("s_lshl_b32 s77, s76, 10\nv_lshl_add_u32 v15, v17, 16, s77")
    A(f"v_add_u32 {vr(vXR[0])}, v15, v13\nv_add_u32 {vr(vXR[1])}, v15, v14\nv_add_u32 {vr(vXR[1])}, {1024*1024-1024}, {vr(vXR[1])}")
    A(f"v_and_b32 v15, 12, {vI16}\nv_lshlrev_b32 v15, 1, v15\nv_and_or_b32 v15, {vI16}, 3, v15\nv_lshl_add_u32 {vTrow}, v15, 6, s76")
    A(f"s_lshl_b32 s77, {sR}, 12\ns_lshl_b32 s78, {sW}, 10\ns_add_u32 s77, s77, s78\nv_lshl_add_u32 v15, v17, 18, s77")
    A(f"v_add_u32 {vr(vCb[0])}, v15, v13\nv_add_u32 {vr(vCb[1])}, v15, v14\nv_add_u32 {vr(vCb[1])}, {1024*4096-1024}, {vr(vCb[1])}")
    for u in range(4):
        A(f"s_add_u32 s77, {sW}, {u}\ns_and_b32 s78, s77, 1\ns_lshl_b32 s78, s78, 20\ns_and_b32 s77, s77, 2\ns_lshl_b32 s77, s77, 16\ns_add_u32 {sCU[u]}, s77, s78")
    A(f"v_lshlrev_b32 v246, 1, {vTrow}")
    A(f"v_lshrrev_b32 v15, 1, {vI16}\nv_xor_b32 v15, v15, {vQ}\nv_lshlrev_b32 v15, 4, v15\nv_lshl_add_u32 {vXrd0}, {vI16}, 7, v15\nv_xor_b32 {vXrd1}, 64, {vXrd0}")
    A(f"v_add_u32 v240, {sW8192}, {vXrd0}\nv_add_u32 v241, {sW8192}, {vXrd1}\nv_add_u32 v242, 0x10000, v240\nv_add_u32 v243, 0x10000, v241\nv_add_u32 v244, 0x20000, v240\nv_add_u32 v245, 0x20000, v241")
def twiddles():
    A(f"s_lshl_b32 s70, {sC}, 5\ns_lshl_b32 s71, {sW}, 3\ns_add_u32 s70, s70, s71\nv_and_b32 v11, 7, v1\nv_add_u32 v11, s70, v11\nv_bfe_u32 v14, v1, 3, 1\nv_lshlrev_b32 v15, 3, {vQ}\nv_cmp_gt_u32 vcc, v14, v11\nv_cvt_f32_u32 v11, v11\nv_cvt_f32_u32 v15, v15\nv_cvt_f32_u32 v14, v14")
    A(f"v_mul_f32 v11, {fbits(1/512)}, v11\nv_mul_f32 v14, {fbits(0.25)}, v14\nv_fma_f32 v13, v11, v15, v14\nv_cndmask_b32 v11, v11, 0.5, vcc\nv_cndmask_b32 v13, v13, 0, vcc")
    gen_cos(lambda i: vWD + i, 16, "v11", "v13", lambda n: 32 * (n >> 3) + (n & 7))
    A(f"v_lshrrev_b32 v11, 1, {vI16}\nv_cvt_f32_u32 v11, v11\nv_mul_f32 v11, {fbits(1/32)}, v11\nv_add_f32 v247, {fbits(0.25)}, v11")
    A(f"v_and_b32 v13, 1, v1\nv_cvt_f32_u32 v13, v13\nv_mul_f32 v13, {fbits(0.25)}, v13\nv_cmp_eq_u32 vcc, 1, {vI16}\nv_mov_b32 v14, v13\ns_nop 0\nv_cndmask_b32 v11, v11, 0.5, vcc\nv_cndmask_b32 v13, v13, 0, vcc")
    A(f"s_lshl_b32 s70, {sET}, 2\nv_cvt_f32_u32 v248, s70\nv_sub_f32 v252, v15, v248\nv_add_f32 v248, v15, v248")
    for J, (fr, ph) in enumerate((("v11", "v13"), ("v247", "v14"))):
        A(f"v_fma_f32 v253, {fr}, v248, {ph}\nv_fma_f32 v254, {fr}, v252, {ph}")
        gen_cos(lambda i: vR32 + 4 * J + i, 2, fr, "v253", lambda n: n)
        gen_cos(lambda i: vR32 + 4 * J + 2 + i, 2, fr, "v254", lambda n: 4 + n)
def consts():
    if OPT["pois"] == 0: poison()
    A("s_waitcnt lgkmcnt(0)")
    A("s_mul_i32 s52, s92, 0x9E3779B1\ns_add_u32 s52, s52, 0x7F4A7C15\ns_mul_i32 s53, s93, 0x85EBCA6B\ns_add_u32 s53, s53, 0xC2B2AE35")
    c0 = -2 * 0.7978845608028654 * 1.4426950408889634
    A(f"s_mov_b32 s76, {fbits(c0*0.044715)}\ns_mov_b32 s77, {fbits(c0)}\nv_mov_b32 v38, s52\nv_mov_b32 v39, s53\nv_and_b32 v251, 31, v1\nv_lshlrev_b32 v251, 7, v251\nv_add_u32 v251, {FLAGP}, v251")
    if OPT["prof"]: A("v_writelane_b32 v0, s96, 0\nv_writelane_b32 v0, s98, 62")
LDP = [f"buffer_load_dwordx2 v[20:21], v251, {sWS}, 0 offen sc1"]

def front_main():
    A.push(it_xa(0) + it_w2(WA[0], 0), "A0"); A.push(it_xa(1) + it_w2(WA[1], 1), "A1")
    A.flush("A0")
    A.lock += 1
    setup2(); twiddles(); consts()
    A(f"v_lshrrev_b32 v15, 2, {vLane}\nv_lshlrev_b32 v16, 8, v15\nv_and_b32 v15, 7, v15\nv_lshl_add_u32 v16, v15, 5, v16\nv_and_b32 v15, 3, v1\nv_lshl_add_u32 v16, v15, 3, v16\ns_lshl_b32 {sT0}, {sET}, 7\nv_xor_b32 v16, {sT0}, v16")
    for i in range(4): A(f"v_xor_b32 {vr(vTA[i])}, {32*i}, v16\nv_add_u32 {vr(vTA[4+i])}, 0x10000, {vr(vTA[i])}")
    A(f"s_lshl_b32 {sT0}, {sSH}, 12\ns_add_u32 {sT0}, {sT0}, {SL[6]}\nv_add_u32 v13, {sT0}, {vXrd0}\nv_add_u32 v14, {sT0}, {vXrd1}")
    A.lock -= 1
    if OPT["fa1"]: A.flush("A1")
    A.push(it_xa(2) + it_w2(WA[2], 2), "A2"); A.push(it_xa(3))
    A.stamp(1)
    A.per = OPT["pera"]
    P = Pipe()
    for G in range(4):
        def h(G=G):
            gbar("A%d" % G, False)
            if G == 1: A.push(it_w2(WA[3], 3), "A3")
            if G >= 1: A.push(it_xr(SL[5 + G], G - 1), "X%d" % (G - 1))
            if G == 3: pushc(0)
        P.hook(h)
        for kk in range(4):
            xf = vFR + 32 + 8 * ((4 * G + kk) % 3)
            z0 = "0" if (G == 0 and kk == 0) else None
            for i in range(4):
                wf = vFR + 4 * (cnt[0] % NF); cnt[0] += 1
                if i == 0: P.read(xf, f"ds_read_b128 {vr(xf,4)}, v{13+(kk&1)} offset:{G*16384+(kk>>1)*8192}")
                for half in (0, 1):
                    P.read(wf, f"ds_read_b64_tr_b16 {vr(wf+2*half,2)}, {vr(vTA[i + (4 if WA[G] >= 65536 else 0)])} offset:{(WA[G]&0xffff) + kk*8192 + half*4096}")
                P.mfma(vr(vZ + 4 * i, 4), vr(wf, 4), vr(xf, 4), z0, (wf, xf))
                if i == 0: P.read(xf + 4, f"ds_read_b128 {vr(xf+4,4)}, v{13+(kk&1)} offset:{G*16384+(kk>>1)*8192+2048}")
                P.mfma(vr(vZ + 16 + 4 * i, 4), vr(wf, 4), vr(xf + 4, 4), z0, (wf, xf + 4))
    P.run(OPT["look"])
    A.flush()
    A.per = OPT["per"]
    A("s_barrier")
    A.stamp(2)
    A("s_nop 7")
    gelu(vZ, 32, vFR)
    t = vFR
    for xt in (0, 1):
        z = vZ + 16 * xt
        A(f"v_pk_add_f32 {vr(t,2)}, {vr(z,2)}, {vr(z+2,2)}\nv_pk_mul_f32 {vr(t+2,2)}, {vr(z,2)}, {vr(z,2)}")
        for p in range(2, 16, 2):
            if p > 2: A(f"v_pk_add_f32 {vr(t,2)}, {vr(t,2)}, {vr(z+p,2)}")
            A(f"v_pk_fma_f32 {vr(t+2,2)}, {vr(z+p,2)}, {vr(z+p,2)}, {vr(t+2,2)}")
        A(f"v_add_f32 {vr(t+4+2*xt)}, {vr(t)}, {vr(t+1)}\nv_add_f32 {vr(t+5+2*xt)}, {vr(t+2)}, {vr(t+3)}")
    xreduce((P16, P32), [t + 4, t + 5, t + 6, t + 7], [t, t + 1, t + 2, t + 3])
    A(f"v_cmp_eq_u32 vcc, 1, {vQ}\ns_lshl_b32 {sT0}, {sR}, 1\ns_add_u32 {sT0}, {sT0}, {sSH}\nv_cndmask_b32 {vr(t+4)}, {vr(t+4)}, {vr(t+6)}, vcc\nv_cndmask_b32 {vr(t+5)}, {vr(t+5)}, {vr(t+7)}, vcc")
    A(f"v_mov_b32 {vr(t+6)}, s52\nv_mov_b32 {vr(t+7)}, s53\ns_lshl_b32 {sT0}, {sT0}, 13\ns_add_u32 {sT0}, {sT0}, {STAT}\nv_add_u32 v249, {sT0}, {vL16}")
    A(f"s_lshl_b32 {sT1}, {sCA}, 10\ns_lshl_b32 {sT2}, {sET}, 9\ns_add_u32 {sT1}, {sT1}, {sT2}\nv_add_u32 v250, 4096, v249")
    masked(-1, 0, lambda: A.vmem(f"buffer_store_dwordx4 {vr(t+4,4)}, v249, {sWS}, {sT1} offen sc1"))

def front_lead():
    PIT = 1056; L1, L2 = PR[2], PR[2] + 36864
    A(f"s_lshr_b32 s76, {sR}, 1\ns_lshl_b32 s76, s76, 5\ns_lshl_b32 s77, {sET}, 4\ns_add_u32 s76, s76, s77\ns_lshl_b32 s77, {sSH}, 2\ns_add_u32 s76, s76, s77\ns_mul_i32 s76, s76, 3584")
    A(f"s_and_b32 s77, {sR}, 1\ns_mul_i32 s77, s77, 896\ns_add_u32 s76, s76, s77\ns_mul_i32 s78, {sW}, {8*PIT}")
    for i in range(8):
        A(f"s_add_u32 m0, s78, {L1 + i*PIT}\ns_add_u32 s77, s76, {(8*(i>>2)+(i&3))*3584}")
        tok1 = A.vmem(f"buffer_load_dwordx4 {vL16}, {sWIN}, s77 offen lds")
    A(f"s_mul_i32 s76, {sR}, 37\ns_lshr_b32 s76, s76, 8\ns_mul_i32 s77, s76, 7\ns_sub_u32 s77, {sR}, s77\ns_mul_i32 s76, s76, 224")
    A(f"s_lshl_b32 s79, s77, 5\ns_cmp_ge_u32 s77, 4\ns_cselect_b32 s44, 16, 0\ns_sub_u32 s79, s79, s44\ns_cmp_eq_u32 s77, 3\ns_cselect_b32 s44, 112, 16\ns_mul_i32 s44, s44, {sSH}\ns_add_u32 s79, s79, s44")
    A(f"s_add_u32 s76, s76, s79\ns_lshl_b32 s77, {sET}, 3\ns_add_u32 s76, s76, s77\ns_lshl_b32 s44, s76, 10\ns_mov_b32 s45, s78")
    st = {}
    def wout_loads():
        for i in range(8):
            A(f"s_add_u32 m0, s45, {L2 + i*PIT}\ns_add_u32 s46, s44, {i*1024}")
            st["w"] = A.vmem(f"buffer_load_dwordx4 {vL16}, {sWOUT}, s46 offen lds")
    setup2(); consts()
    A(f"v_lshrrev_b32 v15, 2, {vLane}\nv_mul_u32_u24 v15, {PIT}, v15\nv_and_b32 v16, 3, v1\nv_lshl_add_u32 v15, v16, 3, v15\ns_mul_i32 {sT0}, {sW}, 224\ns_add_u32 {sT0}, {sT0}, {L1}\nv_add_u32 v16, {sT0}, v15\ns_lshl_b32 {sT0}, {sW}, 8\ns_add_u32 {sT0}, {sT0}, {L2}\nv_add_u32 v17, {sT0}, v15")
    A(f"s_mul_i32 {sT0}, {sR}, 28672\ns_add_u32 {sT0}, {sT0}, {sW7168}\ns_add_u32 {sT0}, {sT0}, {W1P}\ns_add_u32 {sT1}, {sT0}, 4096")
    A(f"s_mul_i32 {sT2}, {sW}, {2*114688}\ns_lshl_b32 {sT3}, {sR}, 12\ns_add_u32 {sT2}, {sT2}, {sT3}\ns_add_u32 {sT2}, {sT2}, {WOP}\ns_cmp_ge_u32 {sR}, 28\ns_cselect_b32 {sT2}, {WS_SIZE}, {sT2}\ns_add_u32 {sT3}, {sT2}, 114688")
    def half(rng, tok, flag):
        A.wait_vm(tok); A("s_barrier")
        tk = {}
        for n in rng:
            base, i = ("v16", n) if n < 7 else ("v17", n - 7)
            A.ds(f"ds_read_b64_tr_b16 {vr(112+4*n,2)}, {base} offset:{i*32}")
            tk[n] = A.ds(f"ds_read_b64_tr_b16 {vr(112+4*n+2,2)}, {base} offset:{i*32+16*PIT}")
        for n in rng:
            i = n if n < 7 else n - 7
            so = (sT0, sT1, sT2, sT3)[(0 if n < 7 else 2) + (i >> 2)]
            A.wait_lg(tk[n])
            t = A.vmem(f"buffer_store_dwordx4 {vr(112+4*n,4)}, {vL16}, {sWS}, {so} offen offset:{(i&3)*1024} sc1")
        return t
    t1 = half(range(7), tok1, FLAGP)
    wout_loads()
    A.wait_vm(t1); A("s_barrier")
    A(f"s_lshl_b32 {sT0}, {sR}, 7\ns_add_u32 s46, {sT0}, {FLAGP}\ns_add_u32 s47, {sT0}, {FLAGQ}")
    flag_store("s46", True)
    A.st("flagP")
    t2 = half(range(7, 15), st["w"], FLAGQ)
    pushc(0); A.flush()
    A.stamp(1)
    twiddles()
    A.wait_vm(t2); A("s_barrier")
    flag_store("s47", True)
    for G in range(3): A.push(it_xr(SL[6 + G], G))
    A.flush()
    A(f"v_mov_b32 v249, {WS_SIZE}\nv_mov_b32 v250, {WS_SIZE}")

def front2():
    A.stamp(3)
    if OPT["pois"] == 1: poison()
    tokP = A.vmem(LDP[0])
    A.push(IT_GATE + it_xr(SL[9], 3), "X3"); A.flush()
    poll(LDP, tagcmp([20]), tokP); A.st("got_P", 2)
    for ks in range(16): A.push(it_w1(ks), "W%d" % ks)
    pushc(1)
    A.flush("W%d" % OPT["gat"])
    g = 128
    ld = [f"buffer_load_dwordx4 {vr(g+4*k,4)}, v{249 + (k>>2)}, {sWS}, 0 offen offset:{1024*(k&3)} sc1" for k in range(7)]
    for l in ld: tokS = A.vmem(l)
    A(f"v_and_b32 v11, 3, {vI16}\nv_bfe_u32 v12, {vI16}, 3, 1\nv_lshl_add_u32 v11, v12, 2, v11\nv_bfe_u32 v15, v11, 1, 2\nv_bfe_u32 v12, {vI16}, 2, 1\nv_lshl_add_u32 v11, v12, 4, v11")
    A(f"s_lshl_b32 {sT0}, {sW}, 12\ns_add_u32 {sT0}, {sT0}, {SCR}\nv_lshlrev_b32 v11, 7, v11\nv_lshl_add_u32 v11, v15, 5, v11\nv_lshl_add_u32 v11, {vQ}, 3, v11\nv_add_u32 v11, {sT0}, v11")
    A(f"v_lshrrev_b32 v12, 2, {vLane}\nv_lshlrev_b32 v12, 7, v12\nv_bfe_u32 v15, {vLane}, 3, 2\nv_lshl_add_u32 v12, v15, 5, v12\nv_and_b32 v15, 3, v1\nv_lshl_add_u32 v12, v15, 3, v12\nv_add_u32 v12, {sT0}, v12")
    for i in range(4): A(f"v_xor_b32 v{160+i}, {32*i}, v11\nv_xor_b32 v{164+i}, {32*i}, v12")
    A(f"s_lshl_b32 {sT1}, {sR}, 1\ns_add_u32 {sT1}, {sT1}, {sSH}\ns_mul_i32 {sT0}, {sT1}, 57344\ns_lshl_b32 {sT1}, {sCA}, 13\ns_add_u32 {sT0}, {sT0}, {sT1}")
    A(f"s_lshl_b32 {sT1}, {sET}, 12\ns_add_u32 {sT0}, {sT0}, {sT1}\ns_add_u32 {sKB}, {sT0}, {Z2N}\ns_cmp_eq_u32 {sCA}, 7\ns_cselect_b32 {sKB}, {WS_SIZE}, {sKB}")
    A.flush("W%d" % (OPT["gat"] + 5)); A.st("pre_stat", 2)
    poll(ld, tagcmp([g + 4 * k + 2 for k in range(7)]), tokS, True)
    A.stamp(4)
    for k in range(1, 7): A(f"v_pk_add_f32 {vr(g,2)}, {vr(g,2)}, {vr(g+4*k,2)}")
    xreduce((P32,), [g, g + 1], [g + 2, g + 3])
    A(f"v_mul_f32 {vr(g)}, {fbits(1/896)}, {vr(g)}\nv_mul_f32 {vr(g+1)}, {fbits(1/896)}, {vr(g+1)}")
    A(f"v_fma_f32 {vr(g+1)}, -{vr(g)}, {vr(g)}, {vr(g+1)}\nv_max_f32 {vr(g+1)}, 0, {vr(g+1)}\nv_add_f32 {vr(g+1)}, {fbits(1e-5)}, {vr(g+1)}\nv_rsq_f32 {vr(g+2)}, {vr(g+1)}\ns_nop 0")
    A(f"v_mul_f32_e64 {vr(g+3)}, -{vr(g)}, {vr(g+2)}\nv_mov_b32 {vr(g+4)}, {vr(g+2)}\nv_mov_b32 {vr(g+5)}, {vr(g+3)}\ns_nop 1\n{P16} {vr(g+2)}, {vr(g+4)}\n{P16} {vr(g+3)}, {vr(g+5)}\ns_nop 1")
    for xt in (0, 1):
        for i in range(4):
            b = vZ + 16 * xt + 4 * i; pp = vr(g + 2 + 2 * xt, 2)
            for p in (0, 2): A(f"v_pk_fma_f32 {vr(b+p,2)}, {vr(b+p,2)}, {pp}, {pp} op_sel:[0,0,1] op_sel_hi:[1,0,1]")
            A(f"v_cvt_pk_bf16_f32 {vr(b)}, {vr(b)}, {vr(b+1)}\nv_cvt_pk_bf16_f32 {vr(b+1)}, {vr(b+2)}, {vr(b+3)}")
            A.ds(f"ds_write_b64 v{160+i}, {vr(b,2)} offset:{xt*1024}")
    A.wait_all_lg()
    for i in range(4):
        A.ds(f"ds_read_b64_tr_b16 {vr(ZH+4*i,2)}, v{164+i}")
        A.ds(f"ds_read_b64_tr_b16 {vr(ZH+4*i+2,2)}, v{164+i} offset:2048")
    A.wait_all_lg()
    for i in range(4): A.tok["Z"] = A.vmem(f"buffer_store_dwordx4 {vr(ZH+4*i,4)}, {vL16}, {sWS}, {sKB} offen offset:{1024*i} sc1")
    A.stamp(5)

ring = [48, 52, 56, 60, 64, 20, 24, 28, 236, 248, 252, 228, 232] + [40, 44, 32, 240, 244]
NPRE = 13
tz = {}
def z_item(n):
    ks, ft = divmod(n, 7); pre = ""
    if ft == 0: pre = f"s_bfe_u32 {sZ}, {sROT}, {(4<<16)|(4*(ks>>1))}\ns_mul_i32 {sZ}, {sZ}, 114688" + (f"\ns_add_u32 {sZ}, {sZ}, 57344" if ks & 1 else "")
    if ft == 4: pre = f"s_add_u32 {sZ}, {sZ}, 4096"
    return (pre, f"buffer_load_dwordx4 {vr(ring[n%len(ring)],4)}, {vZA}, {sWS}, {sZ} offen offset:{(ft&3)*1024} sc1")
def mid_B():
    A(f"s_add_u32 {sT0}, {sW2048}, {SL[6]}\nv_add_u32 v12, {sT0}, {vXrd0}\nv_add_u32 v13, {sT0}, {vXrd1}")
    for x in (1, 2, 3): A(f"v_xor_b32 v{12+2*x}, {2048*x}, v12\nv_xor_b32 v{13+2*x}, {2048*x}, v13")
    P = Pipe()
    c_read(0)
    gbar("X3", False)
    pushc(2); pushc(3)
    def fz():
        A.wait_named("Z"); A("s_barrier")
        A(f"s_lshl_b32 {sT0}, {sCA}, 12\ns_lshl_b32 {sT1}, {sR}, 7\ns_add_u32 {sT0}, {sT0}, {sT1}\ns_add_u32 {sT0}, {sT0}, {FLAGZ}")
        flag_store(sT0, True); A.stamp(6)
    hk = {4: fz}
    for j, ks in enumerate(CK): hk[ks] = (lambda j=j: cnext(j + 1))
    for G in range(4): stageB(P, G, hk)
    P.run(OPT["look"])
    A.stamp(8)
    A("s_barrier")
    tk = flagZ_issue()
    for j in range(len(CK) + 1, 5): cnext(j)
    A(f"s_mul_i32 {sT0}, {sC}, 7168\ns_mul_i32 {sT1}, {sW}, {16*57344}\ns_add_u32 {sT0}, {sT0}, {sT1}\ns_add_u32 {sT0}, {sT0}, {Z2N}\nv_add_u32 {vZA}, {sT0}, {vL16}")
    def pz():
        poll(LDZ, tagcmp([246]), tk); A.stamp(9)
        for n in range(NPRE): A.push([z_item(n)], "z%d" % n)
    b_epilogue(pz)
    for n in range(NPRE): tz[n] = A.tok["z%d" % n]
    A.stamp(10)

FIX = []
def back():
    A.stamp(11)
    ACC = 116; CF = 68; R = len(ring)
    def zload(n):
        pre, ins = z_item(n)
        if pre: A.raw(pre)
        tz[n] = A.vmem(ins)
    F = []
    for u in (1, 2, 3):
        F += [f"s_add_u32 {sT0}, {sW}, {u}\ns_and_b32 {sT0}, {sT0}, 3", f"s_mul_i32 {sT0}, {sT0}, 21504\ns_add_u32 {sT0}, {sT0}, {(u-1)*7168}", f"v_add_u32 v{15+u}, {sT0}, {vL16}"]
    F += [f"s_mul_i32 {sT0}, {sW}, 21504\nv_add_u32 v19, {sT0}, {vL16}"]
    F += [f"s_sub_u32 {sT0}, 32, {sR}\ns_min_u32 {sT0}, {sT0}, {sR}", f"s_and_b32 {sT0}, {sT0}, 15\ns_mul_i32 {sT0}, {sT0}, 139264", f"s_add_u32 {sT0}, {sT0}, {F2}\ns_mul_i32 {sT1}, {sW}, 8704",
          f"s_add_u32 {sT0}, {sT0}, {sT1}\ns_lshl_b32 {sT1}, {sC}, 6", f"s_cmp_ge_u32 {sC}, 4\ns_cselect_b32 s21, 0x300, 0\ns_cselect_b32 {sT2}, 48, 0", f"s_add_u32 {sT2}, {sT2}, {sT1}\nv_add_u32 v12, {sT2}, {vI16}",
          "v_sub_u32 v13, 512, v12", "v_min_u32 v12, v12, v13", f"s_mov_b32 {sT2}, {8*4352}\nv_lshlrev_b32 v12, 4, v12", f"v_mad_u32_u24 v12, {vQ}, {sT2}, v12", f"v_add_u32 v12, {sT0}, v12"]
    F += [f"v_lshrrev_b32 v13, 3, {vLane}", "v_mul_u32_u24 v13, 9, v13", f"v_add_u32 v13, {sT1}, v13", "v_sub_u32 v114, 512, v13", "v_min_u32 v13, v13, v114",
          "v_bfe_u32 v13, v13, 5, 3", "v_and_b32 v114, 6, v1", "v_lshlrev_b32 v114, 2, v114", "v_and_or_b32 v114, v1, 1, v114", "v_lshl_add_u32 v13, v13, 5, v114", "v_lshlrev_b32 v13, 7, v13",
          f"s_lshl_b32 {sT0}, {sW}, 8\ns_add_u32 {sT0}, {sT0}, {FLAGF}", f"v_add_u32 v13, {sT0}, v13"]
    F += [f"s_mov_b32 {sSEL[0]}, 0x03020100\ns_mov_b32 {sSEL[1]}, 0x01000302", f"s_cmp_lt_u32 {sR}, 16\ns_cselect_b32 {sM0}, 0x80000000, 0", f"s_or_b32 {sM1}, {sM0}, 0x8000",
          f"s_cmp_eq_u32 {sR}, 0\ns_cselect_b32 {sSEL[0]}, 0x0c0c0100, {sSEL[0]}\ns_cselect_b32 {sSEL[1]}, 0x0c0c0302, {sSEL[1]}",
          f"s_cmp_eq_u32 {sR}, 16\ns_cselect_b32 {sSEL[0]}, 0x01000c0c, {sSEL[0]}\ns_cselect_b32 {sSEL[1]}, 0x03020c0c, {sSEL[1]}\ns_cselect_b32 {sM1}, 0x80000000, {sM1}",
          f"s_cmp_ge_u32 {sC}, 4\ns_cselect_b32 {sT3}, 0x80008000, 0\ns_xor_b32 {sM1}, {sM1}, {sT3}"]
    F += [f"s_mul_i32 {sT0}, {sC}, {OPT['prot']}\ns_add_u32 s47, {sW}, {sT0}\ns_and_b32 s47, s47, 3", f"s_mul_i32 {sKB}, {sR}, {4*28672}\ns_add_u32 {sKB}, {sKB}, {HB}", f"s_mul_i32 {sT0}, s47, 7168\ns_add_u32 {sKB}, {sKB}, {sT0}",
          f"s_mul_i32 s20, {sC}, 114688\ns_mul_i32 {sT0}, s47, 28672", f"s_add_u32 s20, s20, {sT0}\ns_add_u32 s20, s20, {WOP}"]
    for u in range(4):
        F += [f"s_add_u32 {sT0}, {sW}, {u}\ns_and_b32 {sT0}, {sT0}, 3", f"s_mul_i32 {sT0}, {sT0}, 28672\ns_add_u32 s{24+u}, {sT0}, {sKB}"]
    F += [f"s_lshl_b32 {sT0}, {sW}, 1\nv_lshlrev_b32 v11, 3, {vQ}", f"v_add_u32 v11, {sT0}, v11", "v_cvt_f32_u32 v11, v11"]
    gu = [vG, "v14", "v15", "v6"]
    F += [f"v_mul_f32 {vOMG}, {fbits(1.4426950408889634)}, {vG}", f"v_exp_f32 {vOMG}, {vOMG}", f"v_add_f32 {vOMG}, 1.0, {vOMG}", f"v_rcp_f32 {vOMG}, {vOMG}"]
    for g_ in gu: F += [f"v_mul_f32 {g_}, {fbits(-1.4426950408889634)}, {g_}", f"v_exp_f32 {g_}, {g_}", f"v_add_f32 {g_}, 1.0, {g_}", f"v_rcp_f32 {g_}, {g_}"]
    for u in range(4):
        F += [f"s_sub_i32 {sT0}, {sCU[u]}, {sCU[0]}\ns_ashr_i32 {sT0}, {sT0}, 12", f"v_add_u32 v4, {sT0}, {vTrow}", "v_cvt_f32_u32 v4, v4", f"v_mul_f32 v4, {fbits(1/2048)}, v4", "v_mul_f32 v5, v4, v11"]
        for k in (0, 1):
            for g2 in (0, 1):
                d = CF + 8 * u + 4 * k + 2 * g2
                F += [f"v_fmamk_f32 v114, v4, {fbits(float(k+32*g2))}, v5"] + (["v_fract_f32 v114, v114"] if OPT["fract"] else []) + ["v_sin_f32 v115, -v114", "v_cos_f32 v114, v114",
                      f"v_mul_f32 v115, {gu[u]}, v115", f"v_mul_f32 v114, {gu[u]}, v114", "v_cvt_pk_bf16_f32 v114, v114, v115",
                      f"v_perm_b32 {vr(d)}, v114, v114, {sSEL[0]}", f"v_perm_b32 {vr(d+1)}, v114, v114, {sSEL[1]}",
                      f"v_xor_b32 {vr(d)}, {sM0}, {vr(d)}", f"v_xor_b32 {vr(d+1)}, {sM1}, {vr(d+1)}"]
    F += [f"v_lshlrev_b32 v6, 10, {vTrow}", f"v_bfe_u32 v114, {vLane}, 4, 1", "v_lshl_add_u32 v6, v114, 5, v6", f"v_lshrrev_b32 v114, 5, {vLane}", "v_lshl_add_u32 v6, v114, 4, v6",
          f"v_lshlrev_b32 v14, 3, {vLane}", "v_and_b32 v15, 56, v14", "v_lshlrev_b32 v15, 4, v15"]
    F += [f"s_mul_i32 s46, s47, 896\ns_add_u32 s46, s46, {FLAGQ}", "v_min_u32 v115, 768, v15"]
    F += [f"s_lshl_b32 {sT0}, s47, 13\ns_lshl_b32 {sT1}, {sR}, 7", f"s_add_u32 {sT0}, {sT0}, {sT1}\ns_add_u32 {sT0}, {sT0}, {FLAGF}", f"s_sub_u32 {sT0}, {sT0}, s46\nv_and_b32 v114, 1, v1", f"v_lshl_add_u32 v114, v114, 12, {sT0}",
          "v_cmp_lt_u32 vcc, 31, v1\ns_nop 1\nv_cndmask_b32 v115, v115, v114, vcc"]
    F += ["v_bfe_u32 v15, v1, 1, 2", "v_mul_u32_u24 v15, 28672, v15", "v_and_b32 v114, 1, v1", "v_lshl_add_u32 v15, v114, 9, v15"]
    nsetup = len(F)
    F = deque(F)
    def red_write(ft):
        for u in (1, 2, 3): A.ds(f"ds_write_b128 v{15+u}, {vr(ACC+(ft*4+u)*4,4)} offset:{ft*1024}")
    ldF = [f"buffer_load_dwordx2 v[2:3], v13, {sWS}, 0 offen sc1", f"buffer_load_dwordx2 v[4:5], v115, {sWS}, s46 offen sc1"]
    A.per = 56
    NPF = OPT["npf"]
    for j in range(max(5, len(CK) + 1), 8): c_read(j)
    nxt = NPRE
    for n in range(112):
        ks, ft = divmod(n, 7)
        if n == 4: A.wait_all_lg()
        if n == 40: A("s_barrier")
        if n == NPF + R + 1: poll(ldF, tagcmp([2, 4]), tokPF)
        A.wait_vm(tz[n])
        if OPT["p2st"] and n in (0, 14, 28, 42, 56, 70, 84, 93, 105): A.stamp(1 + (0, 14, 28, 42, 56, 70, 84, 93, 105).index(n))
        for u in range(4):
            mfma(vr(ACC + (ft * 4 + u) * 4, 4), vr(ring[n % R], 4), ar((ks * 4 + u) * 4, 4), "0" if ks == 0 else None)
            if n >= 4 and F: A.raw(F.popleft())
            if u == 1 and nxt < n + R and nxt < 112: zload(nxt); nxt += 1
        if nxt <= n + R and nxt < 112: zload(nxt); nxt += 1
        if n == NPF:
            assert n * 4 - 16 > nsetup
            for l in ldF: tokPF = A.vmem(l)
        if n + R == 112:
            A.push([(f"s_xor_b32 {sBG}, s21, {et*256}" + (f"\ns_add_u32 {sBG}, {sBG}, 4352" if k else ""), f"buffer_load_dwordx4 {ar(112+(k*4+et)*4,4)}, v12, {sWS}, {sBG} offen sc1") for k in (0, 1) for et in range(4)], "FL")
            A.push([(f"s_add_u32 {sBG}, s20, {(m>>2)*4096}" if m % 4 == 0 else "", f"buffer_load_dwordx4 {ar(4*m,4)}, {vL16}, {sWS}, {sBG} offen offset:{(m&3)*1024} sc1") for m in range(28)], "WO")
        if ks == 15 and ft >= 2: red_write(ft - 2)
    assert not F
    A("s_nop 3"); red_write(5); A("s_nop 1"); red_write(6)
    A.stamp(12)
    hp = 40
    A(f"v_mov_b32 v37, {vB}")
    Z = 228
    for k in range(14):
        A(f"v_lshlrev_b32 {vr(Z+2*k)}, 16, {vr(Z1P+k)}\nv_and_b32 {vr(Z+2*k+1)}, 0xffff0000, {vr(Z1P+k)}\nv_pk_mul_f32 {vr(Z+2*k,2)}, {vr(Z+2*k,2)}, v[36:37] op_sel_hi:[1,0]")
    A.wait_all_lg(); A("s_barrier")
    A.lock += 1
    tk = {}
    def rr(ft):
        if ft < 7:
            for u in (1, 2, 3): tk[ft] = A.ds(f"ds_read_b128 {vr(ACC+(ft*4+u)*4,4)}, v19 offset:{(u-1)*7168+ft*1024}")
    for ft in range(4): rr(ft)
    for ft in range(7):
        b = ACC + ft * 16
        for p in (0, 2): A(f"v_pk_add_f32 {vr(b+p,2)}, {vr(b+p,2)}, v[36:37] op_sel:[0,1] op_sel_hi:[1,1]")
        A.wait_lg(tk[ft]); rr(ft + 4)
        for p in (0, 2): A(f"v_pk_add_f32 {vr(b+p,2)}, {vr(b+p,2)}, {vr(b+4+p,2)}\nv_pk_add_f32 {vr(b+8+p,2)}, {vr(b+8+p,2)}, {vr(b+12+p,2)}")
        for p in (0, 2): A(f"v_pk_add_f32 {vr(b+p,2)}, {vr(b+p,2)}, {vr(b+8+p,2)}")
        for p in (0, 2): A(f"v_pk_mul_f32 {vr(b+p,2)}, {vr(b+p,2)}, {vr(Z+4*ft+p,2)}")
        A(f"v_cvt_pk_bf16_f32 {vr(hp+2*ft)}, {vr(b)}, {vr(b+1)}\nv_cvt_pk_bf16_f32 {vr(hp+1+2*ft)}, {vr(b+2)}, {vr(b+3)}")
        if ft % 2 == 0: A(f"v_min_u32 {vr(hp+2*ft)}, -2, {vr(hp+2*ft)}")
        if ft in (1, 3, 5): A.vmem(f"buffer_store_dwordx4 {vr(hp+2*ft-2,4)}, {vL16}, {sWS}, s80 offen offset:{1024*(ft>>1)} sc1")
    tokH = A.vmem(f"buffer_store_dwordx2 {vr(hp+12,2)}, v14, {sWS}, s81 offen offset:3072 sc1")
    A.lock -= 1
    A.stamp(13)
    OA = 116
    RED2 = 98304
    A.wait_named("FL")
    for k in (0, 1):
        for u in range(4):
            for et in range(4): mfma(vr(OA + 16 * u + 4 * et, 4), ar(112 + (k * 4 + et) * 4, 4), vr(CF + 8 * u + 4 * k, 4), "0" if k == 0 else None)
    A.flush()
    A.stamp(14)
    ldH = [f"buffer_load_dword v2, v15, {sWS}, {sKB} offen offset:3072 sc1"]
    tokPH = A.vmem(ldH[0])
    for u in (1, 2, 3):
        A(f"s_add_u32 {sT0}, {sW}, {u}\ns_and_b32 {sT0}, {sT0}, 3\ns_mul_i32 {sT0}, {sT0}, 12288\ns_add_u32 {sT0}, {sT0}, {RED2+(u-1)*4096}\nv_add_u32 v{15+u}, {sT0}, {vL16}")
    A(f"s_mul_i32 {sT0}, {sW}, 12288\ns_add_u32 {sT0}, {sT0}, {RED2}\nv_add_u32 v19, {sT0}, {vL16}\ns_lshl_b32 {sT1}, {sC}, 7")
    for u in range(4): A(f"s_add_u32 {sCU[u]}, s{24+u}, 4096")
    A.stamp(15)
    poll(ldH, "v_cmp_eq_u32 vcc, -1, v2", tokPH, sleep=OPT["hsleep"])
    A.stamp(16)
    hr = list(range(180, 256, 4)) + [20, 24, 28, 32, 56, 60, 64, 68, 72]
    th = {}
    order = [(u, ls) for u in (1, 2, 3, 0) for ls in range(7)]
    def htext(n):
        u, ls = order[n]; h = hr[n]
        sb = f"s{24+u}" if ls < 4 else sCU[u]; io = (ls & 3) * 1024
        if ls == 3: return [f"buffer_load_dwordx2 {vr(h+2*k,2)}, v14, {sWS}, {sb} offen offset:{io+512*k} sc1" for k in (0, 1)]
        return [f"buffer_load_dwordx4 {vr(h,4)}, {vL16}, {sWS}, {sb} offen offset:{io} sc1"]
    def hload(n):
        if n < 28:
            for t_ in htext(n): th[n] = A.vmem(t_)
    HL = OPT["hl"]
    for n in range(HL): hload(n)
    def chk(n): return f"v_max_u32 v2, {vr(hr[n])}, {vr(hr[n]+2)}\nv_cmp_eq_u32 vcc, -1, v2" if order[n][1] == 3 else f"v_cmp_eq_u32 vcc, -1, {vr(hr[n])}"
    def br(n):
        A.raw(f"s_cbranch_vccnz Lfix{n}\nLbk{n}:")
        FIX.append(f"Lfix{n}:\ns_mov_b32 {sSPIN}, 0x40000\nLfl{n}:\n" + "\n".join(htext(n)) + f"\ns_waitcnt vmcnt(0)\n{chk(n)}\ns_cbranch_vccz Lbk{n}\ns_sub_u32 {sSPIN}, {sSPIN}, 1\ns_cmp_lg_u32 {sSPIN}, 0\ns_cbranch_scc1 Lfl{n}\ns_branch Lbk{n}")
    A.wait_vm(th[0]); A.raw(chk(0)); br(0)
    for n in range(28):
        u, ls = order[n]
        if n in (0, 7, 14, 21, 26): A.st("h%d" % n, 2)
        for et in range(4):
            mfma(vr(OA + 16 * u + 4 * et, 4), ar((ls * 4 + et) * 4, 4), vr(hr[n], 4))
            if et == 1 and n < 27: A.wait_vm(th[n + 1]); A.raw(chk(n + 1))
        if n < 27: br(n + 1)
        hload(n + HL)
        if n in (8, 15, 22):
            up = order[n - 2][0]
            for et in range(4): A.ds(f"ds_write_b128 v{15+up}, {vr(OA+16*up+4*et,4)} offset:{et*1024}")
        if n == 25:
            A.wait_all_lg(); A.st("hb", 2); A("s_barrier")
            for k in range(12): A.ds(f"ds_read_b128 {vr(OA+16+4*k,4)}, v19 offset:{k*1024}")
    A.wait_all_lg()
    for p in range(0, 16, 2): A(f"v_pk_add_f32 {vr(OA+16+p,2)}, {vr(OA+16+p,2)}, {vr(OA+32+p,2)}")
    for p in range(0, 16, 2): A(f"v_pk_add_f32 {vr(OA+p,2)}, {vr(OA+p,2)}, {vr(OA+48+p,2)}")
    for p in range(0, 16, 2): A(f"v_pk_add_f32 {vr(OA+p,2)}, {vr(OA+p,2)}, {vr(OA+16+p,2)}")
    for et in range(4):
        A(f"v_cvt_pk_bf16_f32 v{40+2*et}, {vr(OA+4*et)}, {vr(OA+4*et+1)}\nv_cvt_pk_bf16_f32 v{41+2*et}, {vr(OA+4*et+2)}, {vr(OA+4*et+3)}")
    A("s_nop 1")
    for pr in (0, 1): A(f"{P16} v{40+4*pr}, v{42+4*pr}\n{P16} v{41+4*pr}, v{43+4*pr}")
    A("s_nop 1")
    for pr in (0, 1): A.vmem(f"buffer_store_dwordx4 {vr(40+4*pr,4)}, v6, {sOUT}, {sT1} offen offset:{64*pr} {('', 'sc1', 'nt', 'sc0 sc1')[OPT['osc']]}")
    A.stamp(17)
    lb = A.lab("Lnobump")
    A(f"s_or_b32 {sT0}, s2, {sW}\ns_cmp_lg_u32 {sT0}, 0\ns_cbranch_scc1 {lb}")
    A(f"v_mov_b32 v11, {EPOCH}\ns_mov_b64 exec, 1\nbuffer_store_dwordx2 v[38:39], v11, {sWS}, 0 offen sc1\ns_mov_b64 exec, -1\n{lb}:")
    if OPT["diag"] >= 0:
        A(f"s_cmp_lg_u32 s2, 9\ns_cbranch_scc1 Lend\ns_sub_u32 s96, s96, s98\ns_lshl_b32 s96, s96, 3\ns_add_u32 s96, s96, 5000\nLdiag:\ns_memrealtime s[100:101]\ns_waitcnt lgkmcnt(0)\ns_sub_u32 s100, s100, s98\ns_cmp_lt_u32 s100, s96\ns_cbranch_scc1 Ldiag")
    if OPT["prof"]:
        A("s_memrealtime s[100:101]\ns_waitcnt lgkmcnt(0)\nv_writelane_b32 v0, s100, 63")
        A(f"s_lshl_b32 {sT0}, s2, 2\ns_add_u32 {sT0}, {sT0}, {sW}\ns_lshl_b32 {sT0}, {sT0}, 8\ns_add_u32 {sT0}, {sT0}, {TS}\nv_lshlrev_b32 v11, 2, v1\nbuffer_store_dword v0, v11, {sWS}, {sT0} offen")

prologue()
A(f"s_cmp_eq_u32 {sCA}, 7\ns_cbranch_scc1 Llead")
st = (list(A.vm), list(A.lg))
front_main()
assert not A.bg
A.raw("Ljoin:")
front2()
mid_B()
back()
A("s_branch Lend")
A.raw("Llead:")
A.vm, A.lg = st; A.tok = {}; A.per = OPT["per"]
front_lead()
assert not A.bg
A("s_branch Ljoin")
for f_ in FIX: A.raw(f_)
A("Lend:\ns_endpgm")

hdr = open("cdna_kernels/%s.s.ref" % NAME).read().split("; Override launch")[0]
if OPT["prof"]: hdr += "; STAMPS " + " ".join(A.names) + "\n"
out = hdr + "; @launch grid=(256,1,1) block=(256,1,1) lds=%d\n" % LDS_SIZE
out += '.amdgcn_target "amdgcn-amd-amdhsa--gfx950"\n.text\n.globl %s_kernel\n.p2align 8\n.type %s_kernel,@function\n%s_kernel:\n' % (NAME, NAME, NAME)
def addnt(l):
    t = l.strip()
    if OPT["nt"] and (t.startswith("buffer_load") or t.startswith("global_load")) and sWS not in t:
        return l[:-4] + " nt lds" if t.endswith(" lds") else l + " nt"
    return l
def keep(l):
    t = l.strip()
    if OPT["strip"] == 1: return not t.startswith(("v_mfma", "ds_", "v_pk_", "v_exp", "v_rcp", "v_cos", "v_sin", "v_fract", "v_fmamk", "v_cvt_pk", "v_perm_b32"))
    if OPT["strip"] == -1: return not (t.startswith("buffer_store_dwordx2 v[1") and ", v14, " in t)
    if OPT["strip"] == -2: return not t.startswith("s_cbranch_vccnz Lfix")
    if OPT["strip"] == -3: return not (t.startswith("s_cbranch_vccnz Lfix") or t.startswith("v_mfma"))
    if OPT["strip"] == 3 and t.startswith("ds_read"): return False
    if OPT["strip"] == 4 and t.startswith("s_waitcnt lgkmcnt") and not t.endswith("(0)"): return False
    if OPT["strip"] == 5 and t.startswith("v_mfma"): return False
    if OPT["strip"] == 6 and t.startswith("s_barrier"): return False
    if OPT["strip"] >= 2: return not (t.endswith(" lds") or (t.startswith("buffer_load_dwordx4") and (", v37, " in t or ", v7, " in t or " a[" in t)))
    return True
out += "\n".join(addnt(l) for l in A.L if keep(l)) + "\n"
out += """.section .rodata,"a"
.p2align 6
.amdhsa_kernel %s_kernel
  .amdhsa_next_free_vgpr 512
  .amdhsa_next_free_sgpr 102
  .amdhsa_accum_offset 256
  .amdhsa_group_segment_fixed_size 0
  .amdhsa_kernarg_size 112
  .amdhsa_user_sgpr_count 2
  .amdhsa_user_sgpr_kernarg_segment_ptr 1
  .amdhsa_system_sgpr_workgroup_id_x 1
.end_amdhsa_kernel
""" % NAME
open(sys.argv[1], "w").write(out)
```

```python
import sys, struct
from collections import deque
NAME = "gated_mix__spectral_fnet__mixer_gmlp__prompt"
OPT = dict(diag=-1, hl=10, p2st=0, strip=0, ahead=0, sleep=4, npf=76, nt=0, rota=1, rotc=1, prof=0, xmap=1, per=40, pera=40, look=12, gat=3, prot=0, tlb=0, warm=1, wb=2, perg=120, ssleep=16, wx=0, kz=11, kc=13, per2=100, osc=0, pois=3, x0=1, hsleep=1, xrot=0, fa1=1, ntc=1, ck=1, rt=0, fract=0)
for a in sys.argv[2:]:
    k, v = a.split("="); OPT[k] = int(v)

def fbits(x): return "0x%08x" % struct.unpack("<I", struct.pack("<f", x))[0]
def cost(ln):
    op = ln.split()[0]
    if op.startswith("v_mfma"): return 16
    if op in ("v_exp_f32", "v_rcp_f32", "v_rsq_f32", "v_sin_f32", "v_cos_f32"): return 8
    if op.startswith("ds_read"): return 0
    if op == "s_nop": return 4 * (int(ln.split()[1]) + 1)
    return 4

class Asm:
    def __init__(s):
        s.L = []; s.vm = []; s.lg = []; s.n = 0; s.nlab = 0; s.nst = 0
        s.names = []; s.bg = deque(); s.acc = 0; s.lock = 0; s.tok = {}; s.per = OPT["per"]
    def raw(s, t):
        for ln in t.split("\n"):
            ln = ln.strip()
            if not ln: continue
            if ln.endswith(":"): s.L.append(ln)
            else: s.L.append("    " + ln); s.acc += cost(ln)
    def __call__(s, t):
        s.raw(t); s.tick()
    def tick(s):
        if s.lock or not s.bg:
            if not s.bg: s.acc = min(s.acc, s.per)
            return
        if s.acc >= s.per: s.pop()
    def pop(s):
        pre, ins, name = s.bg.popleft()
        s.lock += 1
        if pre: s.raw(pre)
        if isinstance(ins, int): t = None; s.vm.append(("c", ins))
        else: t = s.vmem(ins)
        s.lock -= 1
        if name: s.tok[name] = t
        s.acc = 0
    def push(s, items, name=None):
        for i, (pre, ins) in enumerate(items): s.bg.append((pre, ins, name if i == len(items) - 1 else None))
    def front(s, items, name):
        while s.bg and "m0" not in s.bg[0][0]: s.pop()
        new = [(p, i, name if k == len(items) - 1 else None) for k, (p, i) in enumerate(items)]
        s.bg.extendleft(reversed(new))
    def flush(s, name=None):
        while s.bg and (name is None or name not in s.tok): s.pop()
    def wait_named(s, name):
        s.flush(name)
        t = s.tok[name]
        while s.bg and t in s.vm and len(s.vm) - 1 - s.vm.index(t) < OPT["ahead"]: s.pop()
        if t in s.vm and name[0] == "W" and name not in ("W11", "W15"): s.wait_vm(t)
        if t in s.vm:
            s.st("pre_" + name, 2); s.wait_vm(t); s.st("got_" + name, 2)
    def c(s, t): s.L.append("    ; " + t)
    def lab(s, p="L"):
        s.nlab += 1; return "%s%d" % (p, s.nlab)
    def vmem(s, t):
        if len(s.vm) >= 62: s.wait_vm(s.vm[len(s.vm) - 62])
        s.raw(t); s.n += 1; s.vm.append(s.n); return s.n
    def ds(s, t):
        if len(s.lg) >= 15: s.wait_lg(s.lg[len(s.lg) - 15])
        s.raw(t); s.n += 1; s.lg.append(s.n); n = s.n; s.tick(); return n
    def wait_vm(s, tok):
        if tok not in s.vm: return
        i = s.vm.index(tok); s.vm = s.vm[i + 1:]
        sites = [x[1] for x in s.vm if isinstance(x, tuple)]; n = len(s.vm) - len(sites)
        if sites:
            l = s.lab("Lw")
            s.raw("s_waitcnt vmcnt(%d)" % (n + 8))
            for x in sites: s.raw("s_cmp_eq_u32 s67, %d\ns_cbranch_scc1 %s" % (x, l))
            s.raw("s_waitcnt vmcnt(%d)\n%s:" % (n, l))
        else: s.raw("s_waitcnt vmcnt(%d)" % n)
    def wait_lg(s, tok):
        if tok not in s.lg: return
        i = s.lg.index(tok); s.raw("s_waitcnt lgkmcnt(%d)" % (len(s.lg) - 1 - i)); s.lg = s.lg[i + 1:]
    def wait_all_lg(s):
        if s.lg: s.raw("s_waitcnt lgkmcnt(0)")
        s.lg = []
    def stamp(s, k):
        if OPT["diag"] == k: s.raw("s_memrealtime s[96:97]\ns_waitcnt lgkmcnt(0)"); s.lg = []
        s.st(str(k))
    def st(s, name, lvl=1):
        if OPT["prof"] < lvl: return
        if name not in s.names: s.names.append(name)
        k = s.names.index(name); assert k < 61
        acc = s.acc
        s.raw(("s_memrealtime" if OPT["rt"] else "s_memtime") + " s[78:79]\ns_waitcnt lgkmcnt(0)\nv_writelane_b32 v0, s78, %d" % (k + 1)); s.lg = []; s.acc = acc
A = Asm()
def vr(b, n=1): return "v%d" % b if n == 1 else "v[%d:%d]" % (b, b + n - 1)
def ar(b, n=1): return "a%d" % b if n == 1 else "a[%d:%d]" % (b, b + n - 1)
def mfma(d, a, b, c=None): A("v_mfma_f32_16x16x32_bf16 %s, %s, %s, %s" % (d, a, b, d if c is None else c))

EPOCH, FLAGZ, FLAGF, FLAGP, FLAGQ, FLAGH, STAT = 0x0, 0x90000, 0x98000, 0x1000, 0x2000, 0xA0000, 0x10000
Z2N, HB, F2, W1P, WOP, TS, WS_SIZE = 0x100000, 0x480000, 0x800000, 0xA20000, 0xB00000, 0xC00000, 0x1000000
SL = [16384 * i for i in range(10)]
PR = [32768 * i for i in range(5)]
SCR = SL[0]; Z1B = SL[6]; GX = SL[7]
LDS_SIZE = 163840
sX, sWIN, sWSP, sWOUT = ["s[%d:%d]" % (b, b + 3) for b in range(4, 20, 4)]
sAX = ["s20", "s21", "s22", "s23"]; sAW = ["s24", "s25", "s26", "s27"]
sWS, sOUT, sBSP, sGW, sTMP = ["s[%d:%d]" % (b, b + 3) for b in range(28, 48, 4)]
sROT, sBG2, sET, sSH = "s48", "s49", "s50", "s51"
sR, sC, sW = "s54", "s55", "s56"
sW2048, sW7168, sW8192 = "s57", "s58", "s59"
sCU = ["s60", "s61", "s62", "s63"]
sSEL = ["s64", "s65"]; sZ = "s66"; sSG = "s67"; sM0, sM1 = "s68", "s69"
sT0, sT1, sT2, sT3, sSPIN, sKB = "s70", "s71", "s72", "s73", "s74", "s75"
sGC = "s[76:77]"; sBG = "s3"; sCA = "s95"
vLane, vI16, vQ, vXrd0, vXrd1, vWrd, vL16, vTrow, vB, vG = ["v%d" % i for i in range(1, 11)]
vW1 = [25, 26]; vXA = [27, 28]; vXR = [29, 30]; vCb = [32, 33]; vCo = [34, 35]; vOMG = "v36"; vZA = "v37"
vR32 = 40; vWD = 48; vZ = 80; vAB = 112; vGA = 176; vFR = 180
vWA = list(range(112, 120)); vTA = list(range(120, 128))
P16, P32 = "v_permlane16_swap_b32", "v_permlane32_swap_b32"

def masked(mask_lo, mask_hi, fn):
    A.lock += 1
    A.raw(f"s_mov_b32 exec_lo, {mask_lo}\ns_mov_b32 exec_hi, {mask_hi}")
    r = fn()
    A.raw("s_mov_b64 exec, -1")
    A.lock -= 1
    return r
def flag_store(soff, w0=False):
    A("v_mov_b32 v11, 0")
    if w0: A(f"s_cmp_lg_u32 {sW}, 0\ns_cselect_b32 {soff}, {WS_SIZE}, {soff}")
    return masked(1, 0, lambda: A.vmem(f"buffer_store_dwordx2 v[38:39], v11, {sWS}, {soff} offen sc1"))

def poll(loads, cmps, tok=None, skip7=False, sleep=None):
    l, d = A.lab("Lspin"), A.lab("Ldone")
    if tok is None:
        for t in loads: tok = A.vmem(t)
    A.lock += 1
    A.wait_vm(tok)
    if skip7: A.raw(f"s_cmp_eq_u32 {sCA}, 7\ns_cbranch_scc1 {d}")
    A.raw(cmps); A.raw(f"s_cbranch_vccz {d}\ns_mov_b32 {sSPIN}, 0x40000\n{l}:\ns_sleep {OPT['sleep'] if sleep is None else sleep}")
    for t in loads: A.raw(t)
    A.raw("s_waitcnt vmcnt(0)"); A.raw(cmps)
    A.raw(f"s_cbranch_vccz {d}\ns_sub_u32 {sSPIN}, {sSPIN}, 1\ns_cmp_lg_u32 {sSPIN}, 0\ns_cbranch_scc1 {l}\n{d}:")
    A.lock -= 1
def tagcmp(regs):
    cm = f"v_cmp_ne_u64 vcc, s[52:53], {vr(regs[0],2)}"
    for k in regs[1:]: cm += f"\nv_cmp_ne_u64 s[78:79], s[52:53], {vr(k,2)}\ns_or_b64 vcc, vcc, s[78:79]"
    return cm

def gelu(base, n, t):
    for p0 in range(0, n, 8):
        ps = (p0, p0 + 2, p0 + 4, p0 + 6)
        for k, p in enumerate(ps): A(f"v_pk_mul_f32 {vr(t+2*k,2)}, {vr(base+p,2)}, {vr(base+p,2)}")
        for k, p in enumerate(ps): A(f"v_pk_fma_f32 {vr(t+2*k,2)}, {vr(t+2*k,2)}, {sGC}, {sGC} op_sel:[0,0,1] op_sel_hi:[1,0,1]")
        for k, p in enumerate(ps): A(f"v_pk_mul_f32 {vr(t+2*k,2)}, {vr(t+2*k,2)}, {vr(base+p,2)}")
        for k in range(8): A(f"v_exp_f32 {vr(t+k)}, {vr(t+k)}")
        for k, p in enumerate(ps): A(f"v_pk_add_f32 {vr(t+2*k,2)}, {vr(t+2*k,2)}, 1.0 op_sel_hi:[1,0]")
        for k in range(8): A(f"v_rcp_f32 {vr(t+k)}, {vr(t+k)}")
        for k, p in enumerate(ps): A(f"v_pk_mul_f32 {vr(base+p,2)}, {vr(base+p,2)}, {vr(t+2*k,2)}")

def xreduce(ops, regs, tmps):
    for op in ops:
        for r, t in zip(regs, tmps): A(f"v_mov_b32 {vr(t)}, {vr(r)}")
        A("s_nop 1")
        for r, t in zip(regs, tmps): A(f"{op} {vr(t)}, {vr(r)}")
        A("s_nop 1")
        for r, t in zip(regs, tmps): A(f"v_add_f32 {vr(r)}, {vr(r)}, {vr(t)}")

def gen_cos(dst, nd, freq, base, kfun):
    for i in range(0, nd, 2):
        ks = [kfun(2 * i + z) for z in range(4)]
        for z in range(4): A(f"v_fmamk_f32 v{16+z}, {freq}, {fbits(float(ks[z]))}, {base}")
        if OPT["fract"]:
            for z in range(4): A(f"v_fract_f32 v{16+z}, v{16+z}")
        for z in range(4): A(f"v_cos_f32 v{16+z}, v{16+z}")
        A(f"v_cvt_pk_bf16_f32 {vr(dst(i))}, v16, v17\nv_cvt_pk_bf16_f32 {vr(dst(i+1))}, v18, v19")

def it_xa(G):
    return [(f"s_add_u32 m0, {sW2048}, {SL[6+G] + sub*8192 - 128*sub}\ns_nop 0" if h == 0 else "",
             f"buffer_load_dwordx4 {vr(vXA[h])}, {sX}, {sAX[G]} offen offset:{1024*h+128*sub} lds") for sub in (0, 1) for h in (0, 1)]
def it_xr(dst, G):
    return [(f"s_add_u32 m0, {sW2048}, {dst + sub*8192 - 128*(2*G+sub)}\ns_nop 0" if h == 0 else "",
             f"buffer_load_dwordx4 {vr(vXR[h])}, {sX}, 0 offen offset:{1024*h+128*(2*G+sub)} lds") for sub in (0, 1) for h in (0, 1)]
def it_w1(ks):
    return [(f"s_mov_b32 {sBG}, {ks*57344}", f"buffer_load_dwordx4 {ar(128+ks*8,4)}, {vr(vW1[0])}, {sWS}, {sBG} offen sc1"),
            (f"s_mul_i32 {sBG}, s94, {ks}", f"buffer_load_dwordx4 {ar(128+ks*8+4,4)}, {vr(vW1[1])}, {sGW}, {sBG} offen sc1")]
def it_w2(dst, G):
    return [(f"s_add_u32 m0, {sW8192}, {dst + (4096 if i else 0)}\ns_nop 0" if i in (0, 4) else "",
             f"buffer_load_dwordx4 {vr(vWA[i])}, {sWIN}, {sAW[G]} offen offset:{1024*(i&3)} lds") for i in range(8)]
def it_c(j, dst):
    it = []
    for u in range(4):
        for h in (0, 1):
            pre = ""
            if u == 0 and h == 0:
                pre = f"s_bfe_u32 {sBG2}, {sROT}, {(4<<16)|(4*j)}\ns_lshl_b32 {sBG2}, {sBG2}, 7\nv_or_b32 {vr(vCo[0])}, {sBG2}, {vr(vCb[0])}\nv_or_b32 {vr(vCo[1])}, {sBG2}, {vr(vCb[1])}\n"
            if h == 0: pre += f"s_add_u32 m0, {sW8192}, {dst + u*2048}\ns_nop 0"
            it.append((pre, f"buffer_load_dwordx4 {vr(vCo[h])}, {sWSP}, {sCU[u]} offen offset:{1024*h}{' nt' if j < OPT['ntc'] else ''} lds"))
    return it
IT_GATE = [("", f"buffer_load_ushort {vB}, v246, {sBSP}, 0 offen")]

class Pipe:
    def __init__(s): s.mf = []; s.rd = []; s.hooks = {}; s.pres = {}
    def pre(s, fn): s.pres[len(s.mf)] = fn
    def read(s, quad, text): s.rd.append([quad, text, len(s.mf)])
    def hook(s, fn): s.hooks[len(s.rd)] = fn
    def mfma(s, d, a, b, c, uses): s.mf.append((d, a, b, c, uses))
    def run(s, D):
        free = []
        for quad, text, need in s.rd:
            free.append(max([j for j in range(need) if quad in s.mf[j][4]], default=-1))
        toks = []
        def emit():
            k = len(toks)
            if k in s.hooks: s.hooks[k]()
            toks.append(A.ds(s.rd[k][1]))
        def ready(i, d):
            k = len(toks)
            return k < len(s.rd) and s.rd[k][2] <= i + d and free[k] <= i
        while ready(-1, D): emit()
        for i, (d, a, b, c, uses) in enumerate(s.mf):
            while len(toks) < len(s.rd) and s.rd[len(toks)][2] <= i: emit()
            need = [k for k in range(len(toks)) if s.rd[k][2] <= i]
            if need: A.wait_lg(toks[need[-1]])
            if i in s.pres: s.pres[i]()
            mfma(d, a, b, c)
            if ready(i, D): emit()
            if ready(i, D - 3): emit()

def gbar(name, flush=True):
    A.wait_all_lg()
    if flush: A.flush()
    if name: A.wait_named(name)
    A("s_barrier")
    if name: A.st("bar_" + name, 2)

NF = 8
cnt = [0]
WA = [PR[0], PR[1], PR[2], PR[0]]
CS = [PR[1], PR[2], PR[0], PR[1], PR[2], PR[0], PR[1], PR[2]]
CK = [int(x) for x in str(OPT['ck']).replace('0', ' ').split()] if False else [[7, 10, 13], [6, 9, 12, 15], [5, 7, 9, 12, 14]][OPT['ck']]
ZH = 220
def stageB(P, G, hk):
    for kk in range(4):
        if 4 * G + kk in hk: P.hook(hk[4 * G + kk])
        par = kk & 1; ks = 4 * G + kk
        fb = vFR + 20 * par
        so = G * 16384 + (kk >> 1) * 8192
        z0 = "0" if ks == 0 else None
        a0 = "0" if kk == 0 else None
        for x in range(4):
            P.read(fb + 4 * x, f"ds_read_b128 {vr(fb+4*x,4)}, v{12+2*x+par} offset:{so}")
            P.mfma(vr(vAB + 16 * G + 4 * x, 4), vr(fb + 4 * x, 4), vr(vWD + 4 * kk, 4), a0, (fb + 4 * x,))
            if x == 0: P.pre(lambda ks=ks: A.wait_named("W%d" % ks))
            for i in (0, 1): P.mfma(vr(vZ + 8 * x + 4 * i, 4), ar(128 + (ks * 2 + i) * 4, 4), vr(fb + 4 * x, 4), z0, (fb + 4 * x,))

def pushc(j): A.push(it_c(j, CS[j]), "C%d" % j)
def c_read(j):
    dst = CS[j]
    A.wait_named("C%d" % j)
    for par in (0, 1):
        for u in range(4):
            A.ds(f"ds_read_b128 {ar(((2*j+par)*4+u)*4,4)}, v{240+2*(dst>>16)+par} offset:{(dst&0xffff)+u*2048}")
def cnext(j):
    c_read(j); A.wait_all_lg()
    if j + 3 < 8: pushc(j + 3)

Z1P = 100
POIS = [('', f'buffer_store_dwordx4 v[236:239], {vL16}, {sWS}, s80 offen offset:{1024*k} sc1') for k in range(3)] + [('', f'buffer_store_dwordx4 v[236:239], v24, {sWS}, s81 offen offset:3072 sc1')]
def poison(issue=True):
    t = 220
    A(f"s_lshl_b32 {sT0}, {sR}, 2\ns_add_u32 {sT0}, {sT0}, {sW}\ns_mul_i32 {sT0}, {sT0}, 28672\ns_lshr_b32 {sT1}, {sC}, 1\ns_mul_i32 {sT1}, {sT1}, 7168\ns_add_u32 {sT1}, {sT1}, {sT0}\ns_add_u32 {sT1}, {sT1}, {HB}")
    A(f"s_and_b32 {sT0}, {sC}, 1\ns_lshl_b32 s80, {sT0}, 12\ns_add_u32 s80, s80, {sT1}\ns_lshl_b32 s81, {sT0}, 9\ns_add_u32 s81, s81, {sT1}")
    A(f"v_mov_b32 {vr(t+16)}, -1\nv_mov_b32 {vr(t+17)}, -1\nv_mov_b32 {vr(t+18)}, -1\nv_mov_b32 {vr(t+19)}, -1")
    A(f"v_lshrrev_b32 v24, 5, v1\nv_lshl_add_u32 v24, v24, 24, {vL16}")
    if not issue: return
    for k in range(3): A.vmem(f"buffer_store_dwordx4 {vr(t+16,4)}, {vL16}, {sWS}, s80 offen offset:{1024*k} sc1")
    masked(-1, 0, lambda: A.vmem(f"buffer_store_dwordx4 {vr(t+16,4)}, {vL16}, {sWS}, s81 offen offset:3072 sc1"))
def b_epilogue(fz):
    t = vFR
    A(f"v_and_b32 v15, 1, v1\nv_and_b32 v16, 2, v1\nv_sub_u32 v17, 1, v16\nv_sub_u32 v18, 1, v15\nv_mul_i32_i24 v12, v17, v18\nv_mul_i32_i24 v13, v17, v15\nv_sub_u32 v14, v18, v15")
    A("v_bfe_u32 v16, v1, 3, 1\nv_lshlrev_b32 v16, 31, v16\nv_cvt_f32_i32 v12, v12\nv_cvt_f32_i32 v13, v13\nv_cvt_f32_i32 v14, v14\nv_xor_b32 v13, v16, v13")
    for p in range(0, 16, 2):
        o = [vr(vAB + 16 * m + p, 2) for m in range(4)]
        A(f"v_pk_fma_f32 {o[0]}, {o[2]}, v[14:15], {o[0]} op_sel_hi:[1,0,1]\nv_pk_add_f32 {o[2]}, {o[1]}, {o[3]}\nv_pk_add_f32 {o[1]}, {o[1]}, {o[3]} neg_lo:[0,1] neg_hi:[0,1]")
        A(f"v_pk_fma_f32 {o[0]}, {o[2]}, v[12:13], {o[0]} op_sel_hi:[1,0,1]")
    for v in range(16): A(f"v_fmac_f32_dpp {vr(vAB+v)}, {vr(vAB+16+v)}, v13 row_ror:8 row_mask:0xf bank_mask:0xf")
    for k in range(8): A(f"v_cvt_pk_bf16_f32 {vr(t+k)}, {vr(vAB+2*k)}, {vr(vAB+2*k+1)}")
    A("s_nop 1")
    D = vAB + 32
    for lg in (0, 1):
        for J in (0, 1): mfma(vr(D + 8 * lg + 4 * J, 4), vr(vR32 + 4 * J, 4), vr(t + 4 * lg, 4), "0")
    A(f"s_cmp_eq_u32 {sW}, 3\ns_cselect_b32 {sT0}, 0, 1024\ns_add_u32 {sT0}, {sT0}, {GX}\nv_lshlrev_b32 v16, 2, {vI16}\nv_add_u32 v11, {sT0}, v16")
    for x in range(4): A.ds(f"ds_write2_b32 v11, {vr(vZ+8*x+4)}, {vr(vZ+8*x+4)} offset0:{(3^x)*16} offset1:{(3^x)*16+64}")
    A(f"s_mul_i32 {sT0}, {sR}, 4352\ns_lshl_b32 {sT1}, {sC}, 9\ns_add_u32 {sT0}, {sT0}, {sT1}\ns_lshl_b32 {sT2}, {sW}, 7\ns_add_u32 {sT0}, {sT0}, {sT2}\ns_add_u32 {sT0}, {sT0}, {F2}\ns_mov_b32 {sT3}, 139264")
    A(f"v_and_b32 v14, 7, v1\nv_lshlrev_b32 v14, 4, v14\nv_lshrrev_b32 v15, 3, v1\nv_mad_u32_u24 v14, v15, {sT3}, v14\nv_add_u32 v14, {sT0}, v14")
    A(f"s_lshl_b32 {sT0}, {sW}, 6\ns_add_u32 {sT0}, {sT0}, {GX}\nv_add_u32 v16, {sT0}, v16")
    U = t + 8
    for J in (0, 1):
        for lg in (0, 1):
            for z in (0, 1): A(f"v_cvt_pk_bf16_f32 {vr(U+4*J+2*lg+z)}, {vr(D+8*lg+4*J+2*z)}, {vr(D+8*lg+4*J+2*z+1)}")
    for k in range(4): A(f"v_mov_b32 {vr(t+k)}, {vr(U+2*k)}")
    for k in range(4): A(f"v_mov_b32_dpp {vr(U+2*k)}, {vr(U+2*k+1)} row_ror:8 row_mask:0xf bank_mask:0xc")
    for k in range(4): A(f"v_mov_b32_dpp {vr(U+2*k+1)}, {vr(t+k)} row_ror:8 row_mask:0xf bank_mask:0x3")
    l1, lsk = A.lab("Lnosw"), A.lab("Lnosp")
    A.lock += 1
    A(f"s_cmp_eq_u32 {sSH}, 0\ns_cbranch_scc1 {l1}")
    for J in (0, 1): A(f"v_swap_b32 {vr(U+4*J)}, {vr(U+4*J+2)}\nv_swap_b32 {vr(U+4*J+1)}, {vr(U+4*J+3)}")
    A(f"{l1}:\ns_mov_b32 {sT2}, {8*139264}\ns_add_u32 {sT1}, {sW}, {sC}\ns_cmp_lg_u32 {sT1}, 0\ns_cbranch_scc1 {lsk}")
    A(f"s_mov_b32 exec_lo, 0x01010101\ns_mov_b32 exec_hi, 0x01010101\nv_add_u32 v15, 4096, v14")
    for J in (0, 1):
        q_ = t + 4 * J
        A(f"v_mov_b32 {vr(q_)}, {vr(U+4*J+1)}\nv_mov_b32 {vr(q_+1)}, 0\nv_mov_b32 {vr(q_+2)}, {vr(U+4*J+3)}\nv_mov_b32 {vr(q_+3)}, 0\nv_mov_b32 {vr(U+4*J+1)}, 0\nv_mov_b32 {vr(U+4*J+3)}, 0")
        A(f"buffer_store_dwordx4 {vr(q_,4)}, v15, {sWS}, {sT2 if J else 0} offen sc1")
    A(f"s_mov_b64 exec, -1\n{lsk}:")
    A.lock -= 1
    if OPT["pois"] == 2: poison()
    for J in (0, 1): tokF = A.vmem(f"buffer_store_dwordx4 {vr(U+4*J,4)}, v14, {sWS}, {sT2 if J else 0} offen sc1")
    fz()
    gelu(vZ, 32, vFR + 20)
    A(f"s_lshl_b32 {sT0}, {sW}, 12\ns_add_u32 {sT0}, {sT0}, {Z1B}\nv_lshlrev_b32 v12, 3, {vLane}\nv_add_u32 v17, {sT0}, v12\ns_lshl_b32 {sT0}, {sW}, 10\nv_add_u32 v12, {sT0}, v17")
    for x in range(4):
        if x: A(f"v_xor_b32 v13, {4096*x}, v12")
        for i in (0, 1):
            b = vZ + 8 * x + 4 * i
            A(f"v_cvt_pk_bf16_f32 {vr(b)}, {vr(b)}, {vr(b+1)}\nv_cvt_pk_bf16_f32 {vr(b+1)}, {vr(b+2)}, {vr(b+3)}")
            A.ds(f"ds_write_b64 v{13 if x else 12}, {vr(b,2)} offset:{i*512}")
    A(f"v_lshlrev_b32 {vB}, 16, {vB}")
    A.st("epi_end", 2); A.wait_all_lg(); A.flush(); A.st("epi_fl", 2); A.wait_vm(tokF); A.st("epi_F", 2); A("s_barrier")
    A(f"s_lshl_b32 {sT0}, {sC}, 12\ns_lshl_b32 {sT1}, {sR}, 7\ns_add_u32 {sT0}, {sT0}, {sT1}\ns_add_u32 {sT0}, {sT0}, {FLAGF}")
    flag_store(sT0, True)
    for ft in range(7): A.ds(f"ds_read_b64 {vr(Z1P+2*ft,2)}, v17 offset:{ft*512}")
    A.ds("ds_read2_b32 v[14:15], v16 offset0:16 offset1:32"); A.ds("ds_read_b32 v6, v16 offset:192"); A.ds(f"ds_read_b32 {vG}, v16")
LDZ = [f"buffer_load_dwordx2 v[246:247], v19, {sWS}, s46 offen sc1"]
def flagZ_issue():
    A(f"s_mul_i32 {sT0}, {sC}, 7\ns_add_u32 {sT1}, {sT0}, 6\ns_lshr_b32 {sT0}, {sT0}, 3\ns_lshr_b32 {sT1}, {sT1}, 3\ns_sub_u32 {sT1}, {sT1}, {sT0}\ns_lshl_b32 {sT1}, {sT1}, 12")
    A(f"s_lshl_b32 {sT0}, {sT0}, 12\ns_lshl_b32 {sT2}, {sW}, 10\ns_add_u32 {sT0}, {sT0}, {sT2}\ns_add_u32 s46, {sT0}, {FLAGZ}")
    A(f"v_and_b32 v19, 7, v1\nv_lshlrev_b32 v19, 7, v19\nv_lshrrev_b32 v11, 5, {vLane}\nv_mad_u32_u24 v19, v11, {sT1}, v19")
    return A.vmem(LDZ[0])

def srd(b, src, size): A(f"s_mov_b32 s{b}, s{src}\ns_mov_b32 s{b+1}, s{src+1}\ns_mov_b32 s{b+2}, {size}\ns_mov_b32 s{b+3}, 0x20000")

def prologue():
    A("s_cmp_ge_u32 s2, 256\ns_cbranch_scc1 Lend")
    A("s_load_dwordx16 s[60:75], s[0:1], 0\ns_load_dwordx8 s[80:87], s[0:1], 64\ns_load_dwordx4 s[88:91], s[0:1], 96")
    if OPT["prof"]: A("s_memrealtime s[98:99]\ns_memtime s[96:97]")
    if OPT["diag"] >= 0: A("s_memrealtime s[98:99]\ns_memrealtime s[96:97]")
    A(f"s_getpc_b64 s[44:45]\ns_mov_b32 s46, Lend-{NAME}_kernel\ns_mov_b32 s47, 0x20000")
    A("s_lshr_b32 s3, s2, 3\ns_lshl_b32 s76, s3, 10\nv_and_b32 v11, 7, v0\nv_lshlrev_b32 v11, 7, v11\nv_add_u32 v11, s76, v11")
    A.vmem(f"buffer_load_dword v12, v11, {sTMP}, 0 offen")
    A("s_and_b32 s76, s2, 7")
    if OPT["xmap"] == 1:
        A(f"s_lshr_b32 {sR}, s3, 3\ns_lshl_b32 s77, s76, 2\ns_add_u32 {sR}, {sR}, s77\ns_and_b32 {sC}, s3, 7")
        A(f"s_mov_b32 s78, 0x76543210\ns_mov_b32 s79, s78\ns_mul_i32 s77, s76, {OPT['xrot']}\ns_add_u32 s77, s77, {sC}\ns_and_b32 s77, s77, 7\ns_lshl_b32 s77, s77, 2\ns_lshr_b64 s[78:79], s[78:79], s77\ns_mov_b32 {sROT}, s78")
    else:
        A(f"s_lshr_b32 {sR}, s76, 1\ns_lshl_b32 {sR}, {sR}, 3\ns_lshr_b32 s77, s3, 2\ns_add_u32 {sR}, {sR}, s77")
        A(f"s_and_b32 {sC}, s76, 1\ns_lshl_b32 {sC}, {sC}, 2\ns_and_b32 s77, s3, 3\ns_add_u32 {sC}, {sC}, s77")
        A(f"s_lshl_b32 s77, s77, 2\ns_lshr_b32 {sROT}, 0x64206420, s77\ns_and_b32 {sROT}, {sROT}, 0xffff\ns_or_b32 {sROT}, {sROT}, 0x64200000\ns_bitcmp1_b32 s76, 0\ns_cselect_b32 s77, 0, 16\ns_lshl_b32 s77, 0x1111, s77\ns_or_b32 {sROT}, {sROT}, s77")
    A(f"s_mov_b32 {sCA}, {sC}")
    if not OPT["rotc"]: A(f"s_mov_b32 {sROT}, 0x76543210")
    A(f"v_lshrrev_b32 v11, 6, v0\nv_and_b32 {vLane}, 63, v0\nv_readfirstlane_b32 {sW}, v11")
    A(f"v_and_b32 {vI16}, 15, v0\nv_lshrrev_b32 {vQ}, 4, {vLane}\nv_lshlrev_b32 {vL16}, 4, {vLane}")
    A(f"s_lshl_b32 {sW2048}, {sW}, 11\ns_lshl_b32 {sW8192}, {sW}, 13\ns_and_b32 {sET}, {sW}, 1\ns_lshr_b32 {sSH}, {sW}, 1\ns_add_u32 s76, {sR}, {sC}")
    if not OPT["rota"]: A("s_mov_b32 s76, 0")
    for G in range(4):
        A(f"s_add_u32 s77, s76, {G}\ns_and_b32 s77, s77, 3\ns_lshl_b32 {sAX[G]}, s77, 8\ns_mul_i32 {sAW[G]}, s77, 458752")
    A(f"v_lshrrev_b32 v11, 3, {vLane}\nv_and_b32 v15, 7, v0\nv_lshrrev_b32 v16, 1, v11")
    A("v_xor_b32 v13, v15, v16\nv_lshlrev_b32 v13, 4, v13\nv_xor_b32 v14, 64, v13")
    A(f"s_lshl_b32 s76, {sR}, 16\ns_lshl_b32 s77, {sW}, 14\ns_add_u32 s76, s76, s77\nv_lshl_add_u32 v15, v11, 10, s76")
    A(f"v_add_u32 {vr(vXA[0])}, v15, v13\nv_add_u32 {vr(vXA[1])}, v15, v14\nv_add_u32 {vr(vXA[1])}, 7168, {vr(vXA[1])}")
    A(f"s_lshl_b32 s76, {sCA}, 8\ns_mul_i32 s77, {sW}, 114688\ns_add_u32 s76, s76, s77\ns_add_u32 s76, s76, 1792\ns_movk_i32 s77, 3584")
    A(f"v_lshlrev_b32 v15, 1, {vQ}\nv_xor_b32 v15, v15, {vI16}\nv_lshlrev_b32 v15, 4, v15\nv_mad_u32_u24 v16, {vQ}, s77, v15\nv_add_u32 v16, s76, v16\nv_xor_b32 v17, 128, v16")
    for i in range(8):
        A(f"v_add_u32 {vr(vWA[i])}, {(8*(i&3)+4*(i>>2))*3584 - 1024*(i&3)}, v{16+(i&1)}")
    A("s_waitcnt lgkmcnt(0)")
    srd(4, 60, 2097152); srd(8, 72, 1835008); srd(16, 82, 917504)
    A(f"s_load_dwordx2 s[92:93], s[90:91], {EPOCH}")

def setup2():
    srd(12, 74, 8388608)
    srd(28, 90, WS_SIZE); srd(32, 86, 2097152); srd(36, 80, 4096)
    A(f"s_cmp_eq_u32 {sW}, 3\ns_cselect_b32 s40, s84, s90\ns_cselect_b32 s41, s85, s91\ns_movk_i32 s42, 1024\ns_cselect_b32 s42, s42, s30\ns_mov_b32 s43, 0x20000\ns_cselect_b32 s94, 64, 57344")
    A(f"s_mul_i32 {sW7168}, {sW}, 7168\ns_mul_i32 s77, {sC}, 7168\ns_add_u32 s76, {sW2048}, s77\ns_add_u32 s76, s76, {W1P}\nv_add_u32 {vr(vW1[0])}, s76, {vL16}\nv_add_u32 {vr(vW1[1])}, 1024, {vr(vW1[0])}\nv_lshlrev_b32 v15, 4, {vQ}\ns_cmp_eq_u32 {sW}, 3\ns_cselect_b64 vcc, -1, 0\nv_cndmask_b32 {vr(vW1[1])}, {vr(vW1[1])}, v15, vcc")
    A("v_and_b32 v17, 4, v11\nv_lshlrev_b32 v17, 1, v17\nv_and_or_b32 v17, v11, 3, v17")
    A(f"s_lshl_b32 s76, {sET}, 8\ns_lshl_b32 s77, {sSH}, 5\ns_add_u32 s76, s76, s77\ns_add_u32 s76, s76, {sR}")
    A("s_lshl_b32 s77, s76, 10\nv_lshl_add_u32 v15, v17, 16, s77")
    A(f"v_add_u32 {vr(vXR[0])}, v15, v13\nv_add_u32 {vr(vXR[1])}, v15, v14\nv_add_u32 {vr(vXR[1])}, {1024*1024-1024}, {vr(vXR[1])}")
    A(f"v_and_b32 v15, 12, {vI16}\nv_lshlrev_b32 v15, 1, v15\nv_and_or_b32 v15, {vI16}, 3, v15\nv_lshl_add_u32 {vTrow}, v15, 6, s76")
    A(f"s_lshl_b32 s77, {sR}, 12\ns_lshl_b32 s78, {sW}, 10\ns_add_u32 s77, s77, s78\nv_lshl_add_u32 v15, v17, 18, s77")
    A(f"v_add_u32 {vr(vCb[0])}, v15, v13\nv_add_u32 {vr(vCb[1])}, v15, v14\nv_add_u32 {vr(vCb[1])}, {1024*4096-1024}, {vr(vCb[1])}")
    for u in range(4):
        A(f"s_add_u32 s77, {sW}, {u}\ns_and_b32 s78, s77, 1\ns_lshl_b32 s78, s78, 20\ns_and_b32 s77, s77, 2\ns_lshl_b32 s77, s77, 16\ns_add_u32 {sCU[u]}, s77, s78")
    A(f"v_lshlrev_b32 v246, 1, {vTrow}")
    A(f"v_lshrrev_b32 v15, 1, {vI16}\nv_xor_b32 v15, v15, {vQ}\nv_lshlrev_b32 v15, 4, v15\nv_lshl_add_u32 {vXrd0}, {vI16}, 7, v15\nv_xor_b32 {vXrd1}, 64, {vXrd0}")
    A(f"v_add_u32 v240, {sW8192}, {vXrd0}\nv_add_u32 v241, {sW8192}, {vXrd1}\nv_add_u32 v242, 0x10000, v240\nv_add_u32 v243, 0x10000, v241\nv_add_u32 v244, 0x20000, v240\nv_add_u32 v245, 0x20000, v241")
def tlb_touch():
    if not OPT["tlb"]: return
    A(f"v_and_b32 v15, 7, v1\nv_lshlrev_b32 v16, 21, v15\nv_add_u32 v16, 0x800, v16\nv_lshlrev_b32 v15, 7, v15")
    A.vmem(f"buffer_load_dword v255, v16, {sWS}, 0 offen sc1")
    A.vmem(f"buffer_load_dword v255, v16, {sWSP}, 0 offen")
    A.vmem(f"buffer_load_dword v255, v16, {sOUT}, 0 offen sc1")
    A.vmem(f"buffer_load_dword v255, v15, {sGW}, 0 offen sc1")
    A.vmem(IT_GATE[0][1])
def twiddles():
    A(f"s_lshl_b32 s70, {sC}, 5\ns_lshl_b32 s71, {sW}, 3\ns_add_u32 s70, s70, s71\nv_and_b32 v11, 7, v1\nv_add_u32 v11, s70, v11\nv_bfe_u32 v14, v1, 3, 1\nv_lshlrev_b32 v15, 3, {vQ}\nv_cmp_gt_u32 vcc, v14, v11\nv_cvt_f32_u32 v11, v11\nv_cvt_f32_u32 v15, v15\nv_cvt_f32_u32 v14, v14")
    A(f"v_mul_f32 v11, {fbits(1/512)}, v11\nv_mul_f32 v14, {fbits(0.25)}, v14\nv_fma_f32 v13, v11, v15, v14\nv_cndmask_b32 v11, v11, 0.5, vcc\nv_cndmask_b32 v13, v13, 0, vcc")
    gen_cos(lambda i: vWD + i, 16, "v11", "v13", lambda n: 32 * (n >> 3) + (n & 7))
    A(f"v_lshrrev_b32 v11, 1, {vI16}\nv_cvt_f32_u32 v11, v11\nv_mul_f32 v11, {fbits(1/32)}, v11\nv_add_f32 v247, {fbits(0.25)}, v11")
    A(f"v_and_b32 v13, 1, v1\nv_cvt_f32_u32 v13, v13\nv_mul_f32 v13, {fbits(0.25)}, v13\nv_cmp_eq_u32 vcc, 1, {vI16}\nv_mov_b32 v14, v13\ns_nop 0\nv_cndmask_b32 v11, v11, 0.5, vcc\nv_cndmask_b32 v13, v13, 0, vcc")
    A(f"s_lshl_b32 s70, {sET}, 2\nv_cvt_f32_u32 v248, s70\nv_sub_f32 v252, v15, v248\nv_add_f32 v248, v15, v248")
    for J, (fr, ph) in enumerate((("v11", "v13"), ("v247", "v14"))):
        A(f"v_fma_f32 v253, {fr}, v248, {ph}\nv_fma_f32 v254, {fr}, v252, {ph}")
        gen_cos(lambda i: vR32 + 4 * J + i, 2, fr, "v253", lambda n: n)
        gen_cos(lambda i: vR32 + 4 * J + 2 + i, 2, fr, "v254", lambda n: 4 + n)
def consts():
    if OPT["pois"] == 0: poison()
    if OPT["pois"] == 3: poison(False)
    A("s_waitcnt lgkmcnt(0)")
    A("s_mul_i32 s52, s92, 0x9E3779B1\ns_add_u32 s52, s52, 0x7F4A7C15\ns_mul_i32 s53, s93, 0x85EBCA6B\ns_add_u32 s53, s53, 0xC2B2AE35")
    c0 = -2 * 0.7978845608028654 * 1.4426950408889634
    A(f"s_mov_b32 s76, {fbits(c0*0.044715)}\ns_mov_b32 s77, {fbits(c0)}\nv_mov_b32 v38, s52\nv_mov_b32 v39, s53\nv_and_b32 v251, 31, v1\nv_lshlrev_b32 v251, 7, v251\nv_add_u32 v251, {FLAGP}, v251")
    if OPT["prof"]: A("v_writelane_b32 v0, s96, 0\nv_writelane_b32 v0, s98, 62")
LDP = [f"buffer_load_dwordx2 v[20:21], v251, {sWS}, 0 offen sc1"]

def front_main():
    A.push(it_xa(0) + it_w2(WA[0], 0), "A0"); A.push(it_xa(1) + it_w2(WA[1], 1), "A1")
    A.flush("A0")
    A.lock += 1
    setup2(); tlb_touch(); twiddles(); consts()
    A(f"v_lshrrev_b32 v15, 2, {vLane}\nv_lshlrev_b32 v16, 8, v15\nv_and_b32 v15, 7, v15\nv_lshl_add_u32 v16, v15, 5, v16\nv_and_b32 v15, 3, v1\nv_lshl_add_u32 v16, v15, 3, v16\ns_lshl_b32 {sT0}, {sET}, 7\nv_xor_b32 v16, {sT0}, v16")
    for i in range(4): A(f"v_xor_b32 {vr(vTA[i])}, {32*i}, v16\nv_add_u32 {vr(vTA[4+i])}, 0x10000, {vr(vTA[i])}")
    A(f"s_lshl_b32 {sT0}, {sSH}, 12\ns_add_u32 {sT0}, {sT0}, {SL[6]}\nv_add_u32 v13, {sT0}, {vXrd0}\nv_add_u32 v14, {sT0}, {vXrd1}")
    A.lock -= 1
    if OPT["fa1"]: A.flush("A1")
    A.push(it_xa(2) + it_w2(WA[2], 2), "A2"); A.push(it_xa(3))
    A.stamp(1)
    A.per = OPT["pera"]
    P = Pipe()
    for G in range(4):
        def h(G=G):
            gbar("A%d" % G, False)
            if G == 1: A.push(it_w2(WA[3], 3), "A3")
            if G == 1 and OPT["pois"] == 3: A.push(POIS)
            if G == 1 and OPT["x0"]: A.push(it_xr(SL[6], 0))
            if G == 2: pushc(0)
        P.hook(h)
        for kk in range(4):
            xf = vFR + 32 + 8 * ((4 * G + kk) % 3)
            z0 = "0" if (G == 0 and kk == 0) else None
            for i in range(4):
                wf = vFR + 4 * (cnt[0] % NF); cnt[0] += 1
                if i == 0: P.read(xf, f"ds_read_b128 {vr(xf,4)}, v{13+(kk&1)} offset:{G*16384+(kk>>1)*8192}")
                for half in (0, 1):
                    P.read(wf, f"ds_read_b64_tr_b16 {vr(wf+2*half,2)}, {vr(vTA[i + (4 if WA[G] >= 65536 else 0)])} offset:{(WA[G]&0xffff) + kk*8192 + half*4096}")
                P.mfma(vr(vZ + 4 * i, 4), vr(wf, 4), vr(xf, 4), z0, (wf, xf))
                if i == 0: P.read(xf + 4, f"ds_read_b128 {vr(xf+4,4)}, v{13+(kk&1)} offset:{G*16384+(kk>>1)*8192+2048}")
                P.mfma(vr(vZ + 16 + 4 * i, 4), vr(wf, 4), vr(xf + 4, 4), z0, (wf, xf + 4))
    P.run(OPT["look"])
    A.flush()
    A.per = OPT["per"]
    A("s_barrier")
    A.stamp(2)
    A("s_nop 7")
    gelu(vZ, 32, vFR)
    t = vFR
    for xt in (0, 1):
        z = vZ + 16 * xt
        A(f"v_pk_add_f32 {vr(t,2)}, {vr(z,2)}, {vr(z+2,2)}\nv_pk_mul_f32 {vr(t+2,2)}, {vr(z,2)}, {vr(z,2)}")
        for p in range(2, 16, 2):
            if p > 2: A(f"v_pk_add_f32 {vr(t,2)}, {vr(t,2)}, {vr(z+p,2)}")
            A(f"v_pk_fma_f32 {vr(t+2,2)}, {vr(z+p,2)}, {vr(z+p,2)}, {vr(t+2,2)}")
        A(f"v_add_f32 {vr(t+4+2*xt)}, {vr(t)}, {vr(t+1)}\nv_add_f32 {vr(t+5+2*xt)}, {vr(t+2)}, {vr(t+3)}")
    xreduce((P16, P32), [t + 4, t + 5, t + 6, t + 7], [t, t + 1, t + 2, t + 3])
    A(f"v_cmp_eq_u32 vcc, 1, {vQ}\ns_lshl_b32 {sT0}, {sR}, 1\ns_add_u32 {sT0}, {sT0}, {sSH}\nv_cndmask_b32 {vr(t+4)}, {vr(t+4)}, {vr(t+6)}, vcc\nv_cndmask_b32 {vr(t+5)}, {vr(t+5)}, {vr(t+7)}, vcc")
    A(f"v_mov_b32 {vr(t+6)}, s52\nv_mov_b32 {vr(t+7)}, s53\ns_lshl_b32 {sT0}, {sT0}, 13\ns_add_u32 {sT0}, {sT0}, {STAT}\nv_add_u32 v249, {sT0}, {vL16}")
    A(f"s_lshl_b32 {sT1}, {sCA}, 10\ns_lshl_b32 {sT2}, {sET}, 9\ns_add_u32 {sT1}, {sT1}, {sT2}\nv_add_u32 v250, 4096, v249")
    masked(-1, 0, lambda: A.vmem(f"buffer_store_dwordx4 {vr(t+4,4)}, v249, {sWS}, {sT1} offen sc1"))

def front_lead():
    PIT = 1056; L1, L2 = PR[2], PR[2] + 36864
    A(f"s_lshr_b32 s76, {sR}, 1\ns_lshl_b32 s76, s76, 5\ns_lshl_b32 s77, {sET}, 4\ns_add_u32 s76, s76, s77\ns_lshl_b32 s77, {sSH}, 2\ns_add_u32 s76, s76, s77\ns_mul_i32 s76, s76, 3584")
    A(f"s_and_b32 s77, {sR}, 1\ns_mul_i32 s77, s77, 896\ns_add_u32 s76, s76, s77\ns_mul_i32 s78, {sW}, {8*PIT}")
    for i in range(8):
        A(f"s_add_u32 m0, s78, {L1 + i*PIT}\ns_add_u32 s77, s76, {(8*(i>>2)+(i&3))*3584}")
        tok1 = A.vmem(f"buffer_load_dwordx4 {vL16}, {sWIN}, s77 offen lds")
    A(f"s_mul_i32 s76, {sR}, 37\ns_lshr_b32 s76, s76, 8\ns_mul_i32 s77, s76, 7\ns_sub_u32 s77, {sR}, s77\ns_mul_i32 s76, s76, 224")
    A(f"s_lshl_b32 s79, s77, 5\ns_cmp_ge_u32 s77, 4\ns_cselect_b32 s44, 16, 0\ns_sub_u32 s79, s79, s44\ns_cmp_eq_u32 s77, 3\ns_cselect_b32 s44, 112, 16\ns_mul_i32 s44, s44, {sSH}\ns_add_u32 s79, s79, s44")
    A(f"s_add_u32 s76, s76, s79\ns_lshl_b32 s77, {sET}, 3\ns_add_u32 s76, s76, s77\ns_lshl_b32 s44, s76, 10\ns_mov_b32 s45, s78")
    st = {}
    def wout_loads():
        for i in range(8):
            A(f"s_add_u32 m0, s45, {L2 + i*PIT}\ns_add_u32 s46, s44, {i*1024}")
            st["w"] = A.vmem(f"buffer_load_dwordx4 {vL16}, {sWOUT}, s46 offen lds")
    setup2(); tlb_touch(); consts()
    A(f"v_lshrrev_b32 v15, 2, {vLane}\nv_mul_u32_u24 v15, {PIT}, v15\nv_and_b32 v16, 3, v1\nv_lshl_add_u32 v15, v16, 3, v15\ns_mul_i32 {sT0}, {sW}, 224\ns_add_u32 {sT0}, {sT0}, {L1}\nv_add_u32 v16, {sT0}, v15\ns_lshl_b32 {sT0}, {sW}, 8\ns_add_u32 {sT0}, {sT0}, {L2}\nv_add_u32 v17, {sT0}, v15")
    A(f"s_mul_i32 {sT0}, {sR}, 28672\ns_add_u32 {sT0}, {sT0}, {sW7168}\ns_add_u32 {sT0}, {sT0}, {W1P}\ns_add_u32 {sT1}, {sT0}, 4096")
    A(f"s_mul_i32 {sT2}, {sW}, {2*114688}\ns_lshl_b32 {sT3}, {sR}, 12\ns_add_u32 {sT2}, {sT2}, {sT3}\ns_add_u32 {sT2}, {sT2}, {WOP}\ns_cmp_ge_u32 {sR}, 28\ns_cselect_b32 {sT2}, {WS_SIZE}, {sT2}\ns_add_u32 {sT3}, {sT2}, 114688")
    def half(rng, tok, flag):
        A.wait_vm(tok); A("s_barrier")
        tk = {}
        for n in rng:
            base, i = ("v16", n) if n < 7 else ("v17", n - 7)
            A.ds(f"ds_read_b64_tr_b16 {vr(112+4*n,2)}, {base} offset:{i*32}")
            tk[n] = A.ds(f"ds_read_b64_tr_b16 {vr(112+4*n+2,2)}, {base} offset:{i*32+16*PIT}")
        for n in rng:
            i = n if n < 7 else n - 7
            so = (sT0, sT1, sT2, sT3)[(0 if n < 7 else 2) + (i >> 2)]
            A.wait_lg(tk[n])
            t = A.vmem(f"buffer_store_dwordx4 {vr(112+4*n,4)}, {vL16}, {sWS}, {so} offen offset:{(i&3)*1024} sc1")
        return t
    t1 = half(range(7), tok1, FLAGP)
    wout_loads()
    A.wait_vm(t1); A("s_barrier")
    A(f"s_lshl_b32 {sT0}, {sR}, 7\ns_add_u32 s46, {sT0}, {FLAGP}\ns_add_u32 s47, {sT0}, {FLAGQ}")
    flag_store("s46", True)
    A.st("flagP")
    t2 = half(range(7, 15), st["w"], FLAGQ)
    pushc(0); A.flush()
    A.stamp(1)
    twiddles()
    A.wait_vm(t2); A("s_barrier")
    flag_store("s47", True)
    for G in range(OPT["x0"]): A.push(it_xr(SL[6 + G], G))
    if OPT["pois"] == 3: A.push(POIS)
    A.flush()
    A(f"v_mov_b32 v249, {WS_SIZE}\nv_mov_b32 v250, {WS_SIZE}")

def front2():
    A.stamp(3)
    if OPT["pois"] == 1: poison()
    tokP = A.vmem(LDP[0])
    for G in range(OPT["x0"], 3): A.push(it_xr(SL[6 + G], G))
    A.push(IT_GATE + it_xr(SL[9], 3), "X3"); A.flush()
    poll(LDP, tagcmp([20]), tokP); A.st("got_P", 2)
    for ks in range(16): A.push(it_w1(ks), "W%d" % ks)
    pushc(1)
    A.flush("W%d" % OPT["gat"])
    g = 128
    ld = [f"buffer_load_dwordx4 {vr(g+4*k,4)}, v{249 + (k>>2)}, {sWS}, 0 offen offset:{1024*(k&3)} sc1" for k in range(7)]
    for l in ld: tokS = A.vmem(l)
    A(f"v_and_b32 v11, 3, {vI16}\nv_bfe_u32 v12, {vI16}, 3, 1\nv_lshl_add_u32 v11, v12, 2, v11\nv_bfe_u32 v15, v11, 1, 2\nv_bfe_u32 v12, {vI16}, 2, 1\nv_lshl_add_u32 v11, v12, 4, v11")
    A(f"s_lshl_b32 {sT0}, {sW}, 12\ns_add_u32 {sT0}, {sT0}, {SCR}\nv_lshlrev_b32 v11, 7, v11\nv_lshl_add_u32 v11, v15, 5, v11\nv_lshl_add_u32 v11, {vQ}, 3, v11\nv_add_u32 v11, {sT0}, v11")
    A(f"v_lshrrev_b32 v12, 2, {vLane}\nv_lshlrev_b32 v12, 7, v12\nv_bfe_u32 v15, {vLane}, 3, 2\nv_lshl_add_u32 v12, v15, 5, v12\nv_and_b32 v15, 3, v1\nv_lshl_add_u32 v12, v15, 3, v12\nv_add_u32 v12, {sT0}, v12")
    for i in range(4): A(f"v_xor_b32 v{160+i}, {32*i}, v11\nv_xor_b32 v{164+i}, {32*i}, v12")
    A(f"s_lshl_b32 {sT1}, {sR}, 1\ns_add_u32 {sT1}, {sT1}, {sSH}\ns_mul_i32 {sT0}, {sT1}, 57344\ns_lshl_b32 {sT1}, {sCA}, 13\ns_add_u32 {sT0}, {sT0}, {sT1}")
    A(f"s_lshl_b32 {sT1}, {sET}, 12\ns_add_u32 {sT0}, {sT0}, {sT1}\ns_add_u32 {sKB}, {sT0}, {Z2N}\ns_cmp_eq_u32 {sCA}, 7\ns_cselect_b32 {sKB}, {WS_SIZE}, {sKB}")
    A.flush("W%d" % (OPT["gat"] + 5)); A.st("pre_stat", 2)
    poll(ld, tagcmp([g + 4 * k + 2 for k in range(7)]), tokS, True)
    A.stamp(4)
    for k in range(1, 7): A(f"v_pk_add_f32 {vr(g,2)}, {vr(g,2)}, {vr(g+4*k,2)}")
    xreduce((P32,), [g, g + 1], [g + 2, g + 3])
    A(f"v_mul_f32 {vr(g)}, {fbits(1/896)}, {vr(g)}\nv_mul_f32 {vr(g+1)}, {fbits(1/896)}, {vr(g+1)}")
    A(f"v_fma_f32 {vr(g+1)}, -{vr(g)}, {vr(g)}, {vr(g+1)}\nv_max_f32 {vr(g+1)}, 0, {vr(g+1)}\nv_add_f32 {vr(g+1)}, {fbits(1e-5)}, {vr(g+1)}\nv_rsq_f32 {vr(g+2)}, {vr(g+1)}\ns_nop 0")
    A(f"v_mul_f32_e64 {vr(g+3)}, -{vr(g)}, {vr(g+2)}\nv_mov_b32 {vr(g+4)}, {vr(g+2)}\nv_mov_b32 {vr(g+5)}, {vr(g+3)}\ns_nop 1\n{P16} {vr(g+2)}, {vr(g+4)}\n{P16} {vr(g+3)}, {vr(g+5)}\ns_nop 1")
    for xt in (0, 1):
        for i in range(4):
            b = vZ + 16 * xt + 4 * i; pp = vr(g + 2 + 2 * xt, 2)
            for p in (0, 2): A(f"v_pk_fma_f32 {vr(b+p,2)}, {vr(b+p,2)}, {pp}, {pp} op_sel:[0,0,1] op_sel_hi:[1,0,1]")
            A(f"v_cvt_pk_bf16_f32 {vr(b)}, {vr(b)}, {vr(b+1)}\nv_cvt_pk_bf16_f32 {vr(b+1)}, {vr(b+2)}, {vr(b+3)}")
            A.ds(f"ds_write_b64 v{160+i}, {vr(b,2)} offset:{xt*1024}")
    A.wait_all_lg()
    for i in range(4):
        A.ds(f"ds_read_b64_tr_b16 {vr(ZH+4*i,2)}, v{164+i}")
        A.ds(f"ds_read_b64_tr_b16 {vr(ZH+4*i+2,2)}, v{164+i} offset:2048")
    A.wait_all_lg()
    for i in range(4): A.tok["Z"] = A.vmem(f"buffer_store_dwordx4 {vr(ZH+4*i,4)}, {vL16}, {sWS}, {sKB} offen offset:{1024*i} sc1")
    A.stamp(5)

ring = [48, 52, 56, 60, 64, 20, 24, 28, 236, 248, 252, 228, 232] + [40, 44, 32, 240, 244]
NPRE = 13
tz = {}
def z_item(n):
    ks, ft = divmod(n, 7); pre = ""
    if ft == 0: pre = f"s_bfe_u32 {sZ}, {sROT}, {(4<<16)|(4*(ks>>1))}\ns_mul_i32 {sZ}, {sZ}, 114688" + (f"\ns_add_u32 {sZ}, {sZ}, 57344" if ks & 1 else "")
    if ft == 4: pre = f"s_add_u32 {sZ}, {sZ}, 4096"
    return (pre, f"buffer_load_dwordx4 {vr(ring[n%len(ring)],4)}, {vZA}, {sWS}, {sZ} offen offset:{(ft&3)*1024} sc1")
def mid_B():
    A(f"s_add_u32 {sT0}, {sW2048}, {SL[6]}\nv_add_u32 v12, {sT0}, {vXrd0}\nv_add_u32 v13, {sT0}, {vXrd1}")
    for x in (1, 2, 3): A(f"v_xor_b32 v{12+2*x}, {2048*x}, v12\nv_xor_b32 v{13+2*x}, {2048*x}, v13")
    P = Pipe()
    c_read(0)
    gbar("X3", False)
    pushc(2); pushc(3)
    def fz():
        A.wait_named("Z"); A("s_barrier")
        A(f"s_lshl_b32 {sT0}, {sCA}, 12\ns_lshl_b32 {sT1}, {sR}, 7\ns_add_u32 {sT0}, {sT0}, {sT1}\ns_add_u32 {sT0}, {sT0}, {FLAGZ}")
        flag_store(sT0, True); A.stamp(6)
    hk = {4: fz}
    for j, ks in enumerate(CK): hk[ks] = (lambda j=j: cnext(j + 1))
    for G in range(4): stageB(P, G, hk)
    P.run(OPT["look"])
    A.stamp(8)
    A("s_barrier")
    tk = flagZ_issue()
    for j in range(len(CK) + 1, 5): cnext(j)
    A(f"s_mul_i32 {sT0}, {sC}, 7168\ns_mul_i32 {sT1}, {sW}, {16*57344}\ns_add_u32 {sT0}, {sT0}, {sT1}\ns_add_u32 {sT0}, {sT0}, {Z2N}\nv_add_u32 {vZA}, {sT0}, {vL16}")
    def pz():
        poll(LDZ, tagcmp([246]), tk); A.stamp(9)
        for n in range(NPRE): A.push([z_item(n)], "z%d" % n)
    b_epilogue(pz)
    for n in range(NPRE): tz[n] = A.tok["z%d" % n]
    A.stamp(10)

FIX = []
def back():
    A.stamp(11)
    ACC = 116; CF = 68; R = len(ring)
    def zload(n):
        pre, ins = z_item(n)
        if pre: A.raw(pre)
        tz[n] = A.vmem(ins)
    F = []
    for u in (1, 2, 3):
        F += [f"s_add_u32 {sT0}, {sW}, {u}\ns_and_b32 {sT0}, {sT0}, 3", f"s_mul_i32 {sT0}, {sT0}, 21504\ns_add_u32 {sT0}, {sT0}, {(u-1)*7168}", f"v_add_u32 v{15+u}, {sT0}, {vL16}"]
    F += [f"s_mul_i32 {sT0}, {sW}, 21504\nv_add_u32 v19, {sT0}, {vL16}"]
    F += [f"s_sub_u32 {sT0}, 32, {sR}\ns_min_u32 {sT0}, {sT0}, {sR}", f"s_and_b32 {sT0}, {sT0}, 15\ns_mul_i32 {sT0}, {sT0}, 139264", f"s_add_u32 {sT0}, {sT0}, {F2}\ns_mul_i32 {sT1}, {sW}, 8704",
          f"s_add_u32 {sT0}, {sT0}, {sT1}\ns_lshl_b32 {sT1}, {sC}, 6", f"s_cmp_ge_u32 {sC}, 4\ns_cselect_b32 s21, 0x300, 0\ns_cselect_b32 {sT2}, 48, 0", f"s_add_u32 {sT2}, {sT2}, {sT1}\nv_add_u32 v12, {sT2}, {vI16}",
          "v_sub_u32 v13, 512, v12", "v_min_u32 v12, v12, v13", f"s_mov_b32 {sT2}, {8*4352}\nv_lshlrev_b32 v12, 4, v12", f"v_mad_u32_u24 v12, {vQ}, {sT2}, v12", f"v_add_u32 v12, {sT0}, v12"]
    F += [f"v_lshrrev_b32 v13, 3, {vLane}", "v_mul_u32_u24 v13, 9, v13", f"v_add_u32 v13, {sT1}, v13", "v_sub_u32 v114, 512, v13", "v_min_u32 v13, v13, v114",
          "v_bfe_u32 v13, v13, 5, 3", "v_and_b32 v114, 6, v1", "v_lshlrev_b32 v114, 2, v114", "v_and_or_b32 v114, v1, 1, v114", "v_lshl_add_u32 v13, v13, 5, v114", "v_lshlrev_b32 v13, 7, v13",
          f"s_lshl_b32 {sT0}, {sW}, 8\ns_add_u32 {sT0}, {sT0}, {FLAGF}", f"v_add_u32 v13, {sT0}, v13"]
    F += [f"s_mov_b32 {sSEL[0]}, 0x03020100\ns_mov_b32 {sSEL[1]}, 0x01000302", f"s_cmp_lt_u32 {sR}, 16\ns_cselect_b32 {sM0}, 0x80000000, 0", f"s_or_b32 {sM1}, {sM0}, 0x8000",
          f"s_cmp_eq_u32 {sR}, 0\ns_cselect_b32 {sSEL[0]}, 0x0c0c0100, {sSEL[0]}\ns_cselect_b32 {sSEL[1]}, 0x0c0c0302, {sSEL[1]}",
          f"s_cmp_eq_u32 {sR}, 16\ns_cselect_b32 {sSEL[0]}, 0x01000c0c, {sSEL[0]}\ns_cselect_b32 {sSEL[1]}, 0x03020c0c, {sSEL[1]}\ns_cselect_b32 {sM1}, 0x80000000, {sM1}",
          f"s_cmp_ge_u32 {sC}, 4\ns_cselect_b32 {sT3}, 0x80008000, 0\ns_xor_b32 {sM1}, {sM1}, {sT3}"]
    F += [f"s_mul_i32 {sT0}, {sC}, {OPT['prot']}\ns_add_u32 s47, {sW}, {sT0}\ns_and_b32 s47, s47, 3", f"s_mul_i32 {sKB}, {sR}, {4*28672}\ns_add_u32 {sKB}, {sKB}, {HB}", f"s_mul_i32 {sT0}, s47, 7168\ns_add_u32 {sKB}, {sKB}, {sT0}",
          f"s_mul_i32 s20, {sC}, 114688\ns_mul_i32 {sT0}, s47, 28672", f"s_add_u32 s20, s20, {sT0}\ns_add_u32 s20, s20, {WOP}"]
    for u in range(4):
        F += [f"s_add_u32 {sT0}, {sW}, {u}\ns_and_b32 {sT0}, {sT0}, 3", f"s_mul_i32 {sT0}, {sT0}, 28672\ns_add_u32 s{24+u}, {sT0}, {sKB}"]
    F += [f"s_lshl_b32 {sT0}, {sW}, 1\nv_lshlrev_b32 v11, 3, {vQ}", f"v_add_u32 v11, {sT0}, v11", "v_cvt_f32_u32 v11, v11"]
    gu = [vG, "v14", "v15", "v6"]
    F += [f"v_mul_f32 {vOMG}, {fbits(1.4426950408889634)}, {vG}", f"v_exp_f32 {vOMG}, {vOMG}", f"v_add_f32 {vOMG}, 1.0, {vOMG}", f"v_rcp_f32 {vOMG}, {vOMG}"]
    for g_ in gu: F += [f"v_mul_f32 {g_}, {fbits(-1.4426950408889634)}, {g_}", f"v_exp_f32 {g_}, {g_}", f"v_add_f32 {g_}, 1.0, {g_}", f"v_rcp_f32 {g_}, {g_}"]
    for u in range(4):
        F += [f"s_sub_i32 {sT0}, {sCU[u]}, {sCU[0]}\ns_ashr_i32 {sT0}, {sT0}, 12", f"v_add_u32 v4, {sT0}, {vTrow}", "v_cvt_f32_u32 v4, v4", f"v_mul_f32 v4, {fbits(1/2048)}, v4", "v_mul_f32 v5, v4, v11"]
        for k in (0, 1):
            for g2 in (0, 1):
                d = CF + 8 * u + 4 * k + 2 * g2
                F += [f"v_fmamk_f32 v114, v4, {fbits(float(k+32*g2))}, v5"] + (["v_fract_f32 v114, v114"] if OPT["fract"] else []) + ["v_sin_f32 v115, -v114", "v_cos_f32 v114, v114",
                      f"v_mul_f32 v115, {gu[u]}, v115", f"v_mul_f32 v114, {gu[u]}, v114", "v_cvt_pk_bf16_f32 v114, v114, v115",
                      f"v_perm_b32 {vr(d)}, v114, v114, {sSEL[0]}", f"v_perm_b32 {vr(d+1)}, v114, v114, {sSEL[1]}",
                      f"v_xor_b32 {vr(d)}, {sM0}, {vr(d)}", f"v_xor_b32 {vr(d+1)}, {sM1}, {vr(d+1)}"]
    F += [f"v_lshlrev_b32 v6, 10, {vTrow}", f"v_bfe_u32 v114, {vLane}, 4, 1", "v_lshl_add_u32 v6, v114, 5, v6", f"v_lshrrev_b32 v114, 5, {vLane}", "v_lshl_add_u32 v6, v114, 4, v6",
          f"v_lshlrev_b32 v14, 3, {vLane}", "v_and_b32 v15, 56, v14", "v_lshlrev_b32 v15, 4, v15"]
    F += [f"s_mul_i32 s46, s47, 896\ns_add_u32 s46, s46, {FLAGQ}", "v_min_u32 v115, 768, v15"]
    F += [f"s_lshl_b32 {sT0}, s47, 13\ns_lshl_b32 {sT1}, {sR}, 7", f"s_add_u32 {sT0}, {sT0}, {sT1}\ns_add_u32 {sT0}, {sT0}, {FLAGF}", f"s_sub_u32 {sT0}, {sT0}, s46\nv_and_b32 v114, 1, v1", f"v_lshl_add_u32 v114, v114, 12, {sT0}",
          "v_cmp_lt_u32 vcc, 31, v1\ns_nop 1\nv_cndmask_b32 v115, v115, v114, vcc"]
    F += ["v_bfe_u32 v15, v1, 1, 2", "v_mul_u32_u24 v15, 28672, v15", "v_and_b32 v114, 1, v1", "v_lshl_add_u32 v15, v114, 9, v15"]
    nsetup = len(F)
    F = deque(F)
    def red_write(ft):
        for u in (1, 2, 3): A.ds(f"ds_write_b128 v{15+u}, {vr(ACC+(ft*4+u)*4,4)} offset:{ft*1024}")
    ldF = [f"buffer_load_dwordx2 v[2:3], v13, {sWS}, 0 offen sc1", f"buffer_load_dwordx2 v[4:5], v115, {sWS}, s46 offen sc1"]
    A.per = 56
    NPF = OPT["npf"]
    for j in range(max(5, len(CK) + 1), 8): c_read(j)
    nxt = NPRE
    for n in range(112):
        ks, ft = divmod(n, 7)
        if n == 4: A.wait_all_lg()
        if n == 40: A("s_barrier")
        if n == NPF + R + 1: poll(ldF, tagcmp([2, 4]), tokPF)
        A.wait_vm(tz[n])
        if OPT["p2st"] and n in (0, 14, 28, 42, 56, 70, 84, 93, 105): A.stamp(1 + (0, 14, 28, 42, 56, 70, 84, 93, 105).index(n))
        for u in range(4):
            mfma(vr(ACC + (ft * 4 + u) * 4, 4), vr(ring[n % R], 4), ar((ks * 4 + u) * 4, 4), "0" if ks == 0 else None)
            if n >= 4 and F: A.raw(F.popleft())
            if u == 1 and nxt < n + R and nxt < 112: zload(nxt); nxt += 1
        if nxt <= n + R and nxt < 112: zload(nxt); nxt += 1
        if n == NPF:
            assert n * 4 - 16 > nsetup
            for l in ldF: tokPF = A.vmem(l)
        if n + R == 112:
            A.push([(f"s_xor_b32 {sBG}, s21, {et*256}" + (f"\ns_add_u32 {sBG}, {sBG}, 4352" if k else ""), f"buffer_load_dwordx4 {ar(112+(k*4+et)*4,4)}, v12, {sWS}, {sBG} offen sc1") for k in (0, 1) for et in range(4)], "FL")
            A.push([(f"s_add_u32 {sBG}, s20, {(m>>2)*4096}" if m % 4 == 0 else "", f"buffer_load_dwordx4 {ar(4*m,4)}, {vL16}, {sWS}, {sBG} offen offset:{(m&3)*1024} sc1") for m in range(28)], "WO")
        if ks == 15 and ft >= 2: red_write(ft - 2)
    assert not F
    A("s_nop 3"); red_write(5); A("s_nop 1"); red_write(6)
    A.stamp(12)
    hp = 40
    A(f"v_mov_b32 v37, {vB}")
    Z = 228
    for k in range(14):
        A(f"v_lshlrev_b32 {vr(Z+2*k)}, 16, {vr(Z1P+k)}\nv_and_b32 {vr(Z+2*k+1)}, 0xffff0000, {vr(Z1P+k)}\nv_pk_mul_f32 {vr(Z+2*k,2)}, {vr(Z+2*k,2)}, v[36:37] op_sel_hi:[1,0]")
    A.wait_all_lg(); A("s_barrier")
    A.lock += 1
    tk = {}
    def rr(ft):
        if ft < 7:
            for u in (1, 2, 3): tk[ft] = A.ds(f"ds_read_b128 {vr(ACC+(ft*4+u)*4,4)}, v19 offset:{(u-1)*7168+ft*1024}")
    for ft in range(4): rr(ft)
    for ft in range(7):
        b = ACC + ft * 16
        for p in (0, 2): A(f"v_pk_add_f32 {vr(b+p,2)}, {vr(b+p,2)}, v[36:37] op_sel:[0,1] op_sel_hi:[1,1]")
        A.wait_lg(tk[ft]); rr(ft + 4)
        for p in (0, 2): A(f"v_pk_add_f32 {vr(b+p,2)}, {vr(b+p,2)}, {vr(b+4+p,2)}\nv_pk_add_f32 {vr(b+8+p,2)}, {vr(b+8+p,2)}, {vr(b+12+p,2)}")
        for p in (0, 2): A(f"v_pk_add_f32 {vr(b+p,2)}, {vr(b+p,2)}, {vr(b+8+p,2)}")
        for p in (0, 2): A(f"v_pk_mul_f32 {vr(b+p,2)}, {vr(b+p,2)}, {vr(Z+4*ft+p,2)}")
        A(f"v_cvt_pk_bf16_f32 {vr(hp+2*ft)}, {vr(b)}, {vr(b+1)}\nv_cvt_pk_bf16_f32 {vr(hp+1+2*ft)}, {vr(b+2)}, {vr(b+3)}")
        if ft % 2 == 0: A(f"v_min_u32 {vr(hp+2*ft)}, -2, {vr(hp+2*ft)}")
        if ft in (1, 3, 5): A.vmem(f"buffer_store_dwordx4 {vr(hp+2*ft-2,4)}, {vL16}, {sWS}, s80 offen offset:{1024*(ft>>1)} sc1")
    tokH = A.vmem(f"buffer_store_dwordx2 {vr(hp+12,2)}, v14, {sWS}, s81 offen offset:3072 sc1")
    A.lock -= 1
    A.stamp(13)
    OA = 116
    RED2 = 98304
    A.wait_named("FL")
    for k in (0, 1):
        for u in range(4):
            for et in range(4): mfma(vr(OA + 16 * u + 4 * et, 4), ar(112 + (k * 4 + et) * 4, 4), vr(CF + 8 * u + 4 * k, 4), "0" if k == 0 else None)
    A.flush()
    A.stamp(14)
    ldH = [f"buffer_load_dword v2, v15, {sWS}, {sKB} offen offset:3072 sc1"]
    tokPH = A.vmem(ldH[0])
    for u in (1, 2, 3):
        A(f"s_add_u32 {sT0}, {sW}, {u}\ns_and_b32 {sT0}, {sT0}, 3\ns_mul_i32 {sT0}, {sT0}, 12288\ns_add_u32 {sT0}, {sT0}, {RED2+(u-1)*4096}\nv_add_u32 v{15+u}, {sT0}, {vL16}")
    A(f"s_mul_i32 {sT0}, {sW}, 12288\ns_add_u32 {sT0}, {sT0}, {RED2}\nv_add_u32 v19, {sT0}, {vL16}\ns_lshl_b32 {sT1}, {sC}, 7")
    for u in range(4): A(f"s_add_u32 {sCU[u]}, s{24+u}, 4096")
    A.stamp(15)
    poll(ldH, "v_cmp_eq_u32 vcc, -1, v2", tokPH, sleep=OPT["hsleep"])
    A.stamp(16)
    hr = list(range(180, 256, 4)) + [20, 24, 28, 32, 56, 60, 64, 68, 72]
    th = {}
    order = [(u, ls) for u in (1, 2, 3, 0) for ls in range(7)]
    def htext(n):
        u, ls = order[n]; h = hr[n]
        sb = f"s{24+u}" if ls < 4 else sCU[u]; io = (ls & 3) * 1024
        if ls == 3: return [f"buffer_load_dwordx2 {vr(h+2*k,2)}, v14, {sWS}, {sb} offen offset:{io+512*k} sc1" for k in (0, 1)]
        return [f"buffer_load_dwordx4 {vr(h,4)}, {vL16}, {sWS}, {sb} offen offset:{io} sc1"]
    def hload(n):
        if n < 28:
            for t_ in htext(n): th[n] = A.vmem(t_)
    HL = OPT["hl"]
    for n in range(HL): hload(n)
    def chk(n): return f"v_max_u32 v2, {vr(hr[n])}, {vr(hr[n]+2)}\nv_cmp_eq_u32 vcc, -1, v2" if order[n][1] == 3 else f"v_cmp_eq_u32 vcc, -1, {vr(hr[n])}"
    def br(n):
        A.raw(f"s_cbranch_vccnz Lfix{n}\nLbk{n}:")
        FIX.append(f"Lfix{n}:\ns_mov_b32 {sSPIN}, 0x40000\nLfl{n}:\n" + "\n".join(htext(n)) + f"\ns_waitcnt vmcnt(0)\n{chk(n)}\ns_cbranch_vccz Lbk{n}\ns_sub_u32 {sSPIN}, {sSPIN}, 1\ns_cmp_lg_u32 {sSPIN}, 0\ns_cbranch_scc1 Lfl{n}\ns_branch Lbk{n}")
    A.wait_vm(th[0]); A.raw(chk(0)); br(0)
    for n in range(28):
        u, ls = order[n]
        if n in (0, 7, 14, 21, 26): A.st("h%d" % n, 2)
        for et in range(4):
            mfma(vr(OA + 16 * u + 4 * et, 4), ar((ls * 4 + et) * 4, 4), vr(hr[n], 4))
            if et == 1 and n < 27: A.wait_vm(th[n + 1]); A.raw(chk(n + 1))
        if n < 27: br(n + 1)
        hload(n + HL)
        if n in (8, 15, 22):
            up = order[n - 2][0]
            for et in range(4): A.ds(f"ds_write_b128 v{15+up}, {vr(OA+16*up+4*et,4)} offset:{et*1024}")
        if n == 25:
            A.wait_all_lg(); A.st("hb", 2); A("s_barrier")
            for k in range(12): A.ds(f"ds_read_b128 {vr(OA+16+4*k,4)}, v19 offset:{k*1024}")
    A.wait_all_lg()
    for p in range(0, 16, 2): A(f"v_pk_add_f32 {vr(OA+16+p,2)}, {vr(OA+16+p,2)}, {vr(OA+32+p,2)}")
    for p in range(0, 16, 2): A(f"v_pk_add_f32 {vr(OA+p,2)}, {vr(OA+p,2)}, {vr(OA+48+p,2)}")
    for p in range(0, 16, 2): A(f"v_pk_add_f32 {vr(OA+p,2)}, {vr(OA+p,2)}, {vr(OA+16+p,2)}")
    for et in range(4):
        A(f"v_cvt_pk_bf16_f32 v{40+2*et}, {vr(OA+4*et)}, {vr(OA+4*et+1)}\nv_cvt_pk_bf16_f32 v{41+2*et}, {vr(OA+4*et+2)}, {vr(OA+4*et+3)}")
    A("s_nop 1")
    for pr in (0, 1): A(f"{P16} v{40+4*pr}, v{42+4*pr}\n{P16} v{41+4*pr}, v{43+4*pr}")
    A("s_nop 1")
    for pr in (0, 1): A.vmem(f"buffer_store_dwordx4 {vr(40+4*pr,4)}, v6, {sOUT}, {sT1} offen offset:{64*pr} {('', 'sc1', 'nt', 'sc0 sc1')[OPT['osc']]}")
    A.stamp(17)
    lb = A.lab("Lnobump")
    A(f"s_or_b32 {sT0}, s2, {sW}\ns_cmp_lg_u32 {sT0}, 0\ns_cbranch_scc1 {lb}")
    A(f"v_mov_b32 v11, {EPOCH}\ns_mov_b64 exec, 1\nbuffer_store_dwordx2 v[38:39], v11, {sWS}, 0 offen sc1\ns_mov_b64 exec, -1\n{lb}:")
    if OPT["diag"] >= 0:
        A(f"s_cmp_lg_u32 s2, 9\ns_cbranch_scc1 Lend\ns_sub_u32 s96, s96, s98\ns_lshl_b32 s96, s96, 3\ns_add_u32 s96, s96, 5000\nLdiag:\ns_memrealtime s[100:101]\ns_waitcnt lgkmcnt(0)\ns_sub_u32 s100, s100, s98\ns_cmp_lt_u32 s100, s96\ns_cbranch_scc1 Ldiag")
    if OPT["prof"]:
        A("s_memrealtime s[100:101]\ns_waitcnt lgkmcnt(0)\nv_writelane_b32 v0, s100, 63")
        A(f"s_lshl_b32 {sT0}, s2, 2\ns_add_u32 {sT0}, {sT0}, {sW}\ns_lshl_b32 {sT0}, {sT0}, 8\ns_add_u32 {sT0}, {sT0}, {TS}\nv_lshlrev_b32 v11, 2, v1\nbuffer_store_dword v0, v11, {sWS}, {sT0} offen")

prologue()
A(f"s_cmp_eq_u32 {sCA}, 7\ns_cbranch_scc1 Llead")
st = (list(A.vm), list(A.lg))
front_main()
assert not A.bg
A.raw("Ljoin:")
front2()
mid_B()
back()
A("s_branch Lend")
A.raw("Llead:")
A.vm, A.lg = st; A.tok = {}; A.per = OPT["per"]
front_lead()
assert not A.bg
A("s_branch Ljoin")
for f_ in FIX: A.raw(f_)
A("Lend:\ns_endpgm")

hdr = open("cdna_kernels/%s.s.ref" % NAME).read().split("; Override launch")[0]
if OPT["prof"]: hdr += "; STAMPS " + " ".join(A.names) + "\n"
out = hdr + "; @launch grid=(256,1,1) block=(256,1,1) lds=%d\n" % LDS_SIZE
out += '.amdgcn_target "amdgcn-amd-amdhsa--gfx950"\n.text\n.globl %s_kernel\n.p2align 8\n.type %s_kernel,@function\n%s_kernel:\n' % (NAME, NAME, NAME)
def addnt(l):
    t = l.strip()
    if OPT["nt"] and (t.startswith("buffer_load") or t.startswith("global_load")) and sWS not in t:
        return l[:-4] + " nt lds" if t.endswith(" lds") else l + " nt"
    return l
if OPT["wx"] == 1: A.L = [l.replace(" sc1", "") if ("v25," in l or "v26," in l) and "a[" in l else l for l in A.L]
if OPT["wx"] == 2: A.L = [l for l in A.L if not ("v26," in l and "a[" in l)]
if OPT["wx"] == 3: A.L = [l.replace("v26, s[40:43]", "v25, s[28:31]").replace("s_mul_i32 s3, s94,", "s_add_u32 s3, s3, 1024 ;") for l in A.L]
def keep(l):
    t = l.strip()
    if OPT["strip"] == 1: return not t.startswith(("v_mfma", "ds_", "v_pk_", "v_exp", "v_rcp", "v_cos", "v_sin", "v_fract", "v_fmamk", "v_cvt_pk", "v_perm_b32"))
    if OPT["strip"] == -1: return not (t.startswith("buffer_store_dwordx2 v[1") and ", v14, " in t)
    if OPT["strip"] == -2: return not t.startswith("s_cbranch_vccnz Lfix")
    if OPT["strip"] == -3: return not (t.startswith("s_cbranch_vccnz Lfix") or t.startswith("v_mfma"))
    if OPT["strip"] == 3 and t.startswith("ds_read"): return False
    if OPT["strip"] == 4 and t.startswith("s_waitcnt lgkmcnt") and not t.endswith("(0)"): return False
    if OPT["strip"] == 5 and t.startswith("v_mfma"): return False
    if OPT["strip"] == 6 and t.startswith("s_barrier"): return False
    if OPT["strip"] >= 2: return not (t.endswith(" lds") or (t.startswith("buffer_load_dwordx4") and (", v37, " in t or ", v7, " in t or " a[" in t)))
    return True
out += "\n".join(addnt(l) for l in A.L if keep(l)) + "\n"
out += """.section .rodata,"a"
.p2align 6
.amdhsa_kernel %s_kernel
  .amdhsa_next_free_vgpr 512
  .amdhsa_next_free_sgpr 102
  .amdhsa_accum_offset 256
  .amdhsa_group_segment_fixed_size 0
  .amdhsa_kernarg_size 112
  .amdhsa_user_sgpr_count 2
  .amdhsa_user_sgpr_kernarg_segment_ptr 1
  .amdhsa_system_sgpr_workgroup_id_x 1
.end_amdhsa_kernel
""" % NAME
open(sys.argv[1], "w").write(out)
```

```python
import sys, struct
from collections import deque
NAME = "gated_mix__spectral_fnet__mixer_gmlp__prompt"
OPT = dict(diag=-1, hl=10, p2st=0, strip=0, ahead=0, sleep=4, npf=76, nt=0, rota=3, rotc=1, prof=0, xmap=1, per=40, pera=40, look=12, gat=3, prot=0, tlb=1, ce=0, hw=0, spec=0, sn=6, no=2, ph=0, fl=1, ser=0, warm=1, wb=2, perg=90, ssleep=16, wx=0, kz=11, kc=13, per2=100, osc=0, pois=3, pp=8, abl=0, x0=1, hsleep=1, xrot=0, fa1=1, ntc=0, ck=1, rt=0, fract=0)
for a in sys.argv[2:]:
    k, v = a.split("="); OPT[k] = int(v)

def fbits(x): return "0x%08x" % struct.unpack("<I", struct.pack("<f", x))[0]
def cost(ln):
    op = ln.split()[0]
    if op.startswith("v_mfma"): return 16
    if op in ("v_exp_f32", "v_rcp_f32", "v_rsq_f32", "v_sin_f32", "v_cos_f32"): return 8
    if op.startswith("ds_read"): return 0
    if op == "s_nop": return 4 * (int(ln.split()[1]) + 1)
    return 4

class Asm:
    def __init__(s):
        s.L = []; s.vm = []; s.lg = []; s.n = 0; s.nlab = 0; s.nst = 0
        s.names = []; s.bg = deque(); s.acc = 0; s.lock = 0; s.tok = {}; s.per = OPT["per"]
    def raw(s, t):
        for ln in t.split("\n"):
            ln = ln.strip()
            if not ln: continue
            if ln.endswith(":"): s.L.append(ln)
            else: s.L.append("    " + ln); s.acc += cost(ln)
    def __call__(s, t):
        s.raw(t); s.tick()
    def tick(s):
        if s.lock or not s.bg:
            if not s.bg: s.acc = min(s.acc, s.per)
            return
        if s.acc >= s.per: s.pop()
    def pop(s):
        pre, ins, name = s.bg.popleft()
        s.lock += 1
        if pre: s.raw(pre)
        if isinstance(ins, int): t = None; s.vm.append(("c", ins))
        else: t = s.vmem(ins)
        s.lock -= 1
        if name: s.tok[name] = t
        s.acc = 0
    def push(s, items, name=None):
        for i, (pre, ins) in enumerate(items): s.bg.append((pre, ins, name if i == len(items) - 1 else None))
    def front(s, items, name):
        while s.bg and "m0" not in s.bg[0][0]: s.pop()
        new = [(p, i, name if k == len(items) - 1 else None) for k, (p, i) in enumerate(items)]
        s.bg.extendleft(reversed(new))
    def flush(s, name=None):
        while s.bg and (name is None or name not in s.tok): s.pop()
    def wait_named(s, name):
        s.flush(name)
        t = s.tok[name]
        while s.bg and t in s.vm and len(s.vm) - 1 - s.vm.index(t) < OPT["ahead"]: s.pop()
        if t in s.vm and name[0] == "W" and name not in ("W11", "W15"): s.wait_vm(t)
        if t in s.vm:
            s.st("pre_" + name, 2); s.wait_vm(t); s.st("got_" + name, 2)
    def c(s, t): s.L.append("    ; " + t)
    def lab(s, p="L"):
        s.nlab += 1; return "%s%d" % (p, s.nlab)
    def vmem(s, t):
        if len(s.vm) >= 62: s.wait_vm(s.vm[len(s.vm) - 62])
        s.raw(t); s.n += 1; s.vm.append(s.n); return s.n
    def ds(s, t):
        if len(s.lg) >= 15: s.wait_lg(s.lg[len(s.lg) - 15])
        s.raw(t); s.n += 1; s.lg.append(s.n); n = s.n; s.tick(); return n
    def wait_vm(s, tok):
        if tok not in s.vm: return
        i = s.vm.index(tok); s.vm = s.vm[i + 1:]
        sites = [x[1] for x in s.vm if isinstance(x, tuple)]; n = len(s.vm) - len(sites)
        if sites:
            l = s.lab("Lw")
            s.raw("s_waitcnt vmcnt(%d)" % (n + 8))
            for x in sites: s.raw("s_cmp_eq_u32 s67, %d\ns_cbranch_scc1 %s" % (x, l))
            s.raw("s_waitcnt vmcnt(%d)\n%s:" % (n, l))
        else: s.raw("s_waitcnt vmcnt(%d)" % n)
    def wait_lg(s, tok):
        if tok not in s.lg: return
        i = s.lg.index(tok); s.raw("s_waitcnt lgkmcnt(%d)" % (len(s.lg) - 1 - i)); s.lg = s.lg[i + 1:]
    def wait_all_lg(s):
        if s.lg: s.raw("s_waitcnt lgkmcnt(0)")
        s.lg = []
    def stamp(s, k):
        if OPT["diag"] == k: s.raw("s_memrealtime s[96:97]\ns_waitcnt lgkmcnt(0)"); s.lg = []
        s.st(str(k))
    def st(s, name, lvl=1):
        if OPT["prof"] < lvl: return
        if name not in s.names: s.names.append(name)
        k = s.names.index(name); assert k < 61
        acc = s.acc
        s.raw(("s_memrealtime" if OPT["rt"] else "s_memtime") + " s[78:79]\ns_waitcnt lgkmcnt(0)\nv_writelane_b32 v0, s78, %d" % (k + 1)); s.lg = []; s.acc = acc
A = Asm()
def vr(b, n=1): return "v%d" % b if n == 1 else "v[%d:%d]" % (b, b + n - 1)
def ar(b, n=1): return "a%d" % b if n == 1 else "a[%d:%d]" % (b, b + n - 1)
def mfma(d, a, b, c=None): A("v_mfma_f32_16x16x32_bf16 %s, %s, %s, %s" % (d, a, b, d if c is None else c))

EPOCH, FLAGZ, FLAGF, FLAGP, FLAGQ, FLAGH, STAT = 0x0, 0x90000, 0x98000, 0x1000, 0x2000, 0xA0000, 0x10000
Z2N, HB, F2, W1P, WOP, TS, WS_SIZE = 0x100000, 0x480000, 0x800000, 0xA20000, 0xB00000, 0xC00000, 0x1000000
SL = [16384 * i for i in range(10)]
PR = [32768 * i for i in range(5)]
SCR = SL[0]; Z1B = SL[6]; GX = SL[7]
LDS_SIZE = 163840
sX, sWIN, sWSP, sWOUT = ["s[%d:%d]" % (b, b + 3) for b in range(4, 20, 4)]
sAX = ["s20", "s21", "s22", "s23"]; sAW = ["s24", "s25", "s26", "s27"]
sWS, sOUT, sBSP, sGW, sTMP = ["s[%d:%d]" % (b, b + 3) for b in range(28, 48, 4)]
sROT, sBG2, sET, sSH = "s48", "s49", "s50", "s51"
sR, sC, sW = "s54", "s55", "s56"
sW2048, sW7168, sW8192 = "s57", "s58", "s59"
sCU = ["s60", "s61", "s62", "s63"]
sSEL = ["s64", "s65"]; sZ = "s66"; sSG = "s67"; sM0, sM1 = "s68", "s69"
sT0, sT1, sT2, sT3, sSPIN, sKB = "s70", "s71", "s72", "s73", "s74", "s75"
sGC = "s[76:77]"; sBG = "s3"; sCA = "s95"
vLane, vI16, vQ, vXrd0, vXrd1, vWrd, vL16, vTrow, vB, vG = ["v%d" % i for i in range(1, 11)]
vW1 = [25, 26]; vXA = [27, 28]; vXR = [29, 30]; vCb = [32, 33]; vCo = [34, 35]; vOMG = "v36"; vZA = "v37"
vR32 = 40; vWD = 48; vZ = 80; vAB = 112; vGA = 176; vFR = 180
vWA = list(range(112, 120)); vTA = list(range(120, 128))
P16, P32 = "v_permlane16_swap_b32", "v_permlane32_swap_b32"

def masked(mask_lo, mask_hi, fn):
    A.lock += 1
    A.raw(f"s_mov_b32 exec_lo, {mask_lo}\ns_mov_b32 exec_hi, {mask_hi}")
    r = fn()
    A.raw("s_mov_b64 exec, -1")
    A.lock -= 1
    return r
def flag_store(soff, w0=False):
    A("v_lshlrev_b32 v11, 3, v1")
    if w0: A(f"s_cmp_lg_u32 {sW}, 0\ns_cselect_b32 {soff}, {WS_SIZE}, {soff}")
    return masked(0xffff if OPT['fl'] else 1, 0, lambda: A.vmem(f"buffer_store_dwordx2 v[38:39], v11, {sWS}, {soff} offen sc1"))

def poll(loads, cmps, tok=None, skip7=False, sleep=None, redo=None):
    l, d, e = A.lab("Lspin"), A.lab("Ldone"), A.lab("Lredo")
    if tok is None:
        for t in loads: tok = A.vmem(t)
    A.lock += 1
    A.wait_vm(tok)
    if skip7: A.raw(f"s_cmp_eq_u32 {sCA}, 7\ns_cbranch_scc1 {d}")
    A.raw(cmps); A.raw(f"s_cbranch_vccz {d}\ns_mov_b32 {sSPIN}, 0x40000\n{l}:\ns_sleep {OPT['sleep'] if sleep is None else sleep}")
    for t in loads: A.raw(t)
    A.raw("s_waitcnt vmcnt(0)"); A.raw(cmps)
    A.raw(f"s_cbranch_vccz {e}\ns_sub_u32 {sSPIN}, {sSPIN}, 1\ns_cmp_lg_u32 {sSPIN}, 0\ns_cbranch_scc1 {l}\n{e}:")
    for t in redo or []: A.raw(t)
    A.raw(f"{d}:")
    A.lock -= 1
def tagcmp(regs):
    cm = f"v_cmp_ne_u64 vcc, s[52:53], {vr(regs[0],2)}"
    for k in regs[1:]: cm += f"\nv_cmp_ne_u64 s[78:79], s[52:53], {vr(k,2)}\ns_or_b64 vcc, vcc, s[78:79]"
    return cm

def gelu(base, n, t):
    for p0 in range(0, n, 8):
        ps = (p0, p0 + 2, p0 + 4, p0 + 6)
        for k, p in enumerate(ps): A(f"v_pk_mul_f32 {vr(t+2*k,2)}, {vr(base+p,2)}, {vr(base+p,2)}")
        for k, p in enumerate(ps): A(f"v_pk_fma_f32 {vr(t+2*k,2)}, {vr(t+2*k,2)}, {sGC}, {sGC} op_sel:[0,0,1] op_sel_hi:[1,0,1]")
        for k, p in enumerate(ps): A(f"v_pk_mul_f32 {vr(t+2*k,2)}, {vr(t+2*k,2)}, {vr(base+p,2)}")
        for k in range(8): A(f"v_exp_f32 {vr(t+k)}, {vr(t+k)}")
        for k, p in enumerate(ps): A(f"v_pk_add_f32 {vr(t+2*k,2)}, {vr(t+2*k,2)}, 1.0 op_sel_hi:[1,0]")
        for k in range(8): A(f"v_rcp_f32 {vr(t+k)}, {vr(t+k)}")
        for k, p in enumerate(ps): A(f"v_pk_mul_f32 {vr(base+p,2)}, {vr(base+p,2)}, {vr(t+2*k,2)}")

def xreduce(ops, regs, tmps):
    for op in ops:
        for r, t in zip(regs, tmps): A(f"v_mov_b32 {vr(t)}, {vr(r)}")
        A("s_nop 1")
        for r, t in zip(regs, tmps): A(f"{op} {vr(t)}, {vr(r)}")
        A("s_nop 1")
        for r, t in zip(regs, tmps): A(f"v_add_f32 {vr(r)}, {vr(r)}, {vr(t)}")

def gen_cos(dst, nd, freq, base, kfun):
    for i in range(0, nd, 2):
        ks = [kfun(2 * i + z) for z in range(4)]
        for z in range(4): A(f"v_fmamk_f32 v{16+z}, {freq}, {fbits(float(ks[z]))}, {base}")
        if OPT["fract"]:
            for z in range(4): A(f"v_fract_f32 v{16+z}, v{16+z}")
        for z in range(4): A(f"v_cos_f32 v{16+z}, v{16+z}")
        A(f"v_cvt_pk_bf16_f32 {vr(dst(i))}, v16, v17\nv_cvt_pk_bf16_f32 {vr(dst(i+1))}, v18, v19")

def it_xa(G):
    return [(f"s_add_u32 m0, {sW2048}, {SL[6+G] + sub*8192 - 128*sub}\ns_nop 0" if h == 0 else "",
             f"buffer_load_dwordx4 {vr(vXA[h])}, {sX}, {sAX[G]} offen offset:{1024*h+128*sub} lds") for sub in (0, 1) for h in (0, 1)]
def it_xr(dst, G):
    return [(f"s_add_u32 m0, {sW2048}, {dst + sub*8192 - 128*(2*G+sub)}\ns_nop 0" if h == 0 else "",
             f"buffer_load_dwordx4 {vr(vXR[h])}, {sX}, 0 offen offset:{1024*h+128*(2*G+sub)} lds") for sub in (0, 1) for h in (0, 1)]
def it_w1(ks):
    return [(f"s_mov_b32 {sBG}, {ks*57344}", f"buffer_load_dwordx4 {ar(128+ks*8,4)}, {vr(vW1[0])}, {sWS}, {sBG} offen sc1"),
            (f"s_mul_i32 {sBG}, s94, {ks}", f"buffer_load_dwordx4 {ar(128+ks*8+4,4)}, {vr(vW1[1])}, {sGW}, {sBG} offen sc1")]
def it_w2(dst, G):
    return [(f"s_add_u32 m0, {'s101' if i else 's100'}, {dst}\ns_nop 0" if i in (0, 4) else "",
             f"buffer_load_dwordx4 {vr(vWA[i])}, {sWIN}, {sAW[G]} offen offset:{1024*(i&3)} lds") for i in range(8)]
def it_c(j, dst):
    it = []
    for u in range(4):
        for h in (0, 1):
            pre = ""
            if u == 0 and h == 0:
                pre = f"s_bfe_u32 {sBG2}, {sROT}, {(4<<16)|(4*j)}\ns_lshl_b32 {sBG2}, {sBG2}, 7\nv_or_b32 {vr(vCo[0])}, {sBG2}, {vr(vCb[0])}\nv_or_b32 {vr(vCo[1])}, {sBG2}, {vr(vCb[1])}\n"
            if h == 0: pre += f"s_add_u32 m0, {sW8192}, {dst + u*2048}\ns_nop 0"
            it.append((pre, f"buffer_load_dwordx4 {vr(vCo[h])}, {sWSP}, {sCU[u]} offen offset:{1024*h}{' nt' if j < OPT['ntc'] else ''} lds"))
    return it
IT_GATE = [("", f"buffer_load_ushort {vB}, v246, {sBSP}, 0 offen")]

class Pipe:
    def __init__(s): s.mf = []; s.rd = []; s.hooks = {}; s.pres = {}
    def pre(s, fn): s.pres[len(s.mf)] = fn
    def read(s, quad, text): s.rd.append([quad, text, len(s.mf)])
    def hook(s, fn): s.hooks[len(s.rd)] = fn
    def mfma(s, d, a, b, c, uses): s.mf.append((d, a, b, c, uses))
    def run(s, D):
        free = []
        for quad, text, need in s.rd:
            free.append(max([j for j in range(need) if quad in s.mf[j][4]], default=-1))
        toks = []
        def emit():
            k = len(toks)
            if k in s.hooks: s.hooks[k]()
            toks.append(A.ds(s.rd[k][1]))
        def ready(i, d):
            k = len(toks)
            return k < len(s.rd) and s.rd[k][2] <= i + d and free[k] <= i
        while ready(-1, D): emit()
        for i, (d, a, b, c, uses) in enumerate(s.mf):
            while len(toks) < len(s.rd) and s.rd[len(toks)][2] <= i: emit()
            need = [k for k in range(len(toks)) if s.rd[k][2] <= i]
            if need: A.wait_lg(toks[need[-1]])
            if i in s.pres: s.pres[i]()
            mfma(d, a, b, c)
            if ready(i, D): emit()
            if ready(i, D - 3): emit()

def gbar(name, flush=True):
    A.wait_all_lg()
    if flush: A.flush()
    if name: A.wait_named(name)
    A("s_barrier")
    if name: A.st("bar_" + name, 2)

NF = 8
cnt = [0]
WA = [PR[0], PR[2], PR[0], PR[2]] if OPT['ce'] else [PR[0], PR[1], PR[2], PR[0]]
CS = [PR[1], PR[2], PR[0], PR[1], PR[2], PR[0], PR[1], PR[2]]
CK = [int(x) for x in str(OPT['ck']).replace('0', ' ').split()] if False else [[7, 10, 13], [6, 9, 12, 15], [5, 7, 9, 12, 14]][OPT['ck']]
ZH = 220
def stageB(P, G, hk):
    for kk in range(4):
        if 4 * G + kk in hk: P.hook(hk[4 * G + kk])
        par = kk & 1; ks = 4 * G + kk
        fb = vFR + 20 * par
        so = G * 16384 + (kk >> 1) * 8192
        z0 = "0" if ks == 0 else None
        a0 = "0" if kk == 0 else None
        for x in range(4):
            P.read(fb + 4 * x, f"ds_read_b128 {vr(fb+4*x,4)}, v{12+2*x+par} offset:{so}")
            P.mfma(vr(vAB + 16 * G + 4 * x, 4), vr(fb + 4 * x, 4), vr(vWD + 4 * kk, 4), a0, (fb + 4 * x,))
            if x == 0: P.pre(lambda ks=ks: A.wait_named("W%d" % ks))
            for i in (0, 1): P.mfma(vr(vZ + 8 * x + 4 * i, 4), ar(128 + (ks * 2 + i) * 4, 4), vr(fb + 4 * x, 4), z0, (fb + 4 * x,))

def pushc(j): A.push(it_c(j, CS[j]), "C%d" % j)
def c_read(j):
    dst = CS[j]
    A.wait_named("C%d" % j)
    for par in (0, 1):
        for u in range(4):
            A.ds(f"ds_read_b128 {ar(((2*j+par)*4+u)*4,4)}, v{240+2*(dst>>16)+par} offset:{(dst&0xffff)+u*2048}")
def cnext(j):
    c_read(j); A.wait_all_lg()
    if j + 3 < 8: pushc(j + 3)

Z1P = 100
POIS = [('', f'buffer_store_dwordx4 v[236:239], {vL16}, {sWS}, s80 offen offset:{1024*k} sc1') for k in range(3)] + [('', f'buffer_store_dwordx4 v[236:239], v24, {sWS}, s81 offen offset:3072 sc1')]
def poison(issue=True):
    t = 220
    A(f"s_lshl_b32 {sT0}, {sR}, 2\ns_add_u32 {sT0}, {sT0}, {sW}\ns_mul_i32 {sT0}, {sT0}, 28672\ns_lshr_b32 {sT1}, {sC}, 1\ns_mul_i32 {sT1}, {sT1}, 7168\ns_add_u32 {sT1}, {sT1}, {sT0}\ns_add_u32 {sT1}, {sT1}, {HB}")
    A(f"s_and_b32 {sT0}, {sC}, 1\ns_lshl_b32 s80, {sT0}, 12\ns_add_u32 s80, s80, {sT1}\ns_lshl_b32 s81, {sT0}, 9\ns_add_u32 s81, s81, {sT1}")
    A(f"v_mov_b32 {vr(t+16)}, -1\nv_mov_b32 {vr(t+17)}, -1\nv_mov_b32 {vr(t+18)}, -1\nv_mov_b32 {vr(t+19)}, -1")
    A(f"v_lshrrev_b32 v24, 5, v1\nv_lshl_add_u32 v24, v24, 24, {vL16}")
    if not issue: return
    for k in range(3): A.vmem(f"buffer_store_dwordx4 {vr(t+16,4)}, {vL16}, {sWS}, s80 offen offset:{1024*k} sc1")
    masked(-1, 0, lambda: A.vmem(f"buffer_store_dwordx4 {vr(t+16,4)}, {vL16}, {sWS}, s81 offen offset:3072 sc1"))
def b_epilogue(fz):
    t = vFR
    A(f"v_and_b32 v15, 1, v1\nv_and_b32 v16, 2, v1\nv_sub_u32 v17, 1, v16\nv_sub_u32 v18, 1, v15\nv_mul_i32_i24 v12, v17, v18\nv_mul_i32_i24 v13, v17, v15\nv_sub_u32 v14, v18, v15")
    A("v_bfe_u32 v16, v1, 3, 1\nv_lshlrev_b32 v16, 31, v16\nv_cvt_f32_i32 v12, v12\nv_cvt_f32_i32 v13, v13\nv_cvt_f32_i32 v14, v14\nv_xor_b32 v13, v16, v13")
    for p in range(0, 16, 2):
        o = [vr(vAB + 16 * m + p, 2) for m in range(4)]
        A(f"v_pk_fma_f32 {o[0]}, {o[2]}, v[14:15], {o[0]} op_sel_hi:[1,0,1]\nv_pk_add_f32 {o[2]}, {o[1]}, {o[3]}\nv_pk_add_f32 {o[1]}, {o[1]}, {o[3]} neg_lo:[0,1] neg_hi:[0,1]")
        A(f"v_pk_fma_f32 {o[0]}, {o[2]}, v[12:13], {o[0]} op_sel_hi:[1,0,1]")
    for v in range(16): A(f"v_fmac_f32_dpp {vr(vAB+v)}, {vr(vAB+16+v)}, v13 row_ror:8 row_mask:0xf bank_mask:0xf")
    for k in range(8): A(f"v_cvt_pk_bf16_f32 {vr(t+k)}, {vr(vAB+2*k)}, {vr(vAB+2*k+1)}")
    A("s_nop 1")
    D = vAB + 32
    for lg in (0, 1):
        for J in (0, 1): mfma(vr(D + 8 * lg + 4 * J, 4), vr(vR32 + 4 * J, 4), vr(t + 4 * lg, 4), "0")
    A(f"s_cmp_eq_u32 {sW}, 3\ns_cselect_b32 {sT0}, 0, 1024\ns_add_u32 {sT0}, {sT0}, {GX}\nv_lshlrev_b32 v16, 2, {vI16}\nv_add_u32 v11, {sT0}, v16")
    for x in range(4): A.ds(f"ds_write2_b32 v11, {vr(vZ+8*x+4)}, {vr(vZ+8*x+4)} offset0:{(3^x)*16} offset1:{(3^x)*16+64}")
    A(f"s_mul_i32 {sT0}, {sR}, 4352\ns_lshl_b32 {sT1}, {sC}, 9\ns_add_u32 {sT0}, {sT0}, {sT1}\ns_lshl_b32 {sT2}, {sW}, 7\ns_add_u32 {sT0}, {sT0}, {sT2}\ns_add_u32 {sT0}, {sT0}, {F2}\ns_mov_b32 {sT3}, 139264")
    A(f"v_and_b32 v14, 7, v1\nv_lshlrev_b32 v14, 4, v14\nv_lshrrev_b32 v15, 3, v1\nv_mad_u32_u24 v14, v15, {sT3}, v14\nv_add_u32 v14, {sT0}, v14")
    A(f"s_lshl_b32 {sT0}, {sW}, 6\ns_add_u32 {sT0}, {sT0}, {GX}\nv_add_u32 v16, {sT0}, v16")
    U = t + 8
    for J in (0, 1):
        for lg in (0, 1):
            for z in (0, 1): A(f"v_cvt_pk_bf16_f32 {vr(U+4*J+2*lg+z)}, {vr(D+8*lg+4*J+2*z)}, {vr(D+8*lg+4*J+2*z+1)}")
    for k in range(4): A(f"v_mov_b32 {vr(t+k)}, {vr(U+2*k)}")
    for k in range(4): A(f"v_mov_b32_dpp {vr(U+2*k)}, {vr(U+2*k+1)} row_ror:8 row_mask:0xf bank_mask:0xc")
    for k in range(4): A(f"v_mov_b32_dpp {vr(U+2*k+1)}, {vr(t+k)} row_ror:8 row_mask:0xf bank_mask:0x3")
    l1, lsk = A.lab("Lnosw"), A.lab("Lnosp")
    A.lock += 1
    A(f"s_cmp_eq_u32 {sSH}, 0\ns_cbranch_scc1 {l1}")
    for J in (0, 1): A(f"v_swap_b32 {vr(U+4*J)}, {vr(U+4*J+2)}\nv_swap_b32 {vr(U+4*J+1)}, {vr(U+4*J+3)}")
    A(f"{l1}:\ns_mov_b32 {sT2}, {8*139264}\ns_add_u32 {sT1}, {sW}, {sC}\ns_cmp_lg_u32 {sT1}, 0\ns_cbranch_scc1 {lsk}")
    A(f"s_mov_b32 exec_lo, 0x01010101\ns_mov_b32 exec_hi, 0x01010101\nv_add_u32 v15, 4096, v14")
    for J in (0, 1):
        q_ = t + 4 * J
        A(f"v_mov_b32 {vr(q_)}, {vr(U+4*J+1)}\nv_mov_b32 {vr(q_+1)}, 0\nv_mov_b32 {vr(q_+2)}, {vr(U+4*J+3)}\nv_mov_b32 {vr(q_+3)}, 0\nv_mov_b32 {vr(U+4*J+1)}, 0\nv_mov_b32 {vr(U+4*J+3)}, 0")
        A(f"buffer_store_dwordx4 {vr(q_,4)}, v15, {sWS}, {sT2 if J else 0} offen sc1")
    A(f"s_mov_b64 exec, -1\n{lsk}:")
    A.lock -= 1
    if OPT["pois"] == 2: poison()
    for J in (0, 1): tokF = A.vmem(f"buffer_store_dwordx4 {vr(U+4*J,4)}, v14, {sWS}, {sT2 if J else 0} offen sc1")
    fz()
    gelu(vZ, 32, vFR + 20)
    A(f"s_lshl_b32 {sT0}, {sW}, 12\ns_add_u32 {sT0}, {sT0}, {Z1B}\nv_lshlrev_b32 v12, 3, {vLane}\nv_add_u32 v17, {sT0}, v12\ns_lshl_b32 {sT0}, {sW}, 10\nv_add_u32 v12, {sT0}, v17")
    for x in range(4):
        if x: A(f"v_xor_b32 v13, {4096*x}, v12")
        for i in (0, 1):
            b = vZ + 8 * x + 4 * i
            A(f"v_cvt_pk_bf16_f32 {vr(b)}, {vr(b)}, {vr(b+1)}\nv_cvt_pk_bf16_f32 {vr(b+1)}, {vr(b+2)}, {vr(b+3)}")
            A.ds(f"ds_write_b64 v{13 if x else 12}, {vr(b,2)} offset:{i*512}")
    A(f"v_lshlrev_b32 {vB}, 16, {vB}")
    A.st("epi_end", 2); A.wait_all_lg(); A.flush(); A.st("epi_fl", 2); A.wait_vm(tokF); A.st("epi_F", 2); A("s_barrier")
    A(f"s_lshl_b32 {sT0}, {sC}, 12\ns_lshl_b32 {sT1}, {sR}, 7\ns_add_u32 {sT0}, {sT0}, {sT1}\ns_add_u32 {sT0}, {sT0}, {FLAGF}")
    flag_store(sT0, True)
    for ft in range(7): A.ds(f"ds_read_b64 {vr(Z1P+2*ft,2)}, v17 offset:{ft*512}")
    A.ds("ds_read2_b32 v[14:15], v16 offset0:16 offset1:32"); A.ds("ds_read_b32 v6, v16 offset:192"); A.ds(f"ds_read_b32 {vG}, v16")
LDZ = [f"buffer_load_dwordx2 v[246:247], v19, {sWS}, s46 offen sc1"]
def flagZ_issue():
    A(f"s_mul_i32 {sT0}, {sC}, 7\ns_add_u32 {sT1}, {sT0}, 6\ns_lshr_b32 {sT0}, {sT0}, 3\ns_lshr_b32 {sT1}, {sT1}, 3\ns_sub_u32 {sT1}, {sT1}, {sT0}\ns_lshl_b32 {sT1}, {sT1}, 12")
    A(f"s_lshl_b32 {sT0}, {sT0}, 12\ns_lshl_b32 {sT2}, {sW}, 10\ns_add_u32 {sT0}, {sT0}, {sT2}\ns_add_u32 s46, {sT0}, {FLAGZ}")
    A(f"v_and_b32 v19, 7, v1\nv_lshlrev_b32 v19, 7, v19\nv_lshrrev_b32 v11, 5, {vLane}\nv_mad_u32_u24 v19, v11, {sT1}, v19")
    return A.vmem(LDZ[0])

def srd(b, src, size): A(f"s_mov_b32 s{b}, s{src}\ns_mov_b32 s{b+1}, s{src+1}\ns_mov_b32 s{b+2}, {size}\ns_mov_b32 s{b+3}, 0x20000")

def prologue():
    A("s_cmp_ge_u32 s2, 256\ns_cbranch_scc1 Lend")
    A("s_load_dwordx16 s[60:75], s[0:1], 0\ns_load_dwordx8 s[80:87], s[0:1], 64\ns_load_dwordx4 s[88:91], s[0:1], 96")
    if OPT["prof"]: A("s_memrealtime s[98:99]\ns_memtime s[96:97]")
    if OPT["diag"] >= 0: A("s_memrealtime s[98:99]\ns_memrealtime s[96:97]")
    A(f"s_getpc_b64 s[44:45]\ns_mov_b32 s46, Lend-{NAME}_kernel\ns_mov_b32 s47, 0x20000")
    A("s_lshr_b32 s3, s2, 3\ns_lshl_b32 s76, s3, 10\nv_and_b32 v11, 7, v0\nv_lshlrev_b32 v11, 7, v11\nv_add_u32 v11, s76, v11")
    A.vmem(f"buffer_load_dword v12, v11, {sTMP}, 0 offen")
    A("s_and_b32 s76, s2, 7")
    if OPT["xmap"] == 1:
        A(f"s_lshr_b32 {sR}, s3, 3\ns_lshl_b32 s77, s76, 2\ns_add_u32 {sR}, {sR}, s77\ns_and_b32 {sC}, s3, 7")
        A(f"s_mov_b32 s78, 0x76543210\ns_mov_b32 s79, s78\ns_mul_i32 s77, s76, {OPT['xrot']}\ns_add_u32 s77, s77, {sC}\ns_and_b32 s77, s77, 7\ns_lshl_b32 s77, s77, 2\ns_lshr_b64 s[78:79], s[78:79], s77\ns_mov_b32 {sROT}, s78")
    else:
        A(f"s_lshr_b32 {sR}, s76, 1\ns_lshl_b32 {sR}, {sR}, 3\ns_lshr_b32 s77, s3, 2\ns_add_u32 {sR}, {sR}, s77")
        A(f"s_and_b32 {sC}, s76, 1\ns_lshl_b32 {sC}, {sC}, 2\ns_and_b32 s77, s3, 3\ns_add_u32 {sC}, {sC}, s77")
        A(f"s_lshl_b32 s77, s77, 2\ns_lshr_b32 {sROT}, 0x64206420, s77\ns_and_b32 {sROT}, {sROT}, 0xffff\ns_or_b32 {sROT}, {sROT}, 0x64200000\ns_bitcmp1_b32 s76, 0\ns_cselect_b32 s77, 0, 16\ns_lshl_b32 s77, 0x1111, s77\ns_or_b32 {sROT}, {sROT}, s77")
    A(f"s_mov_b32 {sCA}, {sC}")
    if not OPT["rotc"]: A(f"s_mov_b32 {sROT}, 0x76543210")
    A(f"v_lshrrev_b32 v11, 6, v0\nv_and_b32 {vLane}, 63, v0\nv_readfirstlane_b32 {sW}, v11")
    A(f"v_and_b32 {vI16}, 15, v0\nv_lshrrev_b32 {vQ}, 4, {vLane}\nv_lshlrev_b32 {vL16}, 4, {vLane}")
    A(f"s_lshl_b32 {sW2048}, {sW}, 11\ns_lshl_b32 {sW8192}, {sW}, 13\ns_and_b32 {sET}, {sW}, 1\ns_lshr_b32 {sSH}, {sW}, 1\ns_add_u32 s76, {sR}, {sC}")
    if not OPT["rota"]: A("s_mov_b32 s76, 0")
    if OPT["rota"] == 2: A(f"s_lshr_b32 s76, {sR}, 3\ns_lshr_b32 s77, {sC}, 2\ns_lshl_b32 s77, s77, 1\ns_add_u32 s76, s76, s77\ns_and_b32 s77, {sC}, 1\ns_add_u32 s76, s76, s77")
    if OPT["rota"] == 3: A(f"s_lshr_b32 s76, {sR}, 2\ns_add_u32 s76, s76, {sC}")
    if OPT["rota"] == 4: A(f"s_lshr_b32 s76, {sR}, 3\ns_add_u32 s76, s76, {sC}\ns_and_b32 s77, {sR}, 1\ns_lshl_b32 s77, s77, 1\ns_add_u32 s76, s76, s77")
    for G in range(4):
        A(f"s_add_u32 s77, s76, {G}\ns_and_b32 s77, s77, 3\ns_lshl_b32 {sAX[G]}, s77, 8\ns_mul_i32 {sAW[G]}, s77, 458752")
    A(f"v_lshrrev_b32 v11, 3, {vLane}\nv_and_b32 v15, 7, v0\nv_lshrrev_b32 v16, 1, v11")
    A("v_xor_b32 v13, v15, v16\nv_lshlrev_b32 v13, 4, v13\nv_xor_b32 v14, 64, v13")
    A(f"s_lshl_b32 s76, {sR}, 16\ns_lshl_b32 s77, {sW}, 14\ns_add_u32 s76, s76, s77\nv_lshl_add_u32 v15, v11, 10, s76")
    A(f"v_add_u32 {vr(vXA[0])}, v15, v13\nv_add_u32 {vr(vXA[1])}, v15, v14\nv_add_u32 {vr(vXA[1])}, 7168, {vr(vXA[1])}")
    A(f"s_lshl_b32 s76, {sCA}, 8\ns_mul_i32 s77, {sW}, 114688\ns_add_u32 s76, s76, s77\ns_add_u32 s76, s76, 1792\ns_movk_i32 s77, 3584")
    A(f"v_lshlrev_b32 v15, 1, {vQ}\nv_xor_b32 v15, v15, {vI16}\nv_lshlrev_b32 v15, 4, v15\nv_mad_u32_u24 v16, {vQ}, s77, v15\nv_add_u32 v16, s76, v16\nv_xor_b32 v17, 128, v16")
    A(f"s_bfe_u32 s76, {sR}, 0x10002\ns_mul_i32 s76, s76, {OPT['hw']}\ns_lshl_b32 s100, s76, 12\ns_add_u32 s100, s100, {sW8192}\ns_xor_b32 s101, s100, 4096\ns_mul_i32 s76, s76, {4*3584}\ns_sub_u32 s77, {4*3584}, s76")
    A("v_add_u32 v18, s77, v16\nv_add_u32 v19, s77, v17\nv_add_u32 v16, s76, v16\nv_add_u32 v17, s76, v17")
    for i in range(8):
        A(f"v_add_u32 {vr(vWA[i])}, {8*(i&3)*3584 - 1024*(i&3)}, v{16+(i&1)+2*(i>>2)}")
    A("s_waitcnt lgkmcnt(0)")
    srd(4, 60, 2097152); srd(8, 72, 1835008); srd(16, 82, 917504)
    A(f"s_load_dwordx2 s[92:93], s[90:91], {EPOCH}")

def setup2(early=False):
    if not (early and OPT["pois"] == 4): srd(12, 74, 8388608); srd(28, 90, WS_SIZE); srd(36, 80, 4096)
    srd(32, 86, 2097152)
    A(f"s_cmp_eq_u32 {sW}, 3\ns_cselect_b32 s40, s84, s90\ns_cselect_b32 s41, s85, s91\ns_movk_i32 s42, 1024\ns_cselect_b32 s42, s42, s30\ns_mov_b32 s43, 0x20000\ns_cselect_b32 s94, 64, 57344")
    A(f"s_mul_i32 {sW7168}, {sW}, 7168\ns_mul_i32 s77, {sC}, 7168\ns_add_u32 s76, {sW2048}, s77\ns_add_u32 s76, s76, {W1P}\nv_add_u32 {vr(vW1[0])}, s76, {vL16}\nv_add_u32 {vr(vW1[1])}, 1024, {vr(vW1[0])}\nv_lshlrev_b32 v15, 4, {vQ}\ns_cmp_eq_u32 {sW}, 3\ns_cselect_b64 vcc, -1, 0\nv_cndmask_b32 {vr(vW1[1])}, {vr(vW1[1])}, v15, vcc")
    A("v_and_b32 v17, 4, v11\nv_lshlrev_b32 v17, 1, v17\nv_and_or_b32 v17, v11, 3, v17")
    A(f"s_lshl_b32 s76, {sET}, 8\ns_lshl_b32 s77, {sSH}, 5\ns_add_u32 s76, s76, s77\ns_add_u32 s76, s76, {sR}")
    A("s_lshl_b32 s77, s76, 10\nv_lshl_add_u32 v15, v17, 16, s77")
    A(f"v_add_u32 {vr(vXR[0])}, v15, v13\nv_add_u32 {vr(vXR[1])}, v15, v14\nv_add_u32 {vr(vXR[1])}, {1024*1024-1024}, {vr(vXR[1])}")
    A(f"v_and_b32 v15, 12, {vI16}\nv_lshlrev_b32 v15, 1, v15\nv_and_or_b32 v15, {vI16}, 3, v15\nv_lshl_add_u32 {vTrow}, v15, 6, s76")
    A(f"s_lshl_b32 s77, {sR}, 12\ns_lshl_b32 s78, {sW}, 10\ns_add_u32 s77, s77, s78\nv_lshl_add_u32 v15, v17, 18, s77")
    A(f"v_add_u32 {vr(vCb[0])}, v15, v13\nv_add_u32 {vr(vCb[1])}, v15, v14\nv_add_u32 {vr(vCb[1])}, {1024*4096-1024}, {vr(vCb[1])}")
    for u in range(4):
        A(f"s_add_u32 s77, {sW}, {u}\ns_and_b32 s78, s77, 1\ns_lshl_b32 s78, s78, 20\ns_and_b32 s77, s77, 2\ns_lshl_b32 s77, s77, 16\ns_add_u32 {sCU[u]}, s77, s78")
    A(f"v_lshlrev_b32 v246, 1, {vTrow}")
    A(f"v_lshrrev_b32 v15, 1, {vI16}\nv_xor_b32 v15, v15, {vQ}\nv_lshlrev_b32 v15, 4, v15\nv_lshl_add_u32 {vXrd0}, {vI16}, 7, v15\nv_xor_b32 {vXrd1}, 64, {vXrd0}")
    A(f"v_add_u32 v240, {sW8192}, {vXrd0}\nv_add_u32 v241, {sW8192}, {vXrd1}\nv_add_u32 v242, 0x10000, v240\nv_add_u32 v243, 0x10000, v241\nv_add_u32 v244, 0x20000, v240\nv_add_u32 v245, 0x20000, v241")
def tlb_touch():
    if not OPT["tlb"]: return
    A(f"v_and_b32 v15, 7, v1\nv_lshlrev_b32 v15, 7, v15\ns_cmp_eq_u32 {sW}, 3\ns_cselect_b32 s78, 0, {WS_SIZE}")
    A.vmem(f"buffer_load_dword v255, v15, {sGW}, s78 offen")
    A.vmem(IT_GATE[0][1])
def twiddles():
    A(f"s_lshl_b32 s70, {sC}, 5\ns_lshl_b32 s71, {sW}, 3\ns_add_u32 s70, s70, s71\nv_and_b32 v11, 7, v1\nv_add_u32 v11, s70, v11\nv_bfe_u32 v14, v1, 3, 1\nv_lshlrev_b32 v15, 3, {vQ}\nv_cmp_gt_u32 vcc, v14, v11\nv_cvt_f32_u32 v11, v11\nv_cvt_f32_u32 v15, v15\nv_cvt_f32_u32 v14, v14")
    A(f"v_mul_f32 v11, {fbits(1/512)}, v11\nv_mul_f32 v14, {fbits(0.25)}, v14\nv_fma_f32 v13, v11, v15, v14\nv_cndmask_b32 v11, v11, 0.5, vcc\nv_cndmask_b32 v13, v13, 0, vcc")
    gen_cos(lambda i: vWD + i, 16, "v11", "v13", lambda n: 32 * (n >> 3) + (n & 7))
    A(f"v_lshrrev_b32 v11, 1, {vI16}\nv_cvt_f32_u32 v11, v11\nv_mul_f32 v11, {fbits(1/32)}, v11\nv_add_f32 v247, {fbits(0.25)}, v11")
    A(f"v_and_b32 v13, 1, v1\nv_cvt_f32_u32 v13, v13\nv_mul_f32 v13, {fbits(0.25)}, v13\nv_cmp_eq_u32 vcc, 1, {vI16}\nv_mov_b32 v14, v13\ns_nop 0\nv_cndmask_b32 v11, v11, 0.5, vcc\nv_cndmask_b32 v13, v13, 0, vcc")
    A(f"s_lshl_b32 s70, {sET}, 2\nv_cvt_f32_u32 v248, s70\nv_sub_f32 v252, v15, v248\nv_add_f32 v248, v15, v248")
    for J, (fr, ph) in enumerate((("v11", "v13"), ("v247", "v14"))):
        A(f"v_fma_f32 v253, {fr}, v248, {ph}\nv_fma_f32 v254, {fr}, v252, {ph}")
        gen_cos(lambda i: vR32 + 4 * J + i, 2, fr, "v253", lambda n: n)
        gen_cos(lambda i: vR32 + 4 * J + 2 + i, 2, fr, "v254", lambda n: 4 + n)
def consts():
    if OPT["pois"] == 0: poison()
    if OPT["pois"] == 3: poison(False)
    A("s_waitcnt lgkmcnt(0)")
    A("s_mul_i32 s52, s92, 0x9E3779B1\ns_add_u32 s52, s52, 0x7F4A7C15\ns_mul_i32 s53, s93, 0x85EBCA6B\ns_add_u32 s53, s53, 0xC2B2AE35")
    c0 = -2 * 0.7978845608028654 * 1.4426950408889634
    A(f"s_mov_b32 s76, {fbits(c0*0.044715)}\ns_mov_b32 s77, {fbits(c0)}\nv_mov_b32 v38, s52\nv_mov_b32 v39, s53\nv_and_b32 v251, 31, v1\nv_lshlrev_b32 v251, 7, v251\nv_add_u32 v251, {FLAGP}, v251")
    if OPT["prof"]: A("v_writelane_b32 v0, s96, 0\nv_writelane_b32 v0, s98, 62")
LDP = [f"buffer_load_dwordx2 v[20:21], v251, {sWS}, 0 offen sc1"]

def front_main():
    a0 = it_xa(0) + it_w2(WA[0], 0)
    if OPT["pois"] == 4:
        srd(28, 90, WS_SIZE); srd(36, 80, 4096); srd(12, 74, 8388608); poison(False)
        A.push(a0[:OPT["pp"]] + POIS + a0[OPT["pp"]:], "A0")
    else: A.push(a0, "A0")
    A.push(it_xa(1) + it_w2(WA[1], 1), "A1")
    A.st("karg", 2)
    A.flush("A0")
    A.st("iss0", 2)
    if OPT["ser"] == 2: A.raw("s_waitcnt vmcnt(4)"); A.st("w8"); A.raw("s_waitcnt vmcnt(0)"); A.st("w12")
    A.lock += 1
    setup2(True); tlb_touch()
    if OPT["ce"] == 1: twiddles(); consts()
    if OPT["ce"]: A.front(it_c(0, CS[0]), "C0"); A.flush("C0")
    if OPT["ce"] != 1: twiddles(); consts()
    A(f"v_lshrrev_b32 v15, 2, {vLane}\nv_lshlrev_b32 v16, 8, v15\nv_and_b32 v15, 7, v15\nv_lshl_add_u32 v16, v15, 5, v16\nv_and_b32 v15, 3, v1\nv_lshl_add_u32 v16, v15, 3, v16\ns_lshl_b32 {sT0}, {sET}, 7\nv_xor_b32 v16, {sT0}, v16")
    for i in range(4): A(f"v_xor_b32 {vr(vTA[i])}, {32*i}, v16\nv_add_u32 {vr(vTA[4+i])}, 0x10000, {vr(vTA[i])}")
    A(f"s_lshl_b32 {sT0}, {sSH}, 12\ns_add_u32 {sT0}, {sT0}, {SL[6]}\nv_add_u32 v13, {sT0}, {vXrd0}\nv_add_u32 v14, {sT0}, {vXrd1}")
    A.lock -= 1
    if OPT["fa1"]: A.flush("A1")
    if OPT["ce"]: A.push(it_xa(2) + it_xa(3))
    else: A.push(it_xa(2) + it_w2(WA[2], 2), "A2"); A.push(it_xa(3))
    A.stamp(1)
    A.per = OPT["pera"]
    P = Pipe()
    for G in range(4):
        def h(G=G):
            gbar("A%d" % G, False)
            if OPT["ce"]:
                if G in (1, 2): A.front(it_w2(WA[G + 1], G + 1), "A%d" % (G + 1)) if G == 2 else A.push(it_w2(WA[G + 1], G + 1), "A%d" % (G + 1))
                if G == 2: A.push(POIS)
                if G >= 1: A.push(it_xr(SL[5 + G], G - 1))
                return
            if G == 1: A.push(it_w2(WA[3], 3), "A3")
            if G == 1 and OPT["pois"] == 3: A.push(POIS)
            if G == 1 and OPT["x0"]: A.push(it_xr(SL[6], 0))
            if G == 2: pushc(0)
        P.hook(h)
        for kk in range(4):
            xf = vFR + 32 + 8 * ((4 * G + kk) % 3)
            z0 = "0" if (G == 0 and kk == 0) else None
            for i in range(4):
                wf = vFR + 4 * (cnt[0] % NF); cnt[0] += 1
                if i == 0: P.read(xf, f"ds_read_b128 {vr(xf,4)}, v{13+(kk&1)} offset:{G*16384+(kk>>1)*8192}")
                for half in (0, 1):
                    P.read(wf, f"ds_read_b64_tr_b16 {vr(wf+2*half,2)}, {vr(vTA[i + (4 if WA[G] >= 65536 else 0)])} offset:{(WA[G]&0xffff) + kk*8192 + half*4096}")
                P.mfma(vr(vZ + 4 * i, 4), vr(wf, 4), vr(xf, 4), z0, (wf, xf))
                if i == 0: P.read(xf + 4, f"ds_read_b128 {vr(xf+4,4)}, v{13+(kk&1)} offset:{G*16384+(kk>>1)*8192+2048}")
                P.mfma(vr(vZ + 16 + 4 * i, 4), vr(wf, 4), vr(xf + 4, 4), z0, (wf, xf + 4))
    P.run(OPT["look"])
    A.flush()
    A.per = OPT["per"]
    A("s_barrier")
    A.stamp(2)
    A("s_nop 7")
    gelu(vZ, 32, vFR)
    t = vFR
    for xt in (0, 1):
        z = vZ + 16 * xt
        A(f"v_pk_add_f32 {vr(t,2)}, {vr(z,2)}, {vr(z+2,2)}\nv_pk_mul_f32 {vr(t+2,2)}, {vr(z,2)}, {vr(z,2)}")
        for p in range(2, 16, 2):
            if p > 2: A(f"v_pk_add_f32 {vr(t,2)}, {vr(t,2)}, {vr(z+p,2)}")
            A(f"v_pk_fma_f32 {vr(t+2,2)}, {vr(z+p,2)}, {vr(z+p,2)}, {vr(t+2,2)}")
        A(f"v_add_f32 {vr(t+4+2*xt)}, {vr(t)}, {vr(t+1)}\nv_add_f32 {vr(t+5+2*xt)}, {vr(t+2)}, {vr(t+3)}")
    xreduce((P16, P32), [t + 4, t + 5, t + 6, t + 7], [t, t + 1, t + 2, t + 3])
    A(f"v_cmp_eq_u32 vcc, 1, {vQ}\ns_lshl_b32 {sT0}, {sR}, 1\ns_add_u32 {sT0}, {sT0}, {sSH}\nv_cndmask_b32 {vr(t+4)}, {vr(t+4)}, {vr(t+6)}, vcc\nv_cndmask_b32 {vr(t+5)}, {vr(t+5)}, {vr(t+7)}, vcc")
    A(f"v_mov_b32 {vr(t+6)}, s52\nv_mov_b32 {vr(t+7)}, s53\ns_lshl_b32 {sT0}, {sT0}, 13\ns_add_u32 {sT0}, {sT0}, {STAT}\nv_add_u32 v249, {sT0}, {vL16}")
    A(f"s_lshl_b32 {sT1}, {sCA}, 10\ns_lshl_b32 {sT2}, {sET}, 9\ns_add_u32 {sT1}, {sT1}, {sT2}\nv_add_u32 v250, 4096, v249")
    masked(-1, 0, lambda: A.vmem(f"buffer_store_dwordx4 {vr(t+4,4)}, v249, {sWS}, {sT1} offen sc1"))

def front_lead():
    PIT = 1056; L1, L2 = PR[2], PR[2] + 36864
    A(f"s_lshr_b32 s76, {sR}, 1\ns_lshl_b32 s76, s76, 5\ns_lshl_b32 s77, {sET}, 4\ns_add_u32 s76, s76, s77\ns_lshl_b32 s77, {sSH}, 2\ns_add_u32 s76, s76, s77\ns_mul_i32 s76, s76, 3584")
    A(f"s_and_b32 s77, {sR}, 1\ns_mul_i32 s77, s77, 896\ns_add_u32 s76, s76, s77\ns_mul_i32 s78, {sW}, {8*PIT}")
    for i in range(8):
        A(f"s_add_u32 m0, s78, {L1 + i*PIT}\ns_add_u32 s77, s76, {(8*(i>>2)+(i&3))*3584}")
        tok1 = A.vmem(f"buffer_load_dwordx4 {vL16}, {sWIN}, s77 offen lds")
    A(f"s_mul_i32 s76, {sR}, 37\ns_lshr_b32 s76, s76, 8\ns_mul_i32 s77, s76, 7\ns_sub_u32 s77, {sR}, s77\ns_mul_i32 s76, s76, 224")
    A(f"s_lshl_b32 s79, s77, 5\ns_cmp_ge_u32 s77, 4\ns_cselect_b32 s44, 16, 0\ns_sub_u32 s79, s79, s44\ns_cmp_eq_u32 s77, 3\ns_cselect_b32 s44, 112, 16\ns_mul_i32 s44, s44, {sSH}\ns_add_u32 s79, s79, s44")
    A(f"s_add_u32 s76, s76, s79\ns_lshl_b32 s77, {sET}, 3\ns_add_u32 s76, s76, s77\ns_lshl_b32 s44, s76, 10\ns_mov_b32 s45, s78")
    st = {}
    def wout_loads():
        for i in range(8):
            A(f"s_add_u32 m0, s45, {L2 + i*PIT}\ns_add_u32 s46, s44, {i*1024}")
            st["w"] = A.vmem(f"buffer_load_dwordx4 {vL16}, {sWOUT}, s46 offen lds")
    setup2(); tlb_touch(); consts()
    A(f"v_lshrrev_b32 v15, 2, {vLane}\nv_mul_u32_u24 v15, {PIT}, v15\nv_and_b32 v16, 3, v1\nv_lshl_add_u32 v15, v16, 3, v15\ns_mul_i32 {sT0}, {sW}, 224\ns_add_u32 {sT0}, {sT0}, {L1}\nv_add_u32 v16, {sT0}, v15\ns_lshl_b32 {sT0}, {sW}, 8\ns_add_u32 {sT0}, {sT0}, {L2}\nv_add_u32 v17, {sT0}, v15")
    A(f"s_mul_i32 {sT0}, {sR}, 28672\ns_add_u32 {sT0}, {sT0}, {sW7168}\ns_add_u32 {sT0}, {sT0}, {W1P}\ns_add_u32 {sT1}, {sT0}, 4096")
    A(f"s_mul_i32 {sT2}, {sW}, {2*114688}\ns_lshl_b32 {sT3}, {sR}, 12\ns_add_u32 {sT2}, {sT2}, {sT3}\ns_add_u32 {sT2}, {sT2}, {WOP}\ns_cmp_ge_u32 {sR}, 28\ns_cselect_b32 {sT2}, {WS_SIZE}, {sT2}\ns_add_u32 {sT3}, {sT2}, 114688")
    def half(rng, tok, flag):
        A.wait_vm(tok); A("s_barrier")
        tk = {}
        for n in rng:
            base, i = ("v16", n) if n < 7 else ("v17", n - 7)
            A.ds(f"ds_read_b64_tr_b16 {vr(112+4*n,2)}, {base} offset:{i*32}")
            tk[n] = A.ds(f"ds_read_b64_tr_b16 {vr(112+4*n+2,2)}, {base} offset:{i*32+16*PIT}")
        for n in rng:
            i = n if n < 7 else n - 7
            so = (sT0, sT1, sT2, sT3)[(0 if n < 7 else 2) + (i >> 2)]
            A.wait_lg(tk[n])
            t = A.vmem(f"buffer_store_dwordx4 {vr(112+4*n,4)}, {vL16}, {sWS}, {so} offen offset:{(i&3)*1024} sc1")
        return t
    t1 = half(range(7), tok1, FLAGP)
    wout_loads()
    A.wait_vm(t1); A("s_barrier")
    A(f"s_lshl_b32 {sT0}, {sR}, 7\ns_add_u32 s46, {sT0}, {FLAGP}\ns_add_u32 s47, {sT0}, {FLAGQ}")
    flag_store("s46", True)
    A.st("flagP")
    t2 = half(range(7, 15), st["w"], FLAGQ)
    pushc(0); A.flush()
    A.stamp(1)
    twiddles()
    A.wait_vm(t2); A("s_barrier")
    flag_store("s47", True)
    for G in range(OPT["x0"]): A.push(it_xr(SL[6 + G], G))
    if OPT["pois"] == 4: poison(False)
    if OPT["pois"] >= 3: A.push(POIS)
    A.flush()
    A(f"v_mov_b32 v249, {WS_SIZE}\nv_mov_b32 v250, {WS_SIZE}")

def front2():
    A.stamp(3)
    if OPT["pois"] == 1: poison()
    if OPT["ser"] == 1: A.raw("s_waitcnt vmcnt(0)\ns_barrier"); A.st("ser0")
    tokP = A.vmem(LDP[0])
    if OPT["ser"] == 1: A.raw("s_waitcnt vmcnt(0)\ns_barrier"); A.st("serP")
    for G in range(OPT["x0"], 3): A.push(it_xr(SL[6 + G], G))
    A.push(([] if OPT["tlb"] else IT_GATE) + it_xr(SL[9], 3), "X3"); A.flush()
    if OPT["ser"] == 1: A.raw("s_waitcnt vmcnt(0)\ns_barrier"); A.st("serX")
    poll(LDP, tagcmp([20]), tokP); A.st("got_P", 2)
    for ks in range(16): A.push(it_w1(ks), "W%d" % ks)
    if OPT["ser"] == 1: A.flush(); A.raw("s_waitcnt vmcnt(0)\ns_barrier"); A.st("serW")
    pushc(1)
    if OPT["ser"] == 1: A.flush(); A.raw("s_waitcnt vmcnt(0)\ns_barrier"); A.st("serC1")
    A.flush("W%d" % OPT["gat"])
    g = 128
    ld = [f"buffer_load_dwordx4 {vr(g+4*k,4)}, v{249 + (k>>2)}, {sWS}, 0 offen offset:{1024*(k&3)} sc1" for k in range(7)]
    for l in ld: tokS = A.vmem(l)
    if OPT["ser"] == 1: A.raw("s_waitcnt vmcnt(0)\ns_barrier"); A.st("serG")
    A(f"v_and_b32 v11, 3, {vI16}\nv_bfe_u32 v12, {vI16}, 3, 1\nv_lshl_add_u32 v11, v12, 2, v11\nv_bfe_u32 v15, v11, 1, 2\nv_bfe_u32 v12, {vI16}, 2, 1\nv_lshl_add_u32 v11, v12, 4, v11")
    A(f"s_lshl_b32 {sT0}, {sW}, 12\ns_add_u32 {sT0}, {sT0}, {SCR}\nv_lshlrev_b32 v11, 7, v11\nv_lshl_add_u32 v11, v15, 5, v11\nv_lshl_add_u32 v11, {vQ}, 3, v11\nv_add_u32 v11, {sT0}, v11")
    A(f"v_lshrrev_b32 v12, 2, {vLane}\nv_lshlrev_b32 v12, 7, v12\nv_bfe_u32 v15, {vLane}, 3, 2\nv_lshl_add_u32 v12, v15, 5, v12\nv_and_b32 v15, 3, v1\nv_lshl_add_u32 v12, v15, 3, v12\nv_add_u32 v12, {sT0}, v12")
    for i in range(4): A(f"v_xor_b32 v{160+i}, {32*i}, v11\nv_xor_b32 v{164+i}, {32*i}, v12")
    A(f"s_lshl_b32 {sT1}, {sR}, 1\ns_add_u32 {sT1}, {sT1}, {sSH}\ns_mul_i32 {sT0}, {sT1}, 57344\ns_lshl_b32 {sT1}, {sCA}, 13\ns_add_u32 {sT0}, {sT0}, {sT1}")
    A(f"s_lshl_b32 {sT1}, {sET}, 12\ns_add_u32 {sT0}, {sT0}, {sT1}\ns_add_u32 {sKB}, {sT0}, {Z2N}\ns_cmp_eq_u32 {sCA}, 7\ns_cselect_b32 {sKB}, {WS_SIZE}, {sKB}")
    A.flush("W%d" % (OPT["gat"] + 5)); A.st("pre_stat", 2)
    poll(ld, tagcmp([g + 4 * k + 2 for k in range(7)]), tokS, True)
    A.stamp(4)
    for k in range(1, 7): A(f"v_pk_add_f32 {vr(g,2)}, {vr(g,2)}, {vr(g+4*k,2)}")
    xreduce((P32,), [g, g + 1], [g + 2, g + 3])
    A(f"v_mul_f32 {vr(g)}, {fbits(1/896)}, {vr(g)}\nv_mul_f32 {vr(g+1)}, {fbits(1/896)}, {vr(g+1)}")
    A(f"v_fma_f32 {vr(g+1)}, -{vr(g)}, {vr(g)}, {vr(g+1)}\nv_max_f32 {vr(g+1)}, 0, {vr(g+1)}\nv_add_f32 {vr(g+1)}, {fbits(1e-5)}, {vr(g+1)}\nv_rsq_f32 {vr(g+2)}, {vr(g+1)}\ns_nop 0")
    A(f"v_mul_f32_e64 {vr(g+3)}, -{vr(g)}, {vr(g+2)}\nv_mov_b32 {vr(g+4)}, {vr(g+2)}\nv_mov_b32 {vr(g+5)}, {vr(g+3)}\ns_nop 1\n{P16} {vr(g+2)}, {vr(g+4)}\n{P16} {vr(g+3)}, {vr(g+5)}\ns_nop 1")
    for xt in (0, 1):
        for i in range(4):
            b = vZ + 16 * xt + 4 * i; pp = vr(g + 2 + 2 * xt, 2)
            for p in (0, 2): A(f"v_pk_fma_f32 {vr(b+p,2)}, {vr(b+p,2)}, {pp}, {pp} op_sel:[0,0,1] op_sel_hi:[1,0,1]")
            A(f"v_cvt_pk_bf16_f32 {vr(b)}, {vr(b)}, {vr(b+1)}\nv_cvt_pk_bf16_f32 {vr(b+1)}, {vr(b+2)}, {vr(b+3)}")
            A.ds(f"ds_write_b64 v{160+i}, {vr(b,2)} offset:{xt*1024}")
    A.wait_all_lg()
    for i in range(4):
        A.ds(f"ds_read_b64_tr_b16 {vr(ZH+4*i,2)}, v{164+i}")
        A.ds(f"ds_read_b64_tr_b16 {vr(ZH+4*i+2,2)}, v{164+i} offset:2048")
    A.wait_all_lg()
    for i in range(4): A.tok["Z"] = A.vmem(f"buffer_store_dwordx4 {vr(ZH+4*i,4)}, {vL16}, {sWS}, {sKB} offen offset:{1024*i} sc1")
    A.stamp(5)

ring = [48, 52, 56, 60, 64, 20, 24, 28, 236, 248, 252, 228, 232] + [40, 44, 32, 240, 244]
NPRE = 13
tz = {}
def z_item(n):
    ks, ft = divmod(n, 7); pre = ""
    if ft == 0: pre = f"s_bfe_u32 {sZ}, {sROT}, {(4<<16)|(4*(ks>>1))}\ns_mul_i32 {sZ}, {sZ}, 114688" + (f"\ns_add_u32 {sZ}, {sZ}, 57344" if ks & 1 else "")
    if ft == 4: pre = f"s_add_u32 {sZ}, {sZ}, 4096"
    return (pre, f"buffer_load_dwordx4 {vr(ring[n%len(ring)],4)}, {vZA}, {sWS}, {sZ} offen offset:{(ft&3)*1024} sc1")
def mid_B():
    A(f"s_add_u32 {sT0}, {sW2048}, {SL[6]}\nv_add_u32 v12, {sT0}, {vXrd0}\nv_add_u32 v13, {sT0}, {vXrd1}")
    for x in (1, 2, 3): A(f"v_xor_b32 v{12+2*x}, {2048*x}, v12\nv_xor_b32 v{13+2*x}, {2048*x}, v13")
    P = Pipe()
    c_read(0)
    gbar("X3", False)
    pushc(2); pushc(3)
    def fz():
        A.wait_named("Z"); A("s_barrier")
        A(f"s_lshl_b32 {sT0}, {sCA}, 12\ns_lshl_b32 {sT1}, {sR}, 7\ns_add_u32 {sT0}, {sT0}, {sT1}\ns_add_u32 {sT0}, {sT0}, {FLAGZ}")
        flag_store(sT0, True); A.stamp(6)
    hk = {4: fz}
    for j, ks in enumerate(CK): hk[ks] = (lambda j=j: cnext(j + 1))
    for G in range(4): stageB(P, G, hk)
    P.run(OPT["look"])
    A.stamp(8)
    A("s_barrier")
    tk = flagZ_issue()
    for j in range(len(CK) + 1, 5): cnext(j)
    A(f"s_mul_i32 {sT0}, {sC}, 7168\ns_mul_i32 {sT1}, {sW}, {16*57344}\ns_add_u32 {sT0}, {sT0}, {sT1}\ns_add_u32 {sT0}, {sT0}, {Z2N}\nv_add_u32 {vZA}, {sT0}, {vL16}")
    def pz():
        poll(LDZ, tagcmp([246]), tk); A.stamp(9)
        for n in range(NPRE): A.push([z_item(n)], "z%d" % n)
    b_epilogue(pz)
    for n in range(NPRE): tz[n] = A.tok["z%d" % n]
    A.stamp(10)

FIX = []
def back():
    A.raw('Lph_p2:')
    A.stamp(11)
    ACC = 116; CF = 68; R = len(ring)
    def zload(n):
        pre, ins = z_item(n)
        if pre: A.raw(pre)
        tz[n] = A.vmem(ins)
    F = []
    for u in (1, 2, 3):
        F += [f"s_add_u32 {sT0}, {sW}, {u}\ns_and_b32 {sT0}, {sT0}, 3", f"s_mul_i32 {sT0}, {sT0}, 21504\ns_add_u32 {sT0}, {sT0}, {(u-1)*7168}", f"v_add_u32 v{15+u}, {sT0}, {vL16}"]
    F += [f"s_mul_i32 {sT0}, {sW}, 21504\nv_add_u32 v19, {sT0}, {vL16}"]
    F += [f"s_sub_u32 {sT0}, 32, {sR}\ns_min_u32 {sT0}, {sT0}, {sR}", f"s_and_b32 {sT0}, {sT0}, 15\ns_mul_i32 {sT0}, {sT0}, 139264", f"s_add_u32 {sT0}, {sT0}, {F2}\ns_mul_i32 {sT1}, {sW}, 8704",
          f"s_add_u32 {sT0}, {sT0}, {sT1}\ns_lshl_b32 {sT1}, {sC}, 6", f"s_cmp_ge_u32 {sC}, 4\ns_cselect_b32 s21, 0x300, 0\ns_cselect_b32 {sT2}, 48, 0", f"s_add_u32 {sT2}, {sT2}, {sT1}\nv_add_u32 v12, {sT2}, {vI16}",
          "v_sub_u32 v13, 512, v12", "v_min_u32 v12, v12, v13", f"s_mov_b32 {sT2}, {8*4352}\nv_lshlrev_b32 v12, 4, v12", f"v_mad_u32_u24 v12, {vQ}, {sT2}, v12", f"v_add_u32 v12, {sT0}, v12"]
    F += [f"v_lshrrev_b32 v13, 3, {vLane}", "v_mul_u32_u24 v13, 9, v13", f"v_add_u32 v13, {sT1}, v13", "v_sub_u32 v114, 512, v13", "v_min_u32 v13, v13, v114",
          "v_bfe_u32 v13, v13, 5, 3", "v_and_b32 v114, 6, v1", "v_lshlrev_b32 v114, 2, v114", "v_and_or_b32 v114, v1, 1, v114", "v_lshl_add_u32 v13, v13, 5, v114", "v_lshlrev_b32 v13, 7, v13",
          f"s_lshl_b32 {sT0}, {sW}, 8\ns_add_u32 {sT0}, {sT0}, {FLAGF}", f"v_add_u32 v13, {sT0}, v13"]
    F += [f"s_mov_b32 {sSEL[0]}, 0x03020100\ns_mov_b32 {sSEL[1]}, 0x01000302", f"s_cmp_lt_u32 {sR}, 16\ns_cselect_b32 {sM0}, 0x80000000, 0", f"s_or_b32 {sM1}, {sM0}, 0x8000",
          f"s_cmp_eq_u32 {sR}, 0\ns_cselect_b32 {sSEL[0]}, 0x0c0c0100, {sSEL[0]}\ns_cselect_b32 {sSEL[1]}, 0x0c0c0302, {sSEL[1]}",
          f"s_cmp_eq_u32 {sR}, 16\ns_cselect_b32 {sSEL[0]}, 0x01000c0c, {sSEL[0]}\ns_cselect_b32 {sSEL[1]}, 0x03020c0c, {sSEL[1]}\ns_cselect_b32 {sM1}, 0x80000000, {sM1}",
          f"s_cmp_ge_u32 {sC}, 4\ns_cselect_b32 {sT3}, 0x80008000, 0\ns_xor_b32 {sM1}, {sM1}, {sT3}"]
    F += [f"s_mul_i32 {sT0}, {sC}, {OPT['prot']}\ns_add_u32 s47, {sW}, {sT0}\ns_and_b32 s47, s47, 3", f"s_mul_i32 {sKB}, {sR}, {4*28672}\ns_add_u32 {sKB}, {sKB}, {HB}", f"s_mul_i32 {sT0}, s47, 7168\ns_add_u32 {sKB}, {sKB}, {sT0}",
          f"s_mul_i32 s20, {sC}, 114688\ns_mul_i32 {sT0}, s47, 28672", f"s_add_u32 s20, s20, {sT0}\ns_add_u32 s20, s20, {WOP}"]
    for u in range(4):
        F += [f"s_add_u32 {sT0}, {sW}, {u}\ns_and_b32 {sT0}, {sT0}, 3", f"s_mul_i32 {sT0}, {sT0}, 28672\ns_add_u32 s{24+u}, {sT0}, {sKB}"]
    F += [f"s_lshl_b32 {sT0}, {sW}, 1\nv_lshlrev_b32 v11, 3, {vQ}", f"v_add_u32 v11, {sT0}, v11", "v_cvt_f32_u32 v11, v11"]
    gu = [vG, "v14", "v15", "v6"]
    F += [f"v_mul_f32 {vOMG}, {fbits(1.4426950408889634)}, {vG}", f"v_exp_f32 {vOMG}, {vOMG}", f"v_add_f32 {vOMG}, 1.0, {vOMG}", f"v_rcp_f32 {vOMG}, {vOMG}"]
    for g_ in gu: F += [f"v_mul_f32 {g_}, {fbits(-1.4426950408889634)}, {g_}", f"v_exp_f32 {g_}, {g_}", f"v_add_f32 {g_}, 1.0, {g_}", f"v_rcp_f32 {g_}, {g_}"]
    for u in range(4):
        F += [f"s_sub_i32 {sT0}, {sCU[u]}, {sCU[0]}\ns_ashr_i32 {sT0}, {sT0}, 12", f"v_add_u32 v4, {sT0}, {vTrow}", "v_cvt_f32_u32 v4, v4", f"v_mul_f32 v4, {fbits(1/2048)}, v4", "v_mul_f32 v5, v4, v11"]
        for k in (0, 1):
            for g2 in (0, 1):
                d = CF + 8 * u + 4 * k + 2 * g2
                F += [f"v_fmamk_f32 v114, v4, {fbits(float(k+32*g2))}, v5"] + (["v_fract_f32 v114, v114"] if OPT["fract"] else []) + ["v_sin_f32 v115, -v114", "v_cos_f32 v114, v114",
                      f"v_mul_f32 v115, {gu[u]}, v115", f"v_mul_f32 v114, {gu[u]}, v114", "v_cvt_pk_bf16_f32 v114, v114, v115",
                      f"v_perm_b32 {vr(d)}, v114, v114, {sSEL[0]}", f"v_perm_b32 {vr(d+1)}, v114, v114, {sSEL[1]}",
                      f"v_xor_b32 {vr(d)}, {sM0}, {vr(d)}", f"v_xor_b32 {vr(d+1)}, {sM1}, {vr(d+1)}"]
    F += [f"v_lshlrev_b32 v6, 10, {vTrow}", f"v_bfe_u32 v114, {vLane}, 4, 1", "v_lshl_add_u32 v6, v114, 5, v6", f"v_lshrrev_b32 v114, 5, {vLane}", "v_lshl_add_u32 v6, v114, 4, v6",
          f"v_lshlrev_b32 v14, 3, {vLane}", "v_and_b32 v15, 56, v14", "v_lshlrev_b32 v15, 4, v15"]
    F += [f"s_mul_i32 s46, s47, 896\ns_add_u32 s46, s46, {FLAGQ}", "v_min_u32 v115, 768, v15"]
    F += [f"s_lshl_b32 {sT0}, s47, 13\ns_lshl_b32 {sT1}, {sR}, 7", f"s_add_u32 {sT0}, {sT0}, {sT1}\ns_add_u32 {sT0}, {sT0}, {FLAGF}", f"s_sub_u32 {sT0}, {sT0}, s46\nv_and_b32 v114, 1, v1", f"v_lshl_add_u32 v114, v114, 12, {sT0}",
          "v_cmp_lt_u32 vcc, 31, v1\ns_nop 1\nv_cndmask_b32 v115, v115, v114, vcc"]
    F += ["v_bfe_u32 v15, v1, 1, 2", "v_mul_u32_u24 v15, 28672, v15", "v_and_b32 v114, 1, v1", "v_lshl_add_u32 v15, v114, 9, v15"]
    nsetup = len(F)
    F = deque(F)
    def red_write(ft):
        for u in (1, 2, 3): A.ds(f"ds_write_b128 v{15+u}, {vr(ACC+(ft*4+u)*4,4)} offset:{ft*1024}")
    ldF = [f"buffer_load_dwordx2 v[2:3], v13, {sWS}, 0 offen sc1", f"buffer_load_dwordx2 v[4:5], v115, {sWS}, s46 offen sc1"]
    A.per = 56
    NPF = OPT["npf"]
    for j in range(max(5, len(CK) + 1), 8): c_read(j)
    nxt = NPRE
    for n in range(112):
        ks, ft = divmod(n, 7)
        if n == 4: A.wait_all_lg()
        if n == 40: A("s_barrier")
        if n == NPF + R + 1: poll(ldF, tagcmp([2, 4]), tokPF)
        A.wait_vm(tz[n])
        if OPT["p2st"] and n in (0, 14, 28, 42, 56, 70, 84, 93, 105): A.stamp(1 + (0, 14, 28, 42, 56, 70, 84, 93, 105).index(n))
        for u in range(4):
            mfma(vr(ACC + (ft * 4 + u) * 4, 4), vr(ring[n % R], 4), ar((ks * 4 + u) * 4, 4), "0" if ks == 0 else None)
            if n >= 4 and F: A.raw(F.popleft())
            if u == 1 and nxt < n + R and nxt < 112: zload(nxt); nxt += 1
        if nxt <= n + R and nxt < 112: zload(nxt); nxt += 1
        if n == NPF:
            assert n * 4 - 16 > nsetup
            for l in ldF: tokPF = A.vmem(l)
        if n + R == 112:
            A.push([(f"s_xor_b32 {sBG}, s21, {et*256}" + (f"\ns_add_u32 {sBG}, {sBG}, 4352" if k else ""), f"buffer_load_dwordx4 {ar(112+(k*4+et)*4,4)}, v12, {sWS}, {sBG} offen sc1") for k in (0, 1) for et in range(4)], "FL")
            A.push([(f"s_add_u32 {sBG}, s20, {(m>>2)*4096}" if m % 4 == 0 else "", f"buffer_load_dwordx4 {ar(4*m,4)}, {vL16}, {sWS}, {sBG} offen offset:{(m&3)*1024} sc1") for m in range(28)], "WO")
        if ks == 15 and ft >= 2: red_write(ft - 2)
    assert not F
    A("s_nop 3"); red_write(5); A("s_nop 1"); red_write(6)
    A.stamp(12)
    A.raw('Lph_tail:')
    hp = 40
    A(f"v_mov_b32 v37, {vB}")
    Z = 228
    for k in range(14):
        A(f"v_lshlrev_b32 {vr(Z+2*k)}, 16, {vr(Z1P+k)}\nv_and_b32 {vr(Z+2*k+1)}, 0xffff0000, {vr(Z1P+k)}\nv_pk_mul_f32 {vr(Z+2*k,2)}, {vr(Z+2*k,2)}, v[36:37] op_sel_hi:[1,0]")
    A.wait_all_lg(); A("s_barrier")
    A.lock += 1
    tk = {}
    def rr(ft):
        if ft < 7:
            for u in (1, 2, 3): tk[ft] = A.ds(f"ds_read_b128 {vr(ACC+(ft*4+u)*4,4)}, v19 offset:{(u-1)*7168+ft*1024}")
    for ft in range(4): rr(ft)
    for ft in range(7):
        b = ACC + ft * 16
        for p in (0, 2): A(f"v_pk_add_f32 {vr(b+p,2)}, {vr(b+p,2)}, v[36:37] op_sel:[0,1] op_sel_hi:[1,1]")
        A.wait_lg(tk[ft]); rr(ft + 4)
        for p in (0, 2): A(f"v_pk_add_f32 {vr(b+p,2)}, {vr(b+p,2)}, {vr(b+4+p,2)}\nv_pk_add_f32 {vr(b+8+p,2)}, {vr(b+8+p,2)}, {vr(b+12+p,2)}")
        for p in (0, 2): A(f"v_pk_add_f32 {vr(b+p,2)}, {vr(b+p,2)}, {vr(b+8+p,2)}")
        for p in (0, 2): A(f"v_pk_mul_f32 {vr(b+p,2)}, {vr(b+p,2)}, {vr(Z+4*ft+p,2)}")
        A(f"v_cvt_pk_bf16_f32 {vr(hp+2*ft)}, {vr(b)}, {vr(b+1)}\nv_cvt_pk_bf16_f32 {vr(hp+1+2*ft)}, {vr(b+2)}, {vr(b+3)}")
        if ft % 2 == 0: A(f"v_min_u32 {vr(hp+2*ft)}, -2, {vr(hp+2*ft)}")
        if ft in (1, 3, 5): A.vmem(f"buffer_store_dwordx4 {vr(hp+2*ft-2,4)}, {vL16}, {sWS}, s80 offen offset:{1024*(ft>>1)} sc1")
    tokH = A.vmem(f"buffer_store_dwordx2 {vr(hp+12,2)}, v14, {sWS}, s81 offen offset:3072 sc1")
    A.lock -= 1
    A.stamp(13)
    OA = 116
    RED2 = 98304
    for u in (1, 2, 3):
        A(f"s_add_u32 {sT0}, {sW}, {u}\ns_and_b32 {sT0}, {sT0}, 3\ns_mul_i32 {sT0}, {sT0}, 12288\ns_add_u32 {sT0}, {sT0}, {RED2+(u-1)*4096}\nv_add_u32 v{15+u}, {sT0}, {vL16}")
    A(f"s_mul_i32 {sT0}, {sW}, 12288\ns_add_u32 {sT0}, {sT0}, {RED2}\nv_add_u32 v19, {sT0}, {vL16}\ns_lshl_b32 {sT1}, {sC}, 7")
    for u in range(4): A(f"s_add_u32 {sCU[u]}, s{24+u}, 4096")
    A.wait_named("FL")
    for k in (0, 1):
        for u in range(4):
            for et in range(4): mfma(vr(OA + 16 * u + 4 * et, 4), ar(112 + (k * 4 + et) * 4, 4), vr(CF + 8 * u + 4 * k, 4), "0" if k == 0 else None)
    A.flush()
    A.stamp(14)
    ldH = [f"buffer_load_dword v2, v15, {sWS}, {sKB} offen offset:3072 sc1"]
    hr = list(range(180, 256, 4)) + [20, 24, 28, 32, 56, 60, 64, 68, 72]
    th = {}
    order = [(u, ls) for u in (1, 2, 3, 0) for ls in range(7)]
    def htext(n):
        u, ls = order[n]; h = hr[n]
        sb = f"s{24+u}" if ls < 4 else sCU[u]; io = (ls & 3) * 1024
        if ls == 3: return [f"buffer_load_dwordx2 {vr(h+2*k,2)}, v14, {sWS}, {sb} offen offset:{io+512*k} sc1" for k in (0, 1)]
        return [f"buffer_load_dwordx4 {vr(h,4)}, {vL16}, {sWS}, {sb} offen offset:{io} sc1"]
    def hload(n):
        if n < 28:
            for t_ in htext(n): th[n] = A.vmem(t_)
    HL = OPT["hl"]
    tokPH = A.vmem(ldH[0])
    if OPT["spec"]:
        for n in range(HL): hload(n)
    A.stamp(15)
    poll(ldH, "v_cmp_eq_u32 vcc, -1, v2", tokPH, sleep=OPT["hsleep"], redo=[t_ for n in range(HL) for t_ in htext(n)] if OPT["spec"] else None)
    A.stamp(16)
    if not OPT["spec"]:
        for n in range(HL): hload(n)
    def chk(n): return f"v_max_u32 v2, {vr(hr[n])}, {vr(hr[n]+2)}\nv_cmp_eq_u32 vcc, -1, v2" if order[n][1] == 3 else f"v_cmp_eq_u32 vcc, -1, {vr(hr[n])}"
    def br(n):
        A.raw(f"s_cbranch_vccnz Lfix{n}\nLbk{n}:")
        FIX.append(f"Lfix{n}:\ns_mov_b32 {sSPIN}, 0x40000\nLfl{n}:\n" + "\n".join(htext(n)) + f"\ns_waitcnt vmcnt(0)\n{chk(n)}\ns_cbranch_vccz Lbk{n}\ns_sub_u32 {sSPIN}, {sSPIN}, 1\ns_cmp_lg_u32 {sSPIN}, 0\ns_cbranch_scc1 Lfl{n}\ns_branch Lbk{n}")
    A.wait_vm(th[0]); A.raw(chk(0)); br(0)
    for n in range(28):
        u, ls = order[n]
        if n in (0, 7, 14, 21, 26): A.st("h%d" % n, 2)
        for et in range(4):
            mfma(vr(OA + 16 * u + 4 * et, 4), ar((ls * 4 + et) * 4, 4), vr(hr[n], 4))
            if et == 1 and n < 27: A.wait_vm(th[n + 1]); A.raw(chk(n + 1))
        if n < 27: br(n + 1)
        hload(n + HL)
        if n in (8, 15, 22):
            up = order[n - 2][0]
            for et in range(4): A.ds(f"ds_write_b128 v{15+up}, {vr(OA+16*up+4*et,4)} offset:{et*1024}")
        if n == 25:
            A.wait_all_lg(); A.st("hb", 2); A("s_barrier")
            for k in range(12): A.ds(f"ds_read_b128 {vr(OA+16+4*k,4)}, v19 offset:{k*1024}")
    A.wait_all_lg()
    for p in range(0, 16, 2): A(f"v_pk_add_f32 {vr(OA+16+p,2)}, {vr(OA+16+p,2)}, {vr(OA+32+p,2)}")
    for p in range(0, 16, 2): A(f"v_pk_add_f32 {vr(OA+p,2)}, {vr(OA+p,2)}, {vr(OA+48+p,2)}")
    for p in range(0, 16, 2): A(f"v_pk_add_f32 {vr(OA+p,2)}, {vr(OA+p,2)}, {vr(OA+16+p,2)}")
    for et in range(4):
        A(f"v_cvt_pk_bf16_f32 v{40+2*et}, {vr(OA+4*et)}, {vr(OA+4*et+1)}\nv_cvt_pk_bf16_f32 v{41+2*et}, {vr(OA+4*et+2)}, {vr(OA+4*et+3)}")
    A("s_nop 1")
    for pr in (0, 1): A(f"{P16} v{40+4*pr}, v{42+4*pr}\n{P16} v{41+4*pr}, v{43+4*pr}")
    A("s_nop 1")
    for pr in (0, 1): A.vmem(f"buffer_store_dwordx4 {vr(40+4*pr,4)}, v6, {sOUT}, {sT1} offen offset:{64*pr} {('', 'sc1', 'nt', 'sc0 sc1')[OPT['osc']]}")
    A.stamp(17)
    lb = A.lab("Lnobump")
    A(f"s_or_b32 {sT0}, s2, {sW}\ns_cmp_lg_u32 {sT0}, 0\ns_cbranch_scc1 {lb}")
    A(f"v_mov_b32 v11, {EPOCH}\ns_mov_b64 exec, 1\nbuffer_store_dwordx2 v[38:39], v11, {sWS}, 0 offen sc1\ns_mov_b64 exec, -1\n{lb}:")
    if OPT["diag"] >= 0:
        A(f"s_cmp_lg_u32 s2, 9\ns_cbranch_scc1 Lend\ns_sub_u32 s96, s96, s98\ns_lshl_b32 s96, s96, 3\ns_add_u32 s96, s96, 5000\nLdiag:\ns_memrealtime s[100:101]\ns_waitcnt lgkmcnt(0)\ns_sub_u32 s100, s100, s98\ns_cmp_lt_u32 s100, s96\ns_cbranch_scc1 Ldiag")
    if OPT["prof"]:
        A("s_memrealtime s[100:101]\ns_waitcnt lgkmcnt(0)\nv_writelane_b32 v0, s100, 63")
        A(f"s_lshl_b32 {sT0}, s2, 2\ns_add_u32 {sT0}, {sT0}, {sW}\ns_lshl_b32 {sT0}, {sT0}, 8\ns_add_u32 {sT0}, {sT0}, {TS}\nv_lshlrev_b32 v11, 2, v1\nbuffer_store_dword v0, v11, {sWS}, {sT0} offen")

if OPT['ce']: OPT['x0'] = 3
prologue()
A(f"s_cmp_eq_u32 {sCA}, 7\ns_cbranch_scc1 Llead")
st = (list(A.vm), list(A.lg))
front_main()
assert not A.bg
A.raw("Ljoin:")
front2()
mid_B()
back()
A("s_branch Lend")
A.raw("Llead:")
A.vm, A.lg = st; A.tok = {}; A.per = OPT["per"]
front_lead()
assert not A.bg
A("s_branch Ljoin")
for f_ in FIX: A.raw(f_)
A("Lend:\ns_endpgm")

hdr = open("cdna_kernels/%s.s.ref" % NAME).read().split("; Override launch")[0]
if OPT["prof"]: hdr += "; STAMPS " + " ".join(A.names) + "\n"
out = hdr + "; @launch grid=(256,1,1) block=(256,1,1) lds=%d\n" % LDS_SIZE
out += '.amdgcn_target "amdgcn-amd-amdhsa--gfx950"\n.text\n.globl %s_kernel\n.p2align 8\n.type %s_kernel,@function\n%s_kernel:\n' % (NAME, NAME, NAME)
def addnt(l):
    t = l.strip()
    if OPT["nt"] and (t.startswith("buffer_load") or t.startswith("global_load")) and sWS not in t:
        return l[:-4] + " nt lds" if t.endswith(" lds") else l + " nt"
    return l
if OPT["wx"] == 1: A.L = [l.replace(" sc1", "") if ("v25," in l or "v26," in l) and "a[" in l else l for l in A.L]
if OPT["wx"] == 2: A.L = [l for l in A.L if not ("v26," in l and "a[" in l)]
if OPT["wx"] == 3: A.L = [l.replace("v26, s[40:43]", "v25, s[28:31]").replace("s_mul_i32 s3, s94,", "s_add_u32 s3, s3, 1024 ;") for l in A.L]
if OPT["ph"]:
    i1, i2 = A.L.index("Lph_p2:"), A.L.index("Lph_tail:")
    kinds = {1: ("v_mfma",), 2: ("v_mfma",), 3: ("v_mfma", "ds_read"), 4: ("v_pk_", "v_exp", "v_rcp", "v_cos", "v_sin", "v_fmamk", "v_cvt_pk")}[OPT["ph"]]
    A.L = [l for i, l in enumerate(A.L) if not (l.strip().startswith(kinds) and ((i1 < i < i2) if OPT["ph"] == 1 else (i < i1)))]
ab = OPT["abl"]
def ablate(i, l):
    t = l.strip()
    oob = lambda reg: l.replace(reg, "v19x")
    if not t.startswith("buffer_"): return True
    if ab == 1: return not ("v25," in t or "v26," in t)
    if ab == 2: return not ("v29," in t or "v30," in t)
    if ab == 3: return not ("v35," in t)
    if ab == 4: return not (t.startswith("buffer_load_dwordx4 a[") and ", v7," in t)
    if ab == 5: return not (", v37," in t and "offset:1024" in t)
    if ab == 6: return not (t.startswith("buffer_load_dwordx4 a[") and ", v12," in t)
    if ab == 7: return not ("v28," in t or any("v%d," % k in t for k in (113, 115, 117, 119)))
    if ab == 8: return not ("v[236:239]" in t and "s80" in t)
    if ab == 9: return not (t.startswith("buffer_store_dwordx4 v[22") or t.startswith("buffer_store_dwordx4 v[232"))
    return True
if ab: A.L = [l for i, l in enumerate(A.L) if ablate(i, l)]
def keep(l):
    t = l.strip()
    if OPT["strip"] == 1: return not t.startswith(("v_mfma", "ds_", "v_pk_", "v_exp", "v_rcp", "v_cos", "v_sin", "v_fract", "v_fmamk", "v_cvt_pk", "v_perm_b32"))
    if OPT["strip"] == -1: return not (t.startswith("buffer_store_dwordx2 v[1") and ", v14, " in t)
    if OPT["strip"] == -2: return not t.startswith("s_cbranch_vccnz Lfix")
    if OPT["strip"] == -3: return not (t.startswith("s_cbranch_vccnz Lfix") or t.startswith("v_mfma"))
    if OPT["strip"] == 3 and t.startswith("ds_read"): return False
    if OPT["strip"] == 4 and t.startswith("s_waitcnt lgkmcnt") and not t.endswith("(0)"): return False
    if OPT["strip"] == 5 and t.startswith("v_mfma"): return False
    if OPT["strip"] == 6 and t.startswith("s_barrier"): return False
    if OPT["strip"] >= 2: return not (t.endswith(" lds") or (t.startswith("buffer_load_dwordx4") and (", v37, " in t or ", v7, " in t or " a[" in t)))
    return True
out += "\n".join(addnt(l) for l in A.L if keep(l)) + "\n"
out += """.section .rodata,"a"
.p2align 6
.amdhsa_kernel %s_kernel
  .amdhsa_next_free_vgpr 512
  .amdhsa_next_free_sgpr 102
  .amdhsa_accum_offset 256
  .amdhsa_group_segment_fixed_size 0
  .amdhsa_kernarg_size 112
  .amdhsa_user_sgpr_count 2
  .amdhsa_user_sgpr_kernarg_segment_ptr 1
  .amdhsa_system_sgpr_workgroup_id_x 1
.end_amdhsa_kernel
""" % NAME
open(sys.argv[1], "w").write(out)
```

```python
import sys, struct
from collections import deque
NAME = "gated_mix__spectral_fnet__mixer_gmlp__prompt"
OPT = dict(diag=-1, hl=10, p2st=0, strip=0, ahead=0, sleep=4, npf=76, nt=0, rota=3, rotc=1, prof=0, xmap=1, per=56, pera=40, look=12, gat=6, prot=0, tlb=1, ce=0, hw=0, spec=0, sn=6, no=2, ph=0, fl=1, ser=0, warm=1, wb=2, perg=90, ssleep=16, wx=0, kz=11, kc=13, per2=100, osc=2, ofl=1, npx=1, algn=1, pois=3, pp=8, abl=0, x0=1, hsleep=1, xrot=0, fa1=1, ntc=0, ck=0, rt=0, fract=0)
for a in sys.argv[2:]:
    k, v = a.split("="); OPT[k] = int(v)

def fbits(x): return "0x%08x" % struct.unpack("<I", struct.pack("<f", x))[0]
def cost(ln):
    op = ln.split()[0]
    if op.startswith("v_mfma"): return 16
    if op in ("v_exp_f32", "v_rcp_f32", "v_rsq_f32", "v_sin_f32", "v_cos_f32"): return 8
    if op.startswith("ds_read"): return 0
    if op == "s_nop": return 4 * (int(ln.split()[1]) + 1)
    return 4

class Asm:
    def __init__(s):
        s.L = []; s.vm = []; s.lg = []; s.n = 0; s.nlab = 0; s.nst = 0
        s.names = []; s.bg = deque(); s.acc = 0; s.lock = 0; s.tok = {}; s.per = OPT["per"]
    def raw(s, t):
        for ln in t.split("\n"):
            ln = ln.strip()
            if not ln: continue
            if ln.endswith(":"): s.L.append(ln)
            else: s.L.append("    " + ln); s.acc += cost(ln)
    def __call__(s, t):
        s.raw(t); s.tick()
    def tick(s):
        if s.lock or not s.bg:
            if not s.bg: s.acc = min(s.acc, s.per)
            return
        if s.acc >= s.per: s.pop()
    def pop(s):
        pre, ins, name = s.bg.popleft()
        s.lock += 1
        if pre: s.raw(pre)
        if isinstance(ins, int): t = None; s.vm.append(("c", ins))
        else: t = s.vmem(ins)
        s.lock -= 1
        if name: s.tok[name] = t
        s.acc = 0
    def push(s, items, name=None):
        for i, (pre, ins) in enumerate(items): s.bg.append((pre, ins, name if i == len(items) - 1 else None))
    def front(s, items, name):
        while s.bg and "m0" not in s.bg[0][0]: s.pop()
        new = [(p, i, name if k == len(items) - 1 else None) for k, (p, i) in enumerate(items)]
        s.bg.extendleft(reversed(new))
    def flush(s, name=None):
        while s.bg and (name is None or name not in s.tok): s.pop()
    def wait_named(s, name):
        s.flush(name)
        t = s.tok[name]
        while s.bg and t in s.vm and len(s.vm) - 1 - s.vm.index(t) < OPT["ahead"]: s.pop()
        if t in s.vm and name[0] == "W" and name not in ("W11", "W15"): s.wait_vm(t)
        if t in s.vm:
            s.st("pre_" + name, 2); s.wait_vm(t); s.st("got_" + name, 2)
    def c(s, t): s.L.append("    ; " + t)
    def lab(s, p="L"):
        s.nlab += 1; return "%s%d" % (p, s.nlab)
    def vmem(s, t):
        if len(s.vm) >= 62: s.wait_vm(s.vm[len(s.vm) - 62])
        s.raw(t); s.n += 1; s.vm.append(s.n); return s.n
    def ds(s, t):
        if len(s.lg) >= 15: s.wait_lg(s.lg[len(s.lg) - 15])
        s.raw(t); s.n += 1; s.lg.append(s.n); n = s.n; s.tick(); return n
    def wait_vm(s, tok):
        if tok not in s.vm: return
        i = s.vm.index(tok); s.vm = s.vm[i + 1:]
        sites = [x[1] for x in s.vm if isinstance(x, tuple)]; n = len(s.vm) - len(sites)
        if sites:
            l = s.lab("Lw")
            s.raw("s_waitcnt vmcnt(%d)" % (n + 8))
            for x in sites: s.raw("s_cmp_eq_u32 s67, %d\ns_cbranch_scc1 %s" % (x, l))
            s.raw("s_waitcnt vmcnt(%d)\n%s:" % (n, l))
        else: s.raw("s_waitcnt vmcnt(%d)" % n)
    def wait_lg(s, tok):
        if tok not in s.lg: return
        i = s.lg.index(tok); s.raw("s_waitcnt lgkmcnt(%d)" % (len(s.lg) - 1 - i)); s.lg = s.lg[i + 1:]
    def wait_all_lg(s):
        if s.lg: s.raw("s_waitcnt lgkmcnt(0)")
        s.lg = []
    def stamp(s, k):
        if OPT["diag"] == k: s.raw("s_memrealtime s[96:97]\ns_waitcnt lgkmcnt(0)"); s.lg = []
        s.st(str(k))
    def st(s, name, lvl=1):
        if OPT["prof"] < lvl: return
        if name not in s.names: s.names.append(name)
        k = s.names.index(name); assert k < 61
        acc = s.acc
        s.raw(("s_memrealtime" if OPT["rt"] else "s_memtime") + " s[78:79]\ns_waitcnt lgkmcnt(0)\nv_writelane_b32 v0, s78, %d" % (k + 1)); s.lg = []; s.acc = acc
A = Asm()
def vr(b, n=1): return "v%d" % b if n == 1 else "v[%d:%d]" % (b, b + n - 1)
def ar(b, n=1): return "a%d" % b if n == 1 else "a[%d:%d]" % (b, b + n - 1)
def mfma(d, a, b, c=None): A("v_mfma_f32_16x16x32_bf16 %s, %s, %s, %s" % (d, a, b, d if c is None else c))

EPOCH, FLAGZ, FLAGF, FLAGP, FLAGQ, FLAGH, STAT = 0x0, 0x90000, 0x98000, 0x1000, 0x2000, 0xA0000, 0x10000
Z2N, HB, F2, W1P, WOP, TS, WS_SIZE = 0x100000, 0x480000, 0x800000, 0xA20000, 0xB00000, 0xC00000, 0x1000000
SL = [16384 * i for i in range(10)]
PR = [32768 * i for i in range(5)]
SCR = SL[0]; Z1B = SL[6]; GX = SL[7]
LDS_SIZE = 163840
sX, sWIN, sWSP, sWOUT = ["s[%d:%d]" % (b, b + 3) for b in range(4, 20, 4)]
sAX = ["s20", "s21", "s22", "s23"]; sAW = ["s24", "s25", "s26", "s27"]
sWS, sOUT, sBSP, sGW, sTMP = ["s[%d:%d]" % (b, b + 3) for b in range(28, 48, 4)]
sROT, sBG2, sET, sSH = "s48", "s49", "s50", "s51"
sR, sC, sW = "s54", "s55", "s56"
sW2048, sW7168, sW8192 = "s57", "s58", "s59"
sCU = ["s60", "s61", "s62", "s63"]
sSEL = ["s64", "s65"]; sZ = "s66"; sSG = "s67"; sM0, sM1 = "s68", "s69"
sT0, sT1, sT2, sT3, sSPIN, sKB = "s70", "s71", "s72", "s73", "s74", "s75"
sGC = "s[76:77]"; sBG = "s3"; sCA = "s95"
vLane, vI16, vQ, vXrd0, vXrd1, vWrd, vL16, vTrow, vB, vG = ["v%d" % i for i in range(1, 11)]
vW1 = [25, 26]; vXA = [27, 28]; vXR = [29, 30]; vCb = [32, 33]; vCo = [34, 35]; vOMG = "v36"; vZA = "v37"
vR32 = 40; vWD = 48; vZ = 80; vAB = 112; vGA = 176; vFR = 180
vWA = list(range(112, 120)); vTA = list(range(120, 128))
P16, P32 = "v_permlane16_swap_b32", "v_permlane32_swap_b32"

def masked(mask_lo, mask_hi, fn):
    A.lock += 1
    A.raw(f"s_mov_b32 exec_lo, {mask_lo}\ns_mov_b32 exec_hi, {mask_hi}")
    r = fn()
    A.raw("s_mov_b64 exec, -1")
    A.lock -= 1
    return r
def flag_store(soff, w0=False):
    A("v_lshlrev_b32 v11, 3, v1")
    if w0: A(f"s_cmp_lg_u32 {sW}, 0\ns_cselect_b32 {soff}, {WS_SIZE}, {soff}")
    return masked(0xffff if OPT['fl'] else 1, 0, lambda: A.vmem(f"buffer_store_dwordx2 v[38:39], v11, {sWS}, {soff} offen sc1"))

def poll(loads, cmps, tok=None, skip7=False, sleep=None, redo=None):
    l, d, e = A.lab("Lspin"), A.lab("Ldone"), A.lab("Lredo")
    if tok is None:
        for t in loads: tok = A.vmem(t)
    A.lock += 1
    A.wait_vm(tok)
    if skip7: A.raw(f"s_cmp_eq_u32 {sCA}, 7\ns_cbranch_scc1 {d}")
    A.raw(cmps); A.raw(f"s_cbranch_vccz {d}\ns_mov_b32 {sSPIN}, 0x40000\n{l}:\ns_sleep {OPT['sleep'] if sleep is None else sleep}")
    for t in loads: A.raw(t)
    A.raw("s_waitcnt vmcnt(0)"); A.raw(cmps)
    A.raw(f"s_cbranch_vccz {e}\ns_sub_u32 {sSPIN}, {sSPIN}, 1\ns_cmp_lg_u32 {sSPIN}, 0\ns_cbranch_scc1 {l}\n{e}:")
    for t in redo or []: A.raw(t)
    A.raw(f"{d}:")
    A.lock -= 1
def tagcmp(regs):
    cm = f"v_cmp_ne_u64 vcc, s[52:53], {vr(regs[0],2)}"
    for k in regs[1:]: cm += f"\nv_cmp_ne_u64 s[78:79], s[52:53], {vr(k,2)}\ns_or_b64 vcc, vcc, s[78:79]"
    return cm

def gelu(base, n, t):
    for p0 in range(0, n, 8):
        ps = (p0, p0 + 2, p0 + 4, p0 + 6)
        for k, p in enumerate(ps): A(f"v_pk_mul_f32 {vr(t+2*k,2)}, {vr(base+p,2)}, {vr(base+p,2)}")
        for k, p in enumerate(ps): A(f"v_pk_fma_f32 {vr(t+2*k,2)}, {vr(t+2*k,2)}, {sGC}, {sGC} op_sel:[0,0,1] op_sel_hi:[1,0,1]")
        for k, p in enumerate(ps): A(f"v_pk_mul_f32 {vr(t+2*k,2)}, {vr(t+2*k,2)}, {vr(base+p,2)}")
        for k in range(8): A(f"v_exp_f32 {vr(t+k)}, {vr(t+k)}")
        for k, p in enumerate(ps): A(f"v_pk_add_f32 {vr(t+2*k,2)}, {vr(t+2*k,2)}, 1.0 op_sel_hi:[1,0]")
        for k in range(8): A(f"v_rcp_f32 {vr(t+k)}, {vr(t+k)}")
        for k, p in enumerate(ps): A(f"v_pk_mul_f32 {vr(base+p,2)}, {vr(base+p,2)}, {vr(t+2*k,2)}")

def xreduce(ops, regs, tmps):
    for op in ops:
        for r, t in zip(regs, tmps): A(f"v_mov_b32 {vr(t)}, {vr(r)}")
        A("s_nop 1")
        for r, t in zip(regs, tmps): A(f"{op} {vr(t)}, {vr(r)}")
        A("s_nop 1")
        for r, t in zip(regs, tmps): A(f"v_add_f32 {vr(r)}, {vr(r)}, {vr(t)}")

def gen_cos(dst, nd, freq, base, kfun):
    for i in range(0, nd, 2):
        ks = [kfun(2 * i + z) for z in range(4)]
        for z in range(4): A(f"v_fmamk_f32 v{16+z}, {freq}, {fbits(float(ks[z]))}, {base}")
        if OPT["fract"]:
            for z in range(4): A(f"v_fract_f32 v{16+z}, v{16+z}")
        for z in range(4): A(f"v_cos_f32 v{16+z}, v{16+z}")
        A(f"v_cvt_pk_bf16_f32 {vr(dst(i))}, v16, v17\nv_cvt_pk_bf16_f32 {vr(dst(i+1))}, v18, v19")

def it_xa(G):
    return [(f"s_add_u32 m0, {sW2048}, {SL[6+G] + sub*8192 - 128*sub}\ns_nop 0" if h == 0 else "",
             f"buffer_load_dwordx4 {vr(vXA[h])}, {sX}, {sAX[G]} offen offset:{1024*h+128*sub} lds") for sub in (0, 1) for h in (0, 1)]
def it_xr(dst, G):
    return [(f"s_add_u32 m0, {sW2048}, {dst + sub*8192 - 128*(2*G+sub)}\ns_nop 0" if h == 0 else "",
             f"buffer_load_dwordx4 {vr(vXR[h])}, {sX}, 0 offen offset:{1024*h+128*(2*G+sub)} lds") for sub in (0, 1) for h in (0, 1)]
def it_w1(ks):
    return [(f"s_mov_b32 {sBG}, {ks*57344}", f"buffer_load_dwordx4 {ar(128+ks*8,4)}, {vr(vW1[0])}, {sWS}, {sBG} offen sc1"),
            (f"s_mul_i32 {sBG}, s94, {ks}", f"buffer_load_dwordx4 {ar(128+ks*8+4,4)}, {vr(vW1[1])}, {sGW}, {sBG} offen sc1")]
def it_w2(dst, G):
    return [(f"s_add_u32 m0, {'s101' if i else 's100'}, {dst}\ns_nop 0" if i in (0, 4) else "",
             f"buffer_load_dwordx4 {vr(vWA[i])}, {sWIN}, {sAW[G]} offen offset:{1024*(i&3)} lds") for i in range(8)]
def it_c(j, dst):
    it = []
    for u in range(4):
        for h in (0, 1):
            pre = ""
            if u == 0 and h == 0:
                pre = f"s_bfe_u32 {sBG2}, {sROT}, {(4<<16)|(4*j)}\ns_lshl_b32 {sBG2}, {sBG2}, 7\nv_or_b32 {vr(vCo[0])}, {sBG2}, {vr(vCb[0])}\nv_or_b32 {vr(vCo[1])}, {sBG2}, {vr(vCb[1])}\n"
            if h == 0: pre += f"s_add_u32 m0, {sW8192}, {dst + u*2048}\ns_nop 0"
            it.append((pre, f"buffer_load_dwordx4 {vr(vCo[h])}, {sWSP}, {sCU[u]} offen offset:{1024*h}{' nt' if j < OPT['ntc'] else ''} lds"))
    return it
IT_GATE = [("", f"buffer_load_ushort {vB}, v246, {sBSP}, 0 offen")]

class Pipe:
    def __init__(s): s.mf = []; s.rd = []; s.hooks = {}; s.pres = {}
    def pre(s, fn): s.pres[len(s.mf)] = fn
    def read(s, quad, text): s.rd.append([quad, text, len(s.mf)])
    def hook(s, fn): s.hooks[len(s.rd)] = fn
    def mfma(s, d, a, b, c, uses): s.mf.append((d, a, b, c, uses))
    def run(s, D):
        free = []
        for quad, text, need in s.rd:
            free.append(max([j for j in range(need) if quad in s.mf[j][4]], default=-1))
        toks = []
        def emit():
            k = len(toks)
            if k in s.hooks: s.hooks[k]()
            toks.append(A.ds(s.rd[k][1]))
        def ready(i, d):
            k = len(toks)
            return k < len(s.rd) and s.rd[k][2] <= i + d and free[k] <= i
        while ready(-1, D): emit()
        for i, (d, a, b, c, uses) in enumerate(s.mf):
            while len(toks) < len(s.rd) and s.rd[len(toks)][2] <= i: emit()
            need = [k for k in range(len(toks)) if s.rd[k][2] <= i]
            if need: A.wait_lg(toks[need[-1]])
            if i in s.pres: s.pres[i]()
            mfma(d, a, b, c)
            if ready(i, D): emit()
            if ready(i, D - 3): emit()

def gbar(name, flush=True):
    A.wait_all_lg()
    if flush: A.flush()
    if name: A.wait_named(name)
    A("s_barrier")
    if name: A.st("bar_" + name, 2)

NF = 8
cnt = [0]
WA = [PR[0], PR[2], PR[0], PR[2]] if OPT['ce'] else [PR[0], PR[1], PR[2], PR[0]]
CS = [PR[1], PR[2], PR[0], PR[1], PR[2], PR[0], PR[1], PR[2]]
CK = [int(x) for x in str(OPT['ck']).replace('0', ' ').split()] if False else [[7, 10, 13], [6, 9, 12, 15], [5, 7, 9, 12, 14]][OPT['ck']]
ZH = 220
def stageB(P, G, hk):
    for kk in range(4):
        if 4 * G + kk in hk: P.hook(hk[4 * G + kk])
        par = kk & 1; ks = 4 * G + kk
        fb = vFR + 20 * par
        so = G * 16384 + (kk >> 1) * 8192
        z0 = "0" if ks == 0 else None
        a0 = "0" if kk == 0 else None
        for x in range(4):
            P.read(fb + 4 * x, f"ds_read_b128 {vr(fb+4*x,4)}, v{12+2*x+par} offset:{so}")
            P.mfma(vr(vAB + 16 * G + 4 * x, 4), vr(fb + 4 * x, 4), vr(vWD + 4 * kk, 4), a0, (fb + 4 * x,))
            if x == 0: P.pre(lambda ks=ks: A.wait_named("W%d" % ks))
            for i in (0, 1): P.mfma(vr(vZ + 8 * x + 4 * i, 4), ar(128 + (ks * 2 + i) * 4, 4), vr(fb + 4 * x, 4), z0, (fb + 4 * x,))

def pushc(j): A.push(it_c(j, CS[j]), "C%d" % j)
def c_read(j):
    dst = CS[j]
    A.wait_named("C%d" % j)
    for par in (0, 1):
        for u in range(4):
            A.ds(f"ds_read_b128 {ar(((2*j+par)*4+u)*4,4)}, v{240+2*(dst>>16)+par} offset:{(dst&0xffff)+u*2048}")
def cnext(j):
    c_read(j); A.wait_all_lg()
    if j + 3 < 8: pushc(j + 3)

Z1P = 100
POIS = [('', f'buffer_store_dwordx4 v[236:239], v24, {sWS}, s81 offen offset:3072 sc1')]
def poison(issue=True):
    t = 220
    A(f"s_lshl_b32 {sT0}, {sR}, 2\ns_add_u32 {sT0}, {sT0}, {sW}\ns_mul_i32 {sT0}, {sT0}, 28672\ns_lshr_b32 {sT1}, {sC}, 1\ns_mul_i32 {sT1}, {sT1}, 7168\ns_add_u32 {sT1}, {sT1}, {sT0}\ns_add_u32 {sT1}, {sT1}, {HB}")
    A(f"s_and_b32 {sT0}, {sC}, 1\ns_lshl_b32 s80, {sT0}, 12\ns_add_u32 s80, s80, {sT1}\ns_lshl_b32 s81, {sT0}, 9\ns_add_u32 s81, s81, {sT1}")
    A(f"v_mov_b32 {vr(t+16)}, -1\nv_mov_b32 {vr(t+17)}, -1\nv_mov_b32 {vr(t+18)}, -1\nv_mov_b32 {vr(t+19)}, -1")
    A(f"v_lshrrev_b32 v24, 5, v1\nv_lshl_add_u32 v24, v24, 24, {vL16}")
    if not issue: return
    for k in range(3): A.vmem(f"buffer_store_dwordx4 {vr(t+16,4)}, {vL16}, {sWS}, s80 offen offset:{1024*k} sc1")
    masked(-1, 0, lambda: A.vmem(f"buffer_store_dwordx4 {vr(t+16,4)}, {vL16}, {sWS}, s81 offen offset:3072 sc1"))
def b_epilogue(fz):
    t = vFR
    A(f"v_and_b32 v15, 1, v1\nv_and_b32 v16, 2, v1\nv_sub_u32 v17, 1, v16\nv_sub_u32 v18, 1, v15\nv_mul_i32_i24 v12, v17, v18\nv_mul_i32_i24 v13, v17, v15\nv_sub_u32 v14, v18, v15")
    A("v_bfe_u32 v16, v1, 3, 1\nv_lshlrev_b32 v16, 31, v16\nv_cvt_f32_i32 v12, v12\nv_cvt_f32_i32 v13, v13\nv_cvt_f32_i32 v14, v14\nv_xor_b32 v13, v16, v13")
    for p in range(0, 16, 2):
        o = [vr(vAB + 16 * m + p, 2) for m in range(4)]
        A(f"v_pk_fma_f32 {o[0]}, {o[2]}, v[14:15], {o[0]} op_sel_hi:[1,0,1]\nv_pk_add_f32 {o[2]}, {o[1]}, {o[3]}\nv_pk_add_f32 {o[1]}, {o[1]}, {o[3]} neg_lo:[0,1] neg_hi:[0,1]")
        A(f"v_pk_fma_f32 {o[0]}, {o[2]}, v[12:13], {o[0]} op_sel_hi:[1,0,1]")
    for v in range(16): A(f"v_fmac_f32_dpp {vr(vAB+v)}, {vr(vAB+16+v)}, v13 row_ror:8 row_mask:0xf bank_mask:0xf")
    for k in range(8): A(f"v_cvt_pk_bf16_f32 {vr(t+k)}, {vr(vAB+2*k)}, {vr(vAB+2*k+1)}")
    A("s_nop 1")
    D = vAB + 32
    for lg in (0, 1):
        for J in (0, 1): mfma(vr(D + 8 * lg + 4 * J, 4), vr(vR32 + 4 * J, 4), vr(t + 4 * lg, 4), "0")
    A(f"s_cmp_eq_u32 {sW}, 3\ns_cselect_b32 {sT0}, 0, 1024\ns_add_u32 {sT0}, {sT0}, {GX}\nv_lshlrev_b32 v16, 2, {vI16}\nv_add_u32 v11, {sT0}, v16")
    for x in range(4): A.ds(f"ds_write2_b32 v11, {vr(vZ+8*x+4)}, {vr(vZ+8*x+4)} offset0:{(3^x)*16} offset1:{(3^x)*16+64}")
    A(f"s_mul_i32 {sT0}, {sR}, 4352\ns_lshl_b32 {sT1}, {sC}, 9\ns_add_u32 {sT0}, {sT0}, {sT1}\ns_lshl_b32 {sT2}, {sW}, 7\ns_add_u32 {sT0}, {sT0}, {sT2}\ns_add_u32 {sT0}, {sT0}, {F2}\ns_mov_b32 {sT3}, 139264")
    A(f"v_and_b32 v14, 7, v1\nv_lshlrev_b32 v14, 4, v14\nv_lshrrev_b32 v15, 3, v1\nv_mad_u32_u24 v14, v15, {sT3}, v14\nv_add_u32 v14, {sT0}, v14")
    A(f"s_lshl_b32 {sT0}, {sW}, 6\ns_add_u32 {sT0}, {sT0}, {GX}\nv_add_u32 v16, {sT0}, v16")
    U = t + 8
    for J in (0, 1):
        for lg in (0, 1):
            for z in (0, 1): A(f"v_cvt_pk_bf16_f32 {vr(U+4*J+2*lg+z)}, {vr(D+8*lg+4*J+2*z)}, {vr(D+8*lg+4*J+2*z+1)}")
    for k in range(4): A(f"v_mov_b32 {vr(t+k)}, {vr(U+2*k)}")
    for k in range(4): A(f"v_mov_b32_dpp {vr(U+2*k)}, {vr(U+2*k+1)} row_ror:8 row_mask:0xf bank_mask:0xc")
    for k in range(4): A(f"v_mov_b32_dpp {vr(U+2*k+1)}, {vr(t+k)} row_ror:8 row_mask:0xf bank_mask:0x3")
    l1, lsk = A.lab("Lnosw"), A.lab("Lnosp")
    A.lock += 1
    A(f"s_cmp_eq_u32 {sSH}, 0\ns_cbranch_scc1 {l1}")
    for J in (0, 1): A(f"v_swap_b32 {vr(U+4*J)}, {vr(U+4*J+2)}\nv_swap_b32 {vr(U+4*J+1)}, {vr(U+4*J+3)}")
    A(f"{l1}:\ns_mov_b32 {sT2}, {8*139264}\ns_add_u32 {sT1}, {sW}, {sC}\ns_cmp_lg_u32 {sT1}, 0\ns_cbranch_scc1 {lsk}")
    A(f"s_mov_b32 exec_lo, 0x01010101\ns_mov_b32 exec_hi, 0x01010101\nv_add_u32 v15, 4096, v14")
    for J in (0, 1):
        q_ = t + 4 * J
        A(f"v_mov_b32 {vr(q_)}, {vr(U+4*J+1)}\nv_mov_b32 {vr(q_+1)}, 0\nv_mov_b32 {vr(q_+2)}, {vr(U+4*J+3)}\nv_mov_b32 {vr(q_+3)}, 0\nv_mov_b32 {vr(U+4*J+1)}, 0\nv_mov_b32 {vr(U+4*J+3)}, 0")
        A(f"buffer_store_dwordx4 {vr(q_,4)}, v15, {sWS}, {sT2 if J else 0} offen sc1")
    A(f"s_mov_b64 exec, -1\n{lsk}:")
    A.lock -= 1
    if OPT["pois"] == 2: poison()
    for J in (0, 1): tokF = A.vmem(f"buffer_store_dwordx4 {vr(U+4*J,4)}, v14, {sWS}, {sT2 if J else 0} offen sc1")
    fz()
    gelu(vZ, 32, vFR + 20)
    A(f"s_lshl_b32 {sT0}, {sW}, 12\ns_add_u32 {sT0}, {sT0}, {Z1B}\nv_lshlrev_b32 v12, 3, {vLane}\nv_add_u32 v17, {sT0}, v12\ns_lshl_b32 {sT0}, {sW}, 10\nv_add_u32 v12, {sT0}, v17")
    for x in range(4):
        if x: A(f"v_xor_b32 v13, {4096*x}, v12")
        for i in (0, 1):
            b = vZ + 8 * x + 4 * i
            A(f"v_cvt_pk_bf16_f32 {vr(b)}, {vr(b)}, {vr(b+1)}\nv_cvt_pk_bf16_f32 {vr(b+1)}, {vr(b+2)}, {vr(b+3)}")
            A.ds(f"ds_write_b64 v{13 if x else 12}, {vr(b,2)} offset:{i*512}")
    A(f"v_lshlrev_b32 {vB}, 16, {vB}")
    A.st("epi_end", 2); A.wait_all_lg(); A.flush(); A.st("epi_fl", 2); A.wait_vm(tokF); A.st("epi_F", 2); A("s_barrier")
    A(f"s_lshl_b32 {sT0}, {sC}, 12\ns_lshl_b32 {sT1}, {sR}, 7\ns_add_u32 {sT0}, {sT0}, {sT1}\ns_add_u32 {sT0}, {sT0}, {FLAGF}")
    flag_store(sT0, True)
    for ft in range(7): A.ds(f"ds_read_b64 {vr(Z1P+2*ft,2)}, v17 offset:{ft*512}")
    A.ds("ds_read2_b32 v[14:15], v16 offset0:16 offset1:32"); A.ds("ds_read_b32 v6, v16 offset:192"); A.ds(f"ds_read_b32 {vG}, v16")
LDZ = [f"buffer_load_dwordx2 v[246:247], v19, {sWS}, s46 offen sc1"]
def flagZ_issue():
    A(f"s_mul_i32 {sT0}, {sC}, 7\ns_add_u32 {sT1}, {sT0}, 6\ns_lshr_b32 {sT0}, {sT0}, 3\ns_lshr_b32 {sT1}, {sT1}, 3\ns_sub_u32 {sT1}, {sT1}, {sT0}\ns_lshl_b32 {sT1}, {sT1}, 12")
    A(f"s_lshl_b32 {sT0}, {sT0}, 12\ns_lshl_b32 {sT2}, {sW}, 10\ns_add_u32 {sT0}, {sT0}, {sT2}\ns_add_u32 s46, {sT0}, {FLAGZ}")
    A(f"v_and_b32 v19, 7, v1\nv_lshlrev_b32 v19, 7, v19\nv_lshrrev_b32 v11, 5, {vLane}\nv_mad_u32_u24 v19, v11, {sT1}, v19")
    return A.vmem(LDZ[0])

def srd(b, src, size): A(f"s_mov_b32 s{b}, s{src}\ns_mov_b32 s{b+1}, s{src+1}\ns_mov_b32 s{b+2}, {size}\ns_mov_b32 s{b+3}, 0x20000")

def prologue():
    A("s_cmp_ge_u32 s2, 256\ns_cbranch_scc1 Lend")
    A("s_load_dwordx16 s[60:75], s[0:1], 0\ns_load_dwordx8 s[80:87], s[0:1], 64\ns_load_dwordx4 s[88:91], s[0:1], 96")
    if OPT["prof"]: A("s_memrealtime s[98:99]\ns_memtime s[96:97]")
    if OPT["diag"] >= 0: A("s_memrealtime s[98:99]\ns_memrealtime s[96:97]")
    A(f"s_getpc_b64 s[44:45]\ns_mov_b32 s46, Lend-{NAME}_kernel\ns_mov_b32 s47, 0x20000")
    A("s_lshr_b32 s3, s2, 3\ns_lshl_b32 s76, s3, 10\nv_and_b32 v11, 7, v0\nv_lshlrev_b32 v11, 7, v11\nv_add_u32 v11, s76, v11")
    A.vmem(f"buffer_load_dword v12, v11, {sTMP}, 0 offen")
    A("s_and_b32 s76, s2, 7")
    if OPT["xmap"] == 1:
        A(f"s_lshr_b32 {sR}, s3, 3\ns_lshl_b32 s77, s76, 2\ns_add_u32 {sR}, {sR}, s77\ns_and_b32 {sC}, s3, 7")
        A(f"s_mov_b32 s78, 0x76543210\ns_mov_b32 s79, s78\ns_mul_i32 s77, s76, {OPT['xrot']}\ns_add_u32 s77, s77, {sC}\ns_and_b32 s77, s77, 7\ns_lshl_b32 s77, s77, 2\ns_lshr_b64 s[78:79], s[78:79], s77\ns_mov_b32 {sROT}, s78")
    else:
        A(f"s_lshr_b32 {sR}, s76, 1\ns_lshl_b32 {sR}, {sR}, 3\ns_lshr_b32 s77, s3, 2\ns_add_u32 {sR}, {sR}, s77")
        A(f"s_and_b32 {sC}, s76, 1\ns_lshl_b32 {sC}, {sC}, 2\ns_and_b32 s77, s3, 3\ns_add_u32 {sC}, {sC}, s77")
        A(f"s_lshl_b32 s77, s77, 2\ns_lshr_b32 {sROT}, 0x64206420, s77\ns_and_b32 {sROT}, {sROT}, 0xffff\ns_or_b32 {sROT}, {sROT}, 0x64200000\ns_bitcmp1_b32 s76, 0\ns_cselect_b32 s77, 0, 16\ns_lshl_b32 s77, 0x1111, s77\ns_or_b32 {sROT}, {sROT}, s77")
    A(f"s_mov_b32 {sCA}, {sC}")
    if not OPT["rotc"]: A(f"s_mov_b32 {sROT}, 0x76543210")
    A(f"v_lshrrev_b32 v11, 6, v0\nv_and_b32 {vLane}, 63, v0\nv_readfirstlane_b32 {sW}, v11")
    A(f"v_and_b32 {vI16}, 15, v0\nv_lshrrev_b32 {vQ}, 4, {vLane}\nv_lshlrev_b32 {vL16}, 4, {vLane}")
    A(f"s_lshl_b32 {sW2048}, {sW}, 11\ns_lshl_b32 {sW8192}, {sW}, 13\ns_and_b32 {sET}, {sW}, 1\ns_lshr_b32 {sSH}, {sW}, 1\ns_add_u32 s76, {sR}, {sC}")
    if not OPT["rota"]: A("s_mov_b32 s76, 0")
    if OPT["rota"] == 2: A(f"s_lshr_b32 s76, {sR}, 3\ns_lshr_b32 s77, {sC}, 2\ns_lshl_b32 s77, s77, 1\ns_add_u32 s76, s76, s77\ns_and_b32 s77, {sC}, 1\ns_add_u32 s76, s76, s77")
    if OPT["rota"] == 3: A(f"s_lshr_b32 s76, {sR}, 2\ns_add_u32 s76, s76, {sC}")
    if OPT["rota"] == 4: A(f"s_lshr_b32 s76, {sR}, 3\ns_add_u32 s76, s76, {sC}\ns_and_b32 s77, {sR}, 1\ns_lshl_b32 s77, s77, 1\ns_add_u32 s76, s76, s77")
    for G in range(4):
        A(f"s_add_u32 s77, s76, {G}\ns_and_b32 s77, s77, 3\ns_lshl_b32 {sAX[G]}, s77, 8\ns_mul_i32 {sAW[G]}, s77, 458752")
    A(f"v_lshrrev_b32 v11, 3, {vLane}\nv_and_b32 v15, 7, v0\nv_lshrrev_b32 v16, 1, v11")
    A("v_xor_b32 v13, v15, v16\nv_lshlrev_b32 v13, 4, v13\nv_xor_b32 v14, 64, v13")
    A(f"s_lshl_b32 s76, {sR}, 16\ns_lshl_b32 s77, {sW}, 14\ns_add_u32 s76, s76, s77\nv_lshl_add_u32 v15, v11, 10, s76")
    A(f"v_add_u32 {vr(vXA[0])}, v15, v13\nv_add_u32 {vr(vXA[1])}, v15, v14\nv_add_u32 {vr(vXA[1])}, 7168, {vr(vXA[1])}")
    A(f"s_lshl_b32 s76, {sCA}, 8\ns_mul_i32 s77, {sW}, 114688\ns_add_u32 s76, s76, s77\ns_add_u32 s76, s76, 1792\ns_movk_i32 s77, 3584")
    A(f"v_lshlrev_b32 v15, 1, {vQ}\nv_xor_b32 v15, v15, {vI16}\nv_lshlrev_b32 v15, 4, v15\nv_mad_u32_u24 v16, {vQ}, s77, v15\nv_add_u32 v16, s76, v16\nv_xor_b32 v17, 128, v16")
    A(f"s_bfe_u32 s76, {sR}, 0x10002\ns_mul_i32 s76, s76, {OPT['hw']}\ns_lshl_b32 s100, s76, 12\ns_add_u32 s100, s100, {sW8192}\ns_xor_b32 s101, s100, 4096\ns_mul_i32 s76, s76, {4*3584}\ns_sub_u32 s77, {4*3584}, s76")
    A("v_add_u32 v18, s77, v16\nv_add_u32 v19, s77, v17\nv_add_u32 v16, s76, v16\nv_add_u32 v17, s76, v17")
    for i in range(8):
        A(f"v_add_u32 {vr(vWA[i])}, {8*(i&3)*3584 - 1024*(i&3)}, v{16+(i&1)+2*(i>>2)}")
    A("s_waitcnt lgkmcnt(0)")
    srd(4, 60, 2097152); srd(8, 72, 1835008); srd(16, 82, 917504)
    A(f"s_load_dwordx2 s[92:93], s[90:91], {EPOCH}")

def setup2(early=False):
    if not (early and OPT["pois"] == 4): srd(12, 74, 8388608); srd(28, 90, WS_SIZE); srd(36, 80, 4096)
    srd(32, 86, 2097152)
    A(f"s_cmp_eq_u32 {sW}, 3\ns_cselect_b32 s40, s84, s90\ns_cselect_b32 s41, s85, s91\ns_movk_i32 s42, 1024\ns_cselect_b32 s42, s42, s30\ns_mov_b32 s43, 0x20000\ns_cselect_b32 s94, 64, 57344")
    A(f"s_mul_i32 {sW7168}, {sW}, 7168\ns_mul_i32 s77, {sC}, 7168\ns_add_u32 s76, {sW2048}, s77\ns_add_u32 s76, s76, {W1P}\nv_add_u32 {vr(vW1[0])}, s76, {vL16}\nv_add_u32 {vr(vW1[1])}, 1024, {vr(vW1[0])}\nv_lshlrev_b32 v15, 4, {vQ}\ns_cmp_eq_u32 {sW}, 3\ns_cselect_b64 vcc, -1, 0\nv_cndmask_b32 {vr(vW1[1])}, {vr(vW1[1])}, v15, vcc")
    A("v_and_b32 v17, 4, v11\nv_lshlrev_b32 v17, 1, v17\nv_and_or_b32 v17, v11, 3, v17")
    A(f"s_lshl_b32 s76, {sET}, 8\ns_lshl_b32 s77, {sSH}, 5\ns_add_u32 s76, s76, s77\ns_add_u32 s76, s76, {sR}")
    A("s_lshl_b32 s77, s76, 10\nv_lshl_add_u32 v15, v17, 16, s77")
    A(f"v_add_u32 {vr(vXR[0])}, v15, v13\nv_add_u32 {vr(vXR[1])}, v15, v14\nv_add_u32 {vr(vXR[1])}, {1024*1024-1024}, {vr(vXR[1])}")
    A(f"v_and_b32 v15, 12, {vI16}\nv_lshlrev_b32 v15, 1, v15\nv_and_or_b32 v15, {vI16}, 3, v15\nv_lshl_add_u32 {vTrow}, v15, 6, s76")
    A(f"s_lshl_b32 s77, {sR}, 12\ns_lshl_b32 s78, {sW}, 10\ns_add_u32 s77, s77, s78\nv_lshl_add_u32 v15, v17, 18, s77")
    A(f"v_add_u32 {vr(vCb[0])}, v15, v13\nv_add_u32 {vr(vCb[1])}, v15, v14\nv_add_u32 {vr(vCb[1])}, {1024*4096-1024}, {vr(vCb[1])}")
    for u in range(4):
        A(f"s_add_u32 s77, {sW}, {u}\ns_and_b32 s78, s77, 1\ns_lshl_b32 s78, s78, 20\ns_and_b32 s77, s77, 2\ns_lshl_b32 s77, s77, 16\ns_add_u32 {sCU[u]}, s77, s78")
    A(f"v_lshlrev_b32 v246, 1, {vTrow}")
    A(f"v_lshrrev_b32 v15, 1, {vI16}\nv_xor_b32 v15, v15, {vQ}\nv_lshlrev_b32 v15, 4, v15\nv_lshl_add_u32 {vXrd0}, {vI16}, 7, v15\nv_xor_b32 {vXrd1}, 64, {vXrd0}")
    A(f"v_add_u32 v240, {sW8192}, {vXrd0}\nv_add_u32 v241, {sW8192}, {vXrd1}\nv_add_u32 v242, 0x10000, v240\nv_add_u32 v243, 0x10000, v241\nv_add_u32 v244, 0x20000, v240\nv_add_u32 v245, 0x20000, v241")
def tlb_touch():
    if not OPT["tlb"]: return
    A(f"v_and_b32 v15, 7, v1\nv_lshlrev_b32 v15, 7, v15\ns_cmp_eq_u32 {sW}, 3\ns_cselect_b32 s78, 0, {WS_SIZE}")
    A.vmem(f"buffer_load_dword v255, v15, {sGW}, s78 offen")
    A.vmem(IT_GATE[0][1])
def twiddles():
    A(f"s_lshl_b32 s70, {sC}, 5\ns_lshl_b32 s71, {sW}, 3\ns_add_u32 s70, s70, s71\nv_and_b32 v11, 7, v1\nv_add_u32 v11, s70, v11\nv_bfe_u32 v14, v1, 3, 1\nv_lshlrev_b32 v15, 3, {vQ}\nv_cmp_gt_u32 vcc, v14, v11\nv_cvt_f32_u32 v11, v11\nv_cvt_f32_u32 v15, v15\nv_cvt_f32_u32 v14, v14")
    A(f"v_mul_f32 v11, {fbits(1/512)}, v11\nv_mul_f32 v14, {fbits(0.25)}, v14\nv_fma_f32 v13, v11, v15, v14\nv_cndmask_b32 v11, v11, 0.5, vcc\nv_cndmask_b32 v13, v13, 0, vcc")
    gen_cos(lambda i: vWD + i, 16, "v11", "v13", lambda n: 32 * (n >> 3) + (n & 7))
    A(f"v_lshrrev_b32 v11, 1, {vI16}\nv_cvt_f32_u32 v11, v11\nv_mul_f32 v11, {fbits(1/32)}, v11\nv_add_f32 v247, {fbits(0.25)}, v11")
    A(f"v_and_b32 v13, 1, v1\nv_cvt_f32_u32 v13, v13\nv_mul_f32 v13, {fbits(0.25)}, v13\nv_cmp_eq_u32 vcc, 1, {vI16}\nv_mov_b32 v14, v13\ns_nop 0\nv_cndmask_b32 v11, v11, 0.5, vcc\nv_cndmask_b32 v13, v13, 0, vcc")
    A(f"s_lshl_b32 s70, {sET}, 2\nv_cvt_f32_u32 v248, s70\nv_sub_f32 v252, v15, v248\nv_add_f32 v248, v15, v248")
    for J, (fr, ph) in enumerate((("v11", "v13"), ("v247", "v14"))):
        A(f"v_fma_f32 v253, {fr}, v248, {ph}\nv_fma_f32 v254, {fr}, v252, {ph}")
        gen_cos(lambda i: vR32 + 4 * J + i, 2, fr, "v253", lambda n: n)
        gen_cos(lambda i: vR32 + 4 * J + 2 + i, 2, fr, "v254", lambda n: 4 + n)
def consts():
    if OPT["pois"] == 0: poison()
    if OPT["pois"] == 3: poison(False)
    A("s_waitcnt lgkmcnt(0)")
    A("s_mul_i32 s52, s92, 0x9E3779B1\ns_add_u32 s52, s52, 0x7F4A7C15\ns_mul_i32 s53, s93, 0x85EBCA6B\ns_add_u32 s53, s53, 0xC2B2AE35")
    c0 = -2 * 0.7978845608028654 * 1.4426950408889634
    A(f"s_mov_b32 s76, {fbits(c0*0.044715)}\ns_mov_b32 s77, {fbits(c0)}\nv_mov_b32 v38, s52\nv_mov_b32 v39, s53\nv_and_b32 v251, 31, v1\nv_lshlrev_b32 v251, 7, v251\nv_add_u32 v251, {FLAGP}, v251")
    if OPT["prof"]: A("v_writelane_b32 v0, s96, 0\nv_writelane_b32 v0, s98, 62")
LDP = [f"buffer_load_dwordx2 v[20:21], v251, {sWS}, 0 offen sc1"]

def front_main():
    a0 = it_xa(0) + it_w2(WA[0], 0)
    if OPT["pois"] == 4:
        srd(28, 90, WS_SIZE); srd(36, 80, 4096); srd(12, 74, 8388608); poison(False)
        A.push(a0[:OPT["pp"]] + POIS + a0[OPT["pp"]:], "A0")
    else: A.push(a0, "A0")
    A.push(it_xa(1) + it_w2(WA[1], 1), "A1")
    A.st("karg", 2)
    A.flush("A0")
    A.st("iss0", 2)
    if OPT["ser"] == 2: A.raw("s_waitcnt vmcnt(4)"); A.st("w8"); A.raw("s_waitcnt vmcnt(0)"); A.st("w12")
    A.lock += 1
    setup2(True); tlb_touch()
    if OPT["ce"] == 1: twiddles(); consts()
    if OPT["ce"]: A.front(it_c(0, CS[0]), "C0"); A.flush("C0")
    if OPT["ce"] != 1: twiddles(); consts()
    A(f"v_lshrrev_b32 v15, 2, {vLane}\nv_lshlrev_b32 v16, 8, v15\nv_and_b32 v15, 7, v15\nv_lshl_add_u32 v16, v15, 5, v16\nv_and_b32 v15, 3, v1\nv_lshl_add_u32 v16, v15, 3, v16\ns_lshl_b32 {sT0}, {sET}, 7\nv_xor_b32 v16, {sT0}, v16")
    for i in range(4): A(f"v_xor_b32 {vr(vTA[i])}, {32*i}, v16\nv_add_u32 {vr(vTA[4+i])}, 0x10000, {vr(vTA[i])}")
    A(f"s_lshl_b32 {sT0}, {sSH}, 12\ns_add_u32 {sT0}, {sT0}, {SL[6]}\nv_add_u32 v13, {sT0}, {vXrd0}\nv_add_u32 v14, {sT0}, {vXrd1}")
    A.lock -= 1
    if OPT["fa1"]: A.flush("A1")
    if OPT["ce"]: A.push(it_xa(2) + it_xa(3))
    else: A.push(it_xa(2) + it_w2(WA[2], 2), "A2"); A.push(it_xa(3))
    A.stamp(1)
    A.per = OPT["pera"]
    P = Pipe()
    for G in range(4):
        def h(G=G):
            gbar("A%d" % G, False)
            if OPT["ce"]:
                if G in (1, 2): A.front(it_w2(WA[G + 1], G + 1), "A%d" % (G + 1)) if G == 2 else A.push(it_w2(WA[G + 1], G + 1), "A%d" % (G + 1))
                if G == 2: A.push(POIS)
                if G >= 1: A.push(it_xr(SL[5 + G], G - 1))
                return
            if G == 1: A.push(it_w2(WA[3], 3), "A3")
            if G == 1 and OPT["pois"] == 3: A.push(POIS)
            if G == 1 and OPT["x0"]: A.push(it_xr(SL[6], 0))
            if G == 2: pushc(0)
        P.hook(h)
        for kk in range(4):
            xf = vFR + 32 + 8 * ((4 * G + kk) % 3)
            z0 = "0" if (G == 0 and kk == 0) else None
            for i in range(4):
                wf = vFR + 4 * (cnt[0] % NF); cnt[0] += 1
                if i == 0: P.read(xf, f"ds_read_b128 {vr(xf,4)}, v{13+(kk&1)} offset:{G*16384+(kk>>1)*8192}")
                for half in (0, 1):
                    P.read(wf, f"ds_read_b64_tr_b16 {vr(wf+2*half,2)}, {vr(vTA[i + (4 if WA[G] >= 65536 else 0)])} offset:{(WA[G]&0xffff) + kk*8192 + half*4096}")
                P.mfma(vr(vZ + 4 * i, 4), vr(wf, 4), vr(xf, 4), z0, (wf, xf))
                if i == 0: P.read(xf + 4, f"ds_read_b128 {vr(xf+4,4)}, v{13+(kk&1)} offset:{G*16384+(kk>>1)*8192+2048}")
                P.mfma(vr(vZ + 16 + 4 * i, 4), vr(wf, 4), vr(xf + 4, 4), z0, (wf, xf + 4))
    P.run(OPT["look"])
    A.flush()
    A.per = OPT["per"]
    A("s_barrier")
    A.stamp(2)
    A("s_nop 7")
    gelu(vZ, 32, vFR)
    t = vFR
    for xt in (0, 1):
        z = vZ + 16 * xt
        A(f"v_pk_add_f32 {vr(t,2)}, {vr(z,2)}, {vr(z+2,2)}\nv_pk_mul_f32 {vr(t+2,2)}, {vr(z,2)}, {vr(z,2)}")
        for p in range(2, 16, 2):
            if p > 2: A(f"v_pk_add_f32 {vr(t,2)}, {vr(t,2)}, {vr(z+p,2)}")
            A(f"v_pk_fma_f32 {vr(t+2,2)}, {vr(z+p,2)}, {vr(z+p,2)}, {vr(t+2,2)}")
        A(f"v_add_f32 {vr(t+4+2*xt)}, {vr(t)}, {vr(t+1)}\nv_add_f32 {vr(t+5+2*xt)}, {vr(t+2)}, {vr(t+3)}")
    xreduce((P16, P32), [t + 4, t + 5, t + 6, t + 7], [t, t + 1, t + 2, t + 3])
    A(f"v_cmp_eq_u32 vcc, 1, {vQ}\ns_lshl_b32 {sT0}, {sR}, 1\ns_add_u32 {sT0}, {sT0}, {sSH}\nv_cndmask_b32 {vr(t+4)}, {vr(t+4)}, {vr(t+6)}, vcc\nv_cndmask_b32 {vr(t+5)}, {vr(t+5)}, {vr(t+7)}, vcc")
    A(f"v_mov_b32 {vr(t+6)}, s52\nv_mov_b32 {vr(t+7)}, s53\ns_lshl_b32 {sT0}, {sT0}, 13\ns_add_u32 {sT0}, {sT0}, {STAT}\nv_add_u32 v249, {sT0}, {vL16}")
    A(f"s_lshl_b32 {sT1}, {sCA}, 10\ns_lshl_b32 {sT2}, {sET}, 9\ns_add_u32 {sT1}, {sT1}, {sT2}\nv_add_u32 v250, 4096, v249")
    masked(-1, 0, lambda: A.vmem(f"buffer_store_dwordx4 {vr(t+4,4)}, v249, {sWS}, {sT1} offen sc1"))

def front_lead():
    PIT = 1056; L1, L2 = PR[2], PR[2] + 36864
    A(f"s_lshr_b32 s76, {sR}, 1\ns_lshl_b32 s76, s76, 5\ns_lshl_b32 s77, {sET}, 4\ns_add_u32 s76, s76, s77\ns_lshl_b32 s77, {sSH}, 2\ns_add_u32 s76, s76, s77\ns_mul_i32 s76, s76, 3584")
    A(f"s_and_b32 s77, {sR}, 1\ns_mul_i32 s77, s77, 896\ns_add_u32 s76, s76, s77\ns_mul_i32 s78, {sW}, {8*PIT}")
    for i in range(8):
        A(f"s_add_u32 m0, s78, {L1 + i*PIT}\ns_add_u32 s77, s76, {(8*(i>>2)+(i&3))*3584}")
        tok1 = A.vmem(f"buffer_load_dwordx4 {vL16}, {sWIN}, s77 offen lds")
    A(f"s_mul_i32 s76, {sR}, 37\ns_lshr_b32 s76, s76, 8\ns_mul_i32 s77, s76, 7\ns_sub_u32 s77, {sR}, s77\ns_mul_i32 s76, s76, 224")
    A(f"s_lshl_b32 s79, s77, 5\ns_cmp_ge_u32 s77, 4\ns_cselect_b32 s44, 16, 0\ns_sub_u32 s79, s79, s44\ns_cmp_eq_u32 s77, 3\ns_cselect_b32 s44, 112, 16\ns_mul_i32 s44, s44, {sSH}\ns_add_u32 s79, s79, s44")
    A(f"s_add_u32 s76, s76, s79\ns_lshl_b32 s77, {sET}, 3\ns_add_u32 s76, s76, s77\ns_lshl_b32 s44, s76, 10\ns_mov_b32 s45, s78")
    st = {}
    def wout_loads():
        for i in range(8):
            A(f"s_add_u32 m0, s45, {L2 + i*PIT}\ns_add_u32 s46, s44, {i*1024}")
            st["w"] = A.vmem(f"buffer_load_dwordx4 {vL16}, {sWOUT}, s46 offen lds")
    setup2(); tlb_touch(); consts()
    A(f"v_lshrrev_b32 v15, 2, {vLane}\nv_mul_u32_u24 v15, {PIT}, v15\nv_and_b32 v16, 3, v1\nv_lshl_add_u32 v15, v16, 3, v15\ns_mul_i32 {sT0}, {sW}, 224\ns_add_u32 {sT0}, {sT0}, {L1}\nv_add_u32 v16, {sT0}, v15\ns_lshl_b32 {sT0}, {sW}, 8\ns_add_u32 {sT0}, {sT0}, {L2}\nv_add_u32 v17, {sT0}, v15")
    A(f"s_mul_i32 {sT0}, {sR}, 28672\ns_add_u32 {sT0}, {sT0}, {sW7168}\ns_add_u32 {sT0}, {sT0}, {W1P}\ns_add_u32 {sT1}, {sT0}, 4096")
    A(f"s_mul_i32 {sT2}, {sW}, {2*114688}\ns_lshl_b32 {sT3}, {sR}, 12\ns_add_u32 {sT2}, {sT2}, {sT3}\ns_add_u32 {sT2}, {sT2}, {WOP}\ns_cmp_ge_u32 {sR}, 28\ns_cselect_b32 {sT2}, {WS_SIZE}, {sT2}\ns_add_u32 {sT3}, {sT2}, 114688")
    def half(rng, tok, flag):
        A.wait_vm(tok); A("s_barrier")
        tk = {}
        for n in rng:
            base, i = ("v16", n) if n < 7 else ("v17", n - 7)
            A.ds(f"ds_read_b64_tr_b16 {vr(112+4*n,2)}, {base} offset:{i*32}")
            tk[n] = A.ds(f"ds_read_b64_tr_b16 {vr(112+4*n+2,2)}, {base} offset:{i*32+16*PIT}")
        for n in rng:
            i = n if n < 7 else n - 7
            so = (sT0, sT1, sT2, sT3)[(0 if n < 7 else 2) + (i >> 2)]
            A.wait_lg(tk[n])
            t = A.vmem(f"buffer_store_dwordx4 {vr(112+4*n,4)}, {vL16}, {sWS}, {so} offen offset:{(i&3)*1024} sc1")
        return t
    t1 = half(range(7), tok1, FLAGP)
    wout_loads()
    A.wait_vm(t1); A("s_barrier")
    A(f"s_lshl_b32 {sT0}, {sR}, 7\ns_add_u32 s46, {sT0}, {FLAGP}\ns_add_u32 s47, {sT0}, {FLAGQ}")
    flag_store("s46", True)
    A.st("flagP")
    t2 = half(range(7, 15), st["w"], FLAGQ)
    pushc(0); A.flush()
    A.stamp(1)
    twiddles()
    A.wait_vm(t2); A("s_barrier")
    flag_store("s47", True)
    for G in range(OPT["x0"]): A.push(it_xr(SL[6 + G], G))
    if OPT["pois"] == 4: poison(False)
    if OPT["pois"] >= 3: A.push(POIS)
    A.flush()
    A(f"v_mov_b32 v249, {WS_SIZE}\nv_mov_b32 v250, {WS_SIZE}")

def front2():
    A.stamp(3)
    if OPT["pois"] == 1: poison()
    if OPT["ser"] == 1: A.raw("s_waitcnt vmcnt(0)\ns_barrier"); A.st("ser0")
    tokP = A.vmem(LDP[0])
    if OPT["ser"] == 1: A.raw("s_waitcnt vmcnt(0)\ns_barrier"); A.st("serP")
    for G in range(OPT["x0"], 3): A.push(it_xr(SL[6 + G], G))
    A.push(([] if OPT["tlb"] else IT_GATE) + it_xr(SL[9], 3), "X3"); A.flush()
    if OPT["ser"] == 1: A.raw("s_waitcnt vmcnt(0)\ns_barrier"); A.st("serX")
    poll(LDP, tagcmp([20]), tokP); A.st("got_P", 2)
    for ks in range(16): A.push(it_w1(ks), "W%d" % ks)
    if OPT["ser"] == 1: A.flush(); A.raw("s_waitcnt vmcnt(0)\ns_barrier"); A.st("serW")
    pushc(1)
    if OPT["ser"] == 1: A.flush(); A.raw("s_waitcnt vmcnt(0)\ns_barrier"); A.st("serC1")
    A.flush("W%d" % OPT["gat"])
    g = 128
    ld = [f"buffer_load_dwordx4 {vr(g+4*k,4)}, v{249 + (k>>2)}, {sWS}, 0 offen offset:{1024*(k&3)} sc1" for k in range(7)]
    for l in ld: tokS = A.vmem(l)
    if OPT["ser"] == 1: A.raw("s_waitcnt vmcnt(0)\ns_barrier"); A.st("serG")
    A(f"v_and_b32 v11, 3, {vI16}\nv_bfe_u32 v12, {vI16}, 3, 1\nv_lshl_add_u32 v11, v12, 2, v11\nv_bfe_u32 v15, v11, 1, 2\nv_bfe_u32 v12, {vI16}, 2, 1\nv_lshl_add_u32 v11, v12, 4, v11")
    A(f"s_lshl_b32 {sT0}, {sW}, 12\ns_add_u32 {sT0}, {sT0}, {SCR}\nv_lshlrev_b32 v11, 7, v11\nv_lshl_add_u32 v11, v15, 5, v11\nv_lshl_add_u32 v11, {vQ}, 3, v11\nv_add_u32 v11, {sT0}, v11")
    A(f"v_lshrrev_b32 v12, 2, {vLane}\nv_lshlrev_b32 v12, 7, v12\nv_bfe_u32 v15, {vLane}, 3, 2\nv_lshl_add_u32 v12, v15, 5, v12\nv_and_b32 v15, 3, v1\nv_lshl_add_u32 v12, v15, 3, v12\nv_add_u32 v12, {sT0}, v12")
    for i in range(4): A(f"v_xor_b32 v{160+i}, {32*i}, v11\nv_xor_b32 v{164+i}, {32*i}, v12")
    A(f"s_lshl_b32 {sT1}, {sR}, 1\ns_add_u32 {sT1}, {sT1}, {sSH}\ns_mul_i32 {sT0}, {sT1}, 57344\ns_lshl_b32 {sT1}, {sCA}, 13\ns_add_u32 {sT0}, {sT0}, {sT1}")
    A(f"s_lshl_b32 {sT1}, {sET}, 12\ns_add_u32 {sT0}, {sT0}, {sT1}\ns_add_u32 {sKB}, {sT0}, {Z2N}\ns_cmp_eq_u32 {sCA}, 7\ns_cselect_b32 {sKB}, {WS_SIZE}, {sKB}")
    A.flush("W%d" % (OPT["gat"] + 5)); A.st("pre_stat", 2)
    poll(ld, tagcmp([g + 4 * k + 2 for k in range(7)]), tokS, True)
    A.stamp(4)
    for k in range(1, 7): A(f"v_pk_add_f32 {vr(g,2)}, {vr(g,2)}, {vr(g+4*k,2)}")
    xreduce((P32,), [g, g + 1], [g + 2, g + 3])
    A(f"v_mul_f32 {vr(g)}, {fbits(1/896)}, {vr(g)}\nv_mul_f32 {vr(g+1)}, {fbits(1/896)}, {vr(g+1)}")
    A(f"v_fma_f32 {vr(g+1)}, -{vr(g)}, {vr(g)}, {vr(g+1)}\nv_max_f32 {vr(g+1)}, 0, {vr(g+1)}\nv_add_f32 {vr(g+1)}, {fbits(1e-5)}, {vr(g+1)}\nv_rsq_f32 {vr(g+2)}, {vr(g+1)}\ns_nop 0")
    A(f"v_mul_f32_e64 {vr(g+3)}, -{vr(g)}, {vr(g+2)}\nv_mov_b32 {vr(g+4)}, {vr(g+2)}\nv_mov_b32 {vr(g+5)}, {vr(g+3)}\ns_nop 1\n{P16} {vr(g+2)}, {vr(g+4)}\n{P16} {vr(g+3)}, {vr(g+5)}\ns_nop 1")
    for xt in (0, 1):
        for i in range(4):
            b = vZ + 16 * xt + 4 * i; pp = vr(g + 2 + 2 * xt, 2)
            for p in (0, 2): A(f"v_pk_fma_f32 {vr(b+p,2)}, {vr(b+p,2)}, {pp}, {pp} op_sel:[0,0,1] op_sel_hi:[1,0,1]")
            A(f"v_cvt_pk_bf16_f32 {vr(b)}, {vr(b)}, {vr(b+1)}\nv_cvt_pk_bf16_f32 {vr(b+1)}, {vr(b+2)}, {vr(b+3)}")
            A.ds(f"ds_write_b64 v{160+i}, {vr(b,2)} offset:{xt*1024}")
    A.wait_all_lg()
    for i in range(4):
        A.ds(f"ds_read_b64_tr_b16 {vr(ZH+4*i,2)}, v{164+i}")
        A.ds(f"ds_read_b64_tr_b16 {vr(ZH+4*i+2,2)}, v{164+i} offset:2048")
    A.wait_all_lg()
    for i in range(4): A.tok["Z"] = A.vmem(f"buffer_store_dwordx4 {vr(ZH+4*i,4)}, {vL16}, {sWS}, {sKB} offen offset:{1024*i} sc1")
    A.stamp(5)

ring = [48, 52, 56, 60, 64, 20, 24, 28, 236, 248, 252, 228, 232] + [40, 44, 32, 240, 244]
ONE = [208, 212, 216, 220, 224, 68, 72, 76] if OPT["npx"] else []
NPRE = 13 + len(ONE)
def zreg(n): return ONE[n] if n < len(ONE) else ring[(n - len(ONE)) % len(ring)]
tz = {}
def zpos(n): return divmod(n, 4) if n < 64 else ((n - 64) // 2, 4 + (n & 1)) if n < 96 else (n - 96, 6)
def z_item(n):
    ks, ft = zpos(n); pre = ""
    if ft in (0, 4) or (ft == 6 and ks % 2 == 0):
        add = (57344 if ks & 1 else 0) + (4096 if ft else 0)
        pre = f"s_bfe_u32 {sZ}, {sROT}, {(4<<16)|(4*(ks>>1))}\ns_mul_i32 {sZ}, {sZ}, 114688" + (f"\ns_add_u32 {sZ}, {sZ}, {add}" if add else "")
    elif ft == 6: pre = f"s_add_u32 {sZ}, {sZ}, 57344"
    return (pre, f"buffer_load_dwordx4 {vr(zreg(n),4)}, {vZA}, {sWS}, {sZ} offen offset:{(ft&3)*1024} sc1")
def mid_B():
    A(f"s_add_u32 {sT0}, {sW2048}, {SL[6]}\nv_add_u32 v12, {sT0}, {vXrd0}\nv_add_u32 v13, {sT0}, {vXrd1}")
    for x in (1, 2, 3): A(f"v_xor_b32 v{12+2*x}, {2048*x}, v12\nv_xor_b32 v{13+2*x}, {2048*x}, v13")
    P = Pipe()
    c_read(0)
    gbar("X3", False)
    pushc(2); pushc(3)
    def fz():
        A.wait_named("Z"); A("s_barrier")
        A(f"s_lshl_b32 {sT0}, {sCA}, 12\ns_lshl_b32 {sT1}, {sR}, 7\ns_add_u32 {sT0}, {sT0}, {sT1}\ns_add_u32 {sT0}, {sT0}, {FLAGZ}")
        flag_store(sT0, True); A.stamp(6)
    hk = {4: fz}
    for j, ks in enumerate(CK): hk[ks] = (lambda j=j: cnext(j + 1))
    for G in range(4): stageB(P, G, hk)
    P.run(OPT["look"])
    A.stamp(8)
    A("s_barrier")
    tk = flagZ_issue()
    for j in range(len(CK) + 1, 5): cnext(j)
    A(f"s_mul_i32 {sT0}, {sC}, 7168\ns_mul_i32 {sT1}, {sW}, {16*57344}\ns_add_u32 {sT0}, {sT0}, {sT1}\ns_add_u32 {sT0}, {sT0}, {Z2N}\nv_add_u32 {vZA}, {sT0}, {vL16}")
    def pz():
        poll(LDZ, tagcmp([246]), tk); A.stamp(9)
        for n in range(NPRE): A.push([z_item(n)], "z%d" % n)
    b_epilogue(pz)
    for n in range(NPRE): tz[n] = A.tok["z%d" % n]
    A.stamp(10)

FIX = []
def back():
    A.raw('Lph_p2:')
    A.stamp(11)
    ACC = 116; CF = 68; R = len(ring)
    FB = [zreg(n) for n in range(94, 102)]
    def zload(n):
        pre, ins = z_item(n)
        if pre: A.raw(pre)
        tz[n] = A.vmem(ins)
    F = []
    for u in (1, 2, 3):
        F += [f"s_add_u32 {sT0}, {sW}, {u}\ns_and_b32 {sT0}, {sT0}, 3", f"s_mul_i32 {sT0}, {sT0}, 21504\ns_add_u32 {sT0}, {sT0}, {(u-1)*7168}", f"v_add_u32 v{15+u}, {sT0}, {vL16}"]
    F += [f"s_mul_i32 {sT0}, {sW}, 21504\nv_add_u32 v19, {sT0}, {vL16}"]
    F += [f"s_sub_u32 {sT0}, 32, {sR}\ns_min_u32 {sT0}, {sT0}, {sR}", f"s_and_b32 {sT0}, {sT0}, 15\ns_mul_i32 {sT0}, {sT0}, 139264", f"s_add_u32 {sT0}, {sT0}, {F2}\ns_mul_i32 {sT1}, {sW}, 8704",
          f"s_add_u32 {sT0}, {sT0}, {sT1}\ns_lshl_b32 {sT1}, {sC}, 6", f"s_cmp_ge_u32 {sC}, 4\ns_cselect_b32 s21, 0x300, 0\ns_cselect_b32 {sT2}, 48, 0", f"s_add_u32 {sT2}, {sT2}, {sT1}\nv_add_u32 v12, {sT2}, {vI16}",
          "v_sub_u32 v13, 512, v12", "v_min_u32 v12, v12, v13", f"s_mov_b32 {sT2}, {8*4352}\nv_lshlrev_b32 v12, 4, v12", f"v_mad_u32_u24 v12, {vQ}, {sT2}, v12", f"v_add_u32 v12, {sT0}, v12"]
    F += [f"v_lshrrev_b32 v13, 3, {vLane}", "v_mul_u32_u24 v13, 9, v13", f"v_add_u32 v13, {sT1}, v13", "v_sub_u32 v114, 512, v13", "v_min_u32 v13, v13, v114",
          "v_bfe_u32 v13, v13, 5, 3", "v_and_b32 v114, 6, v1", "v_lshlrev_b32 v114, 2, v114", "v_and_or_b32 v114, v1, 1, v114", "v_lshl_add_u32 v13, v13, 5, v114", "v_lshlrev_b32 v13, 7, v13",
          f"s_lshl_b32 {sT0}, {sW}, 8\ns_add_u32 {sT0}, {sT0}, {FLAGF}", f"v_add_u32 v13, {sT0}, v13"]
    F += [f"s_mov_b32 {sSEL[0]}, 0x03020100\ns_mov_b32 {sSEL[1]}, 0x01000302", f"s_cmp_lt_u32 {sR}, 16\ns_cselect_b32 {sM0}, 0x80000000, 0", f"s_or_b32 {sM1}, {sM0}, 0x8000",
          f"s_cmp_eq_u32 {sR}, 0\ns_cselect_b32 {sSEL[0]}, 0x0c0c0100, {sSEL[0]}\ns_cselect_b32 {sSEL[1]}, 0x0c0c0302, {sSEL[1]}",
          f"s_cmp_eq_u32 {sR}, 16\ns_cselect_b32 {sSEL[0]}, 0x01000c0c, {sSEL[0]}\ns_cselect_b32 {sSEL[1]}, 0x03020c0c, {sSEL[1]}\ns_cselect_b32 {sM1}, 0x80000000, {sM1}",
          f"s_cmp_ge_u32 {sC}, 4\ns_cselect_b32 {sT3}, 0x80008000, 0\ns_xor_b32 {sM1}, {sM1}, {sT3}"]
    F += [f"s_mul_i32 {sT0}, {sC}, {OPT['prot']}\ns_add_u32 s47, {sW}, {sT0}\ns_and_b32 s47, s47, 3", f"s_mul_i32 {sKB}, {sR}, {4*28672}\ns_add_u32 {sKB}, {sKB}, {HB}", f"s_mul_i32 {sT0}, s47, 7168\ns_add_u32 {sKB}, {sKB}, {sT0}",
          f"s_mul_i32 s20, {sC}, 114688\ns_mul_i32 {sT0}, s47, 28672", f"s_add_u32 s20, s20, {sT0}\ns_add_u32 s20, s20, {WOP}"]
    for u in range(4):
        F += [f"s_add_u32 {sT0}, {sW}, {u}\ns_and_b32 {sT0}, {sT0}, 3", f"s_mul_i32 {sT0}, {sT0}, 28672\ns_add_u32 s{24+u}, {sT0}, {sKB}"]
    F += [f"s_lshl_b32 {sT0}, {sW}, 1\nv_lshlrev_b32 v11, 3, {vQ}", f"v_add_u32 v11, {sT0}, v11", "v_cvt_f32_u32 v11, v11"]
    gu = [vG, "v14", "v15", "v6"]
    F += [f"v_mul_f32 {vOMG}, {fbits(1.4426950408889634)}, {vG}", f"v_exp_f32 {vOMG}, {vOMG}", f"v_add_f32 {vOMG}, 1.0, {vOMG}", f"v_rcp_f32 {vOMG}, {vOMG}"]
    for g_ in gu: F += [f"v_mul_f32 {g_}, {fbits(-1.4426950408889634)}, {g_}", f"v_exp_f32 {g_}, {g_}", f"v_add_f32 {g_}, 1.0, {g_}", f"v_rcp_f32 {g_}, {g_}"]
    for u in range(4):
        F += [f"s_sub_i32 {sT0}, {sCU[u]}, {sCU[0]}\ns_ashr_i32 {sT0}, {sT0}, 12", f"v_add_u32 v4, {sT0}, {vTrow}", "v_cvt_f32_u32 v4, v4", f"v_mul_f32 v4, {fbits(1/2048)}, v4", "v_mul_f32 v5, v4, v11"]
        for k in (0, 1):
            for g2 in (0, 1):
                d = CF + 8 * u + 4 * k + 2 * g2
                F += [f"v_fmamk_f32 v114, v4, {fbits(float(k+32*g2))}, v5"] + (["v_fract_f32 v114, v114"] if OPT["fract"] else []) + ["v_sin_f32 v115, -v114", "v_cos_f32 v114, v114",
                      f"v_mul_f32 v115, {gu[u]}, v115", f"v_mul_f32 v114, {gu[u]}, v114", "v_cvt_pk_bf16_f32 v114, v114, v115",
                      f"v_perm_b32 {vr(d)}, v114, v114, {sSEL[0]}", f"v_perm_b32 {vr(d+1)}, v114, v114, {sSEL[1]}",
                      f"v_xor_b32 {vr(d)}, {sM0}, {vr(d)}", f"v_xor_b32 {vr(d+1)}, {sM1}, {vr(d+1)}"]
    F += [f"v_lshlrev_b32 v6, 10, {vTrow}", f"v_bfe_u32 v114, {vLane}, 4, 1", "v_lshl_add_u32 v6, v114, 5, v6", f"v_lshrrev_b32 v114, 5, {vLane}", "v_lshl_add_u32 v6, v114, 4, v6",
          f"v_lshlrev_b32 v14, 3, {vLane}", "v_and_b32 v15, 56, v14", "v_lshlrev_b32 v15, 4, v15"]
    F += [f"s_mul_i32 s46, s47, 896\ns_add_u32 s46, s46, {FLAGQ}", "v_min_u32 v115, 768, v15"]
    F += [f"s_lshl_b32 {sT0}, s47, 13\ns_lshl_b32 {sT1}, {sR}, 7", f"s_add_u32 {sT0}, {sT0}, {sT1}\ns_add_u32 {sT0}, {sT0}, {FLAGF}", f"s_sub_u32 {sT0}, {sT0}, s46\nv_and_b32 v114, 1, v1", f"v_lshl_add_u32 v114, v114, 12, {sT0}",
          "v_cmp_lt_u32 vcc, 31, v1\ns_nop 1\nv_cndmask_b32 v115, v115, v114, vcc"]
    F += ["v_bfe_u32 v15, v1, 1, 2", "v_mul_u32_u24 v15, 28672, v15", "v_and_b32 v114, 1, v1", "v_lshl_add_u32 v15, v114, 9, v15"]
    nsetup = len(F)
    F = deque(F)
    def red_w(ft): return [(lambda u=u: A.ds(f"ds_write_b128 v{15+u}, {vr(ACC+(ft*4+u)*4,4)} offset:{ft*1024}")) for u in (1, 2, 3)]
    tk = {}
    def red_r(ft):
        def f(u): tk[ft] = A.ds(f"ds_read_b128 {vr(ACC+(ft*4+u)*4,4)}, v19 offset:{(u-1)*7168+ft*1024}")
        return [(lambda u=u: f(u)) for u in (1, 2, 3)]
    def hst(t): tk["h"] = A.vmem(t)
    def epi(ft):
        b = ACC + ft * 16; hq = ACC + (ft & ~1) * 16 + 12 + 2 * (ft & 1); z = b + 4
        E = [f"v_add_f32 {vr(b+p)}, {vB}, {vr(b+p)}" for p in range(4)]
        E += [lambda: A.wait_lg(tk[ft])]
        E += [f"v_add_f32 {vr(b+p)}, {vr(b+p)}, {vr(b+4+p)}" for p in range(4)] + [f"v_add_f32 {vr(b+8+p)}, {vr(b+8+p)}, {vr(b+12+p)}" for p in range(4)]
        for k in (0, 1): E += [f"v_lshlrev_b32 {vr(z+2*k)}, 16, {vr(Z1P+2*ft+k)}", f"v_and_b32 {vr(z+2*k+1)}, 0xffff0000, {vr(Z1P+2*ft+k)}"]
        E += [f"v_add_f32 {vr(b+p)}, {vr(b+p)}, {vr(b+8+p)}" for p in range(4)]
        E += [f"v_mul_f32 {vr(z+p)}, {vOMG}, {vr(z+p)}" for p in range(4)]
        E += [f"v_mul_f32 {vr(b+p)}, {vr(b+p)}, {vr(z+p)}" for p in range(4)]
        E += [f"v_cvt_pk_bf16_f32 {vr(hq)}, {vr(b)}, {vr(b+1)}", f"v_cvt_pk_bf16_f32 {vr(hq+1)}, {vr(b+2)}, {vr(b+3)}"]
        if ft % 2: E += [lambda: hst(f"buffer_store_dwordx4 {vr(hq-2,4)}, {vL16}, {sWS}, s80 offen offset:{1024*(ft>>1)} sc1")]
        if ft == 6: E += [f"v_min_u32 {vr(hq)}, -2, {vr(hq)}", lambda: A.wait_vm(tk["h"]), lambda: A.vmem(f"buffer_store_dwordx2 {vr(hq,2)}, v14, {sWS}, s81 offen offset:3072 sc1")]
        return E
    def run(e): A.raw(e) if isinstance(e, str) else e()
    bar = lambda: (A.wait_all_lg(), A.raw("s_barrier"))
    def elist(fts, gap): return deque(sum((red_w(ft) for ft in fts), []) + [""] * gap + [bar] + sum((red_r(ft) for ft in fts), []) + [""] * gap + sum((epi(ft) for ft in fts), []))
    E1, E2 = elist(range(4), 16), elist((4, 5), 10)
    ldF = [f"buffer_load_dwordx2 v[2:3], v13, {sWS}, 0 offen sc1", f"buffer_load_dwordx2 v[4:5], v115, {sWS}, s46 offen sc1"]
    A.per = 56
    NPF = OPT["npf"]
    for j in range(max(5, len(CK) + 1), 8): c_read(j)
    nxt = NPRE
    late = [(f"s_add_u32 {sBG}, s20, {(m>>2)*4096}" if m % 4 == 0 else "", f"buffer_load_dwordx4 {ar(4*m,4)}, {vL16}, {sWS}, {sBG} offen offset:{(m&3)*1024} sc1") for m in range(28)]
    fl = [(f"s_xor_b32 {sBG}, s21, {et*256}" + (f"\ns_add_u32 {sBG}, {sBG}, 4352" if k else ""), f"buffer_load_dwordx4 {vr(FB[k*4+et],4)}, v12, {sWS}, {sBG} offen sc1") for k in (0, 1) for et in range(4)]
    for n in range(112):
        ks, ft = zpos(n)
        if n == 4: A.wait_all_lg()
        if n == 40: A("s_barrier")
        if n == NPF + R + 1: poll(ldF, tagcmp([2, 4]), tokPF)
        A.wait_vm(tz[n])
        for u in range(4):
            mfma(vr(ACC + (ft * 4 + u) * 4, 4), vr(zreg(n), 4), ar((ks * 4 + u) * 4, 4), "0" if ks == 0 else None)
            if n >= 4 and F: A.raw(F.popleft())
            for _ in range(1 if F else 2):
                if n >= 66 and E1: run(E1.popleft())
                elif n >= 98 and E2: run(E2.popleft())
            if u == 1 and nxt < max(n, len(ONE)) + R and nxt < 112: zload(nxt); nxt += 1
        if nxt < max(n + 1, len(ONE)) + R and nxt < 112: zload(nxt); nxt += 1
        if n == NPF:
            assert n * 4 - 16 > nsetup
            for l in ldF: tokPF = A.vmem(l)
        if n >= 94 and n < 102: assert FB[n - 94] == zreg(n); A.push([fl[n - 94]], "FL" if n == 101 else None)
        if n == 103: A.push(late, "WO")
    assert not F and not E1
    while E2: run(E2.popleft())
    A("s_nop 7")
    A.stamp(12)
    A.raw('Lph_tail:')
    for e in elist((6,), 0): run(e)
    A.stamp(13)
    OA = 116
    RED2 = 98304
    for u in (1, 2, 3):
        A(f"s_add_u32 {sT0}, {sW}, {u}\ns_and_b32 {sT0}, {sT0}, 3\ns_mul_i32 {sT0}, {sT0}, 12288\ns_add_u32 {sT0}, {sT0}, {RED2+(u-1)*4096}\nv_add_u32 v{15+u}, {sT0}, {vL16}")
    A(f"s_mul_i32 {sT0}, {sW}, 12288\ns_add_u32 {sT0}, {sT0}, {RED2}\nv_add_u32 v19, {sT0}, {vL16}\ns_lshl_b32 {sT1}, {sC}, 7\ns_add_u32 {sT2}, {sT1}, {1024*1024}")
    if OPT["ofl"]: A(f"v_bfe_u32 v13, v1, 3, 1\nv_mul_u32_u24 v13, {1024*1024-64}, v13\nv_sub_u32 v6, v6, v13")
    for u in range(4): A(f"s_add_u32 {sCU[u]}, s{24+u}, 4096")
    A.wait_named("FL")
    for k in (0, 1):
        for u in range(4):
            for et in range(4): mfma(vr(OA + 16 * u + 4 * et, 4), vr(FB[k * 4 + et], 4), vr(CF + 8 * u + 4 * k, 4), "0" if k == 0 else None)
    A.flush()
    A.stamp(14)
    ldH = [f"buffer_load_dword v2, v15, {sWS}, {sKB} offen offset:3072 sc1"]
    hr = list(range(180, 256, 4)) + [20, 24, 28, 32, 56, 60, 64, 68, 72]
    th = {}
    order = [(u, ls) for u in (1, 2, 3, 0) for ls in range(7)]
    def htext(n):
        u, ls = order[n]; h = hr[n]
        sb = f"s{24+u}" if ls < 4 else sCU[u]; io = (ls & 3) * 1024
        if ls == 3: return [f"buffer_load_dwordx2 {vr(h+2*k,2)}, v14, {sWS}, {sb} offen offset:{io+512*k} sc1" for k in (0, 1)]
        return [f"buffer_load_dwordx4 {vr(h,4)}, {vL16}, {sWS}, {sb} offen offset:{io} sc1"]
    def hload(n):
        if n < 28:
            for t_ in htext(n): th[n] = A.vmem(t_)
    HL = OPT["hl"]
    tokPH = A.vmem(ldH[0])
    if OPT["spec"]:
        for n in range(HL): hload(n)
    A.stamp(15)
    poll(ldH, "v_cmp_eq_u32 vcc, -1, v2", tokPH, sleep=OPT["hsleep"], redo=[t_ for n in range(HL) for t_ in htext(n)] if OPT["spec"] else None)
    A.stamp(16)
    if not OPT["spec"]:
        for n in range(HL): hload(n)
    def chk(n): return f"v_max_u32 v2, {vr(hr[n])}, {vr(hr[n]+2)}\nv_cmp_eq_u32 vcc, -1, v2" if order[n][1] == 3 else f"v_cmp_eq_u32 vcc, -1, {vr(hr[n])}"
    def br(n):
        A.raw(f"s_cbranch_vccnz Lfix{n}\nLbk{n}:")
        FIX.append(f"Lfix{n}:\ns_mov_b32 {sSPIN}, 0x40000\nLfl{n}:\n" + "\n".join(htext(n)) + f"\ns_waitcnt vmcnt(0)\n{chk(n)}\ns_cbranch_vccz Lbk{n}\ns_sub_u32 {sSPIN}, {sSPIN}, 1\ns_cmp_lg_u32 {sSPIN}, 0\ns_cbranch_scc1 Lfl{n}\ns_branch Lbk{n}")
    A.wait_vm(th[0])
    for n in range(28):
        u, ls = order[n]
        A.wait_vm(th[n])
        if n in (0, 7, 14, 21, 26): A.st("h%d" % n, 2)
        for et in range(4):
            mfma(vr(OA + 16 * u + 4 * et, 4), ar((ls * 4 + et) * 4, 4), vr(hr[n], 4))
            if et == 1 and n < 27 and order[n + 1][1] == 3: A.wait_vm(th[n + 1]); A.raw(chk(n + 1))
        if n < 27 and order[n + 1][1] == 3: br(n + 1)
        hload(n + HL)
        if n in (8, 15, 22):
            up = order[n - 2][0]
            for et in range(4): A.ds(f"ds_write_b128 v{15+up}, {vr(OA+16*up+4*et,4)} offset:{et*1024}")
        if n == 25:
            A.wait_all_lg(); A.st("hb", 2); A("s_barrier")
            for k in range(12): A.ds(f"ds_read_b128 {vr(OA+16+4*k,4)}, v19 offset:{k*1024}")
    A.wait_all_lg()
    for p in range(0, 16, 2): A(f"v_pk_add_f32 {vr(OA+16+p,2)}, {vr(OA+16+p,2)}, {vr(OA+32+p,2)}")
    for p in range(0, 16, 2): A(f"v_pk_add_f32 {vr(OA+p,2)}, {vr(OA+p,2)}, {vr(OA+48+p,2)}")
    for p in range(0, 16, 2): A(f"v_pk_add_f32 {vr(OA+p,2)}, {vr(OA+p,2)}, {vr(OA+16+p,2)}")
    for et in range(4):
        A(f"v_cvt_pk_bf16_f32 v{40+2*et}, {vr(OA+4*et)}, {vr(OA+4*et+1)}\nv_cvt_pk_bf16_f32 v{41+2*et}, {vr(OA+4*et+2)}, {vr(OA+4*et+3)}")
    A("s_nop 1")
    for pr in (0, 1): A(f"{P16} v{40+4*pr}, v{42+4*pr}\n{P16} v{41+4*pr}, v{43+4*pr}")
    osc = ('', 'sc1', 'nt', 'sc0 sc1', 'sc1 nt')[OPT['osc']]
    if OPT["ofl"]:
        for k in range(4): A(f"v_mov_b32 v{48+k}, v{40+k}")
        for k in range(4): A(f"v_mov_b32_dpp v{40+k}, v{44+k} row_ror:8 row_mask:0xf bank_mask:0xc")
        for k in range(4): A(f"v_mov_b32_dpp v{44+k}, v{48+k} row_ror:8 row_mask:0xf bank_mask:0x3")
        for pr in (0, 1): A.vmem(f"buffer_store_dwordx4 {vr(40+4*pr,4)}, v6, {sOUT}, {sT2 if pr else sT1} offen {osc}")
    else:
        A("s_nop 1")
        for pr in (0, 1): A.vmem(f"buffer_store_dwordx4 {vr(40+4*pr,4)}, v6, {sOUT}, {sT1} offen offset:{64*pr} {osc}")
    A.stamp(17)
    lb = A.lab("Lnobump")
    A(f"s_or_b32 {sT0}, s2, {sW}\ns_cmp_lg_u32 {sT0}, 0\ns_cbranch_scc1 {lb}")
    A(f"v_mov_b32 v11, {EPOCH}\ns_mov_b64 exec, 1\nbuffer_store_dwordx2 v[38:39], v11, {sWS}, 0 offen sc1\ns_mov_b64 exec, -1\n{lb}:")
    if OPT["diag"] >= 0:
        A(f"s_cmp_lg_u32 s2, 9\ns_cbranch_scc1 Lend\ns_sub_u32 s96, s96, s98\ns_lshl_b32 s96, s96, 3\ns_add_u32 s96, s96, 5000\nLdiag:\ns_memrealtime s[100:101]\ns_waitcnt lgkmcnt(0)\ns_sub_u32 s100, s100, s98\ns_cmp_lt_u32 s100, s96\ns_cbranch_scc1 Ldiag")
    if OPT["prof"]:
        A("s_memrealtime s[100:101]\ns_waitcnt lgkmcnt(0)\nv_writelane_b32 v0, s100, 63")
        A(f"s_lshl_b32 {sT0}, s2, 2\ns_add_u32 {sT0}, {sT0}, {sW}\ns_lshl_b32 {sT0}, {sT0}, 8\ns_add_u32 {sT0}, {sT0}, {TS}\nv_lshlrev_b32 v11, 2, v1\nbuffer_store_dword v0, v11, {sWS}, {sT0} offen")

if OPT['ce']: OPT['x0'] = 3
prologue()
A(f"s_cmp_eq_u32 {sCA}, 7\ns_cbranch_scc1 Llead")
st = (list(A.vm), list(A.lg))
front_main()
assert not A.bg
A.raw("Ljoin:")
front2()
mid_B()
back()
A("s_branch Lend")
A.raw("Llead:")
A.vm, A.lg = st; A.tok = {}; A.per = OPT["per"]
front_lead()
assert not A.bg
A("s_branch Ljoin")
for f_ in FIX: A.raw(f_)
A("Lend:\ns_endpgm")

hdr = open("cdna_kernels/%s.s.ref" % NAME).read().split("; Override launch")[0]
if OPT["prof"]: hdr += "; STAMPS " + " ".join(A.names) + "\n"
out = hdr + "; @launch grid=(256,1,1) block=(256,1,1) lds=%d\n" % LDS_SIZE
out += '.amdgcn_target "amdgcn-amd-amdhsa--gfx950"\n.text\n.globl %s_kernel\n.p2align 8\n.type %s_kernel,@function\n%s_kernel:\n' % (NAME, NAME, NAME)
def addnt(l):
    t = l.strip()
    if OPT["nt"] and (t.startswith("buffer_load") or t.startswith("global_load")) and sWS not in t:
        return l[:-4] + " nt lds" if t.endswith(" lds") else l + " nt"
    return l
if OPT["wx"] == 1: A.L = [l.replace(" sc1", "") if ("v25," in l or "v26," in l) and "a[" in l else l for l in A.L]
if OPT["wx"] == 2: A.L = [l for l in A.L if not ("v26," in l and "a[" in l)]
if OPT["wx"] == 3: A.L = [l.replace("v26, s[40:43]", "v25, s[28:31]").replace("s_mul_i32 s3, s94,", "s_add_u32 s3, s3, 1024 ;") for l in A.L]
if OPT["ph"]:
    i1, i2 = A.L.index("Lph_p2:"), A.L.index("Lph_tail:")
    kinds = {1: ("v_mfma",), 2: ("v_mfma",), 3: ("v_mfma", "ds_read"), 4: ("v_pk_", "v_exp", "v_rcp", "v_cos", "v_sin", "v_fmamk", "v_cvt_pk")}[OPT["ph"]]
    A.L = [l for i, l in enumerate(A.L) if not (l.strip().startswith(kinds) and ((i1 < i < i2) if OPT["ph"] == 1 else (i < i1)))]
ab = OPT["abl"]
def ablate(i, l):
    t = l.strip()
    oob = lambda reg: l.replace(reg, "v19x")
    if not t.startswith("buffer_"): return True
    if ab == 1: return not ("v25," in t or "v26," in t)
    if ab == 2: return not ("v29," in t or "v30," in t)
    if ab == 3: return not ("v35," in t)
    if ab == 4: return not (t.startswith("buffer_load_dwordx4 a[") and ", v7," in t)
    if ab == 5: return not (", v37," in t and "offset:1024" in t)
    if ab == 6: return not (t.startswith("buffer_load_dwordx4 a[") and ", v12," in t)
    if ab == 7: return not ("v28," in t or any("v%d," % k in t for k in (113, 115, 117, 119)))
    if ab == 8: return not ("v[236:239]" in t and "s80" in t)
    if ab == 9: return not (t.startswith("buffer_store_dwordx4 v[22") or t.startswith("buffer_store_dwordx4 v[232"))
    return True
if ab: A.L = [l for i, l in enumerate(A.L) if ablate(i, l)]
def keep(l):
    t = l.strip()
    if OPT["strip"] == 1: return not t.startswith(("v_mfma", "ds_", "v_pk_", "v_exp", "v_rcp", "v_cos", "v_sin", "v_fract", "v_fmamk", "v_cvt_pk", "v_perm_b32"))
    if OPT["strip"] == -1: return not (t.startswith("buffer_store_dwordx2 v[1") and ", v14, " in t)
    if OPT["strip"] == -2: return not t.startswith("s_cbranch_vccnz Lfix")
    if OPT["strip"] == -3: return not (t.startswith("s_cbranch_vccnz Lfix") or t.startswith("v_mfma"))
    if OPT["strip"] == 3 and t.startswith("ds_read"): return False
    if OPT["strip"] == 4 and t.startswith("s_waitcnt lgkmcnt") and not t.endswith("(0)"): return False
    if OPT["strip"] == 5 and t.startswith("v_mfma"): return False
    if OPT["strip"] == 6 and t.startswith("s_barrier"): return False
    if OPT["strip"] >= 2: return not (t.endswith(" lds") or (t.startswith("buffer_load_dwordx4") and (", v37, " in t or ", v7, " in t or " a[" in t)))
    return True
out += "\n".join(addnt(l) for l in A.L if keep(l)) + "\n"
out += """.section .rodata,"a"
.p2align 6
.amdhsa_kernel %s_kernel
  .amdhsa_next_free_vgpr 512
  .amdhsa_next_free_sgpr 102
  .amdhsa_accum_offset 256
  .amdhsa_group_segment_fixed_size 0
  .amdhsa_kernarg_size 112
  .amdhsa_user_sgpr_count 2
  .amdhsa_user_sgpr_kernarg_segment_ptr 1
  .amdhsa_system_sgpr_workgroup_id_x 1
.end_amdhsa_kernel
""" % NAME
def align_pass(out):
    import subprocess, re, os
    tmp = "_al_%d" % os.getpid()
    open(tmp + ".s", "w").write(out)
    subprocess.run(["clang", "-x", "assembler", "-target", "amdgcn-amd-amdhsa", "-mcpu=gfx950", "-c", tmp + ".s", "-o", tmp + ".o"], check=True)
    dis = subprocess.run(["llvm-objdump", "-d", "--mcpu=gfx950", tmp + ".o"], capture_output=True, text=True).stdout
    os.remove(tmp + ".s"); os.remove(tmp + ".o")
    info = [(m.group(1), len(m.group(2).split()) * 4) for m in re.finditer(r"^\t(\S+).*// [0-9A-F]+: ([0-9A-F ]+)", dis, re.M)]
    lines = out.split("\n")
    idx = [i for i, l in enumerate(lines) if l.startswith("    ") and not l.strip().startswith((";", "."))]
    assert len(idx) == len(info), (len(idx), len(info))
    off = 0; cand = None; n = 0
    for k, (i, (op, sz)) in enumerate(zip(idx, info)):
        if sz == 8 and off % 8 == 4 and cand is not None and k - cand <= OPT["algn"] * 6:
            j = idx[cand]; t = lines[j].split(None, 1)
            lines[j] = "    " + t[0] + "_e64 " + t[1]; off += 4; cand = None; n += 1
        if sz == 4 and op.endswith("_e32") and not op.startswith(("v_readfirstlane", "v_permlane", "v_swap", "v_cndmask", "v_cmp")): cand = k
        elif sz == 8: cand = None
        off += sz
    return "\n".join(lines)
if OPT["algn"]: out = align_pass(out)
open(sys.argv[1], "w").write(out)
```

```python
import sys, struct
from collections import deque
NAME = "gated_mix__spectral_fnet__mixer_gmlp__prompt"
OPT = dict(diag=-1, hl=10, p2st=0, strip=0, ahead=0, sleep=4, npf=76, nt=0, rota=3, rotc=1, prof=0, xmap=1, per=56, pera=40, look=12, gat=6, prot=0, tlb=1, ce=0, hw=0, spec=0, sn=6, fa=10, eb=0, ea=1, hf=5, sb=13, rot2=0, cp=0, wo=97, pert=56, no=2, ph=0, fl=1, ser=0, warm=1, wb=2, perg=90, ssleep=16, wx=0, kz=11, kc=13, per2=100, osc=2, ofl=1, npx=1, algn=1, pois=3, pp=8, abl=0, x0=1, hsleep=1, xrot=0, fa1=1, ntc=0, ck=0, rt=0, fract=0)
for a in sys.argv[2:]:
    k, v = a.split("="); OPT[k] = int(v)

def fbits(x): return "0x%08x" % struct.unpack("<I", struct.pack("<f", x))[0]
def cost(ln):
    op = ln.split()[0]
    if op.startswith("v_mfma"): return 16
    if op in ("v_exp_f32", "v_rcp_f32", "v_rsq_f32", "v_sin_f32", "v_cos_f32"): return 8
    if op.startswith("ds_read"): return 0
    if op == "s_nop": return 4 * (int(ln.split()[1]) + 1)
    return 4

class Asm:
    def __init__(s):
        s.L = []; s.vm = []; s.lg = []; s.n = 0; s.nlab = 0; s.nst = 0
        s.names = []; s.bg = deque(); s.acc = 0; s.lock = 0; s.tok = {}; s.per = OPT["per"]
    def raw(s, t):
        for ln in t.split("\n"):
            ln = ln.strip()
            if not ln: continue
            if ln.endswith(":"): s.L.append(ln)
            else: s.L.append("    " + ln); s.acc += cost(ln)
    def __call__(s, t):
        s.raw(t); s.tick()
    def tick(s):
        if s.lock or not s.bg:
            if not s.bg: s.acc = min(s.acc, s.per)
            return
        if s.acc >= s.per: s.pop()
    def pop(s):
        pre, ins, name = s.bg.popleft()
        s.lock += 1
        if pre: s.raw(pre)
        if isinstance(ins, int): t = None; s.vm.append(("c", ins))
        else: t = s.vmem(ins)
        s.lock -= 1
        if name: s.tok[name] = t
        s.acc = 0
    def push(s, items, name=None):
        for i, (pre, ins) in enumerate(items): s.bg.append((pre, ins, name if i == len(items) - 1 else None))
    def front(s, items, name):
        while s.bg and "m0" not in s.bg[0][0]: s.pop()
        new = [(p, i, name if k == len(items) - 1 else None) for k, (p, i) in enumerate(items)]
        s.bg.extendleft(reversed(new))
    def flush(s, name=None):
        while s.bg and (name is None or name not in s.tok): s.pop()
    def wait_named(s, name):
        s.flush(name)
        t = s.tok[name]
        while s.bg and t in s.vm and len(s.vm) - 1 - s.vm.index(t) < OPT["ahead"]: s.pop()
        if t in s.vm and name[0] == "W" and name not in ("W11", "W15"): s.wait_vm(t)
        if t in s.vm:
            s.st("pre_" + name, 2); s.wait_vm(t); s.st("got_" + name, 2)
    def c(s, t): s.L.append("    ; " + t)
    def lab(s, p="L"):
        s.nlab += 1; return "%s%d" % (p, s.nlab)
    def vmem(s, t):
        if len(s.vm) >= 62: s.wait_vm(s.vm[len(s.vm) - 62])
        s.raw(t); s.n += 1; s.vm.append(s.n); return s.n
    def ds(s, t):
        if len(s.lg) >= 15: s.wait_lg(s.lg[len(s.lg) - 15])
        s.raw(t); s.n += 1; s.lg.append(s.n); n = s.n; s.tick(); return n
    def wait_vm(s, tok):
        if tok not in s.vm: return
        i = s.vm.index(tok); s.vm = s.vm[i + 1:]
        sites = [x[1] for x in s.vm if isinstance(x, tuple)]; n = len(s.vm) - len(sites)
        if sites:
            l = s.lab("Lw")
            s.raw("s_waitcnt vmcnt(%d)" % (n + 8))
            for x in sites: s.raw("s_cmp_eq_u32 s67, %d\ns_cbranch_scc1 %s" % (x, l))
            s.raw("s_waitcnt vmcnt(%d)\n%s:" % (n, l))
        else: s.raw("s_waitcnt vmcnt(%d)" % n)
    def wait_lg(s, tok):
        if tok not in s.lg: return
        i = s.lg.index(tok); s.raw("s_waitcnt lgkmcnt(%d)" % (len(s.lg) - 1 - i)); s.lg = s.lg[i + 1:]
    def wait_all_lg(s):
        if s.lg: s.raw("s_waitcnt lgkmcnt(0)")
        s.lg = []
    def stamp(s, k):
        if OPT["diag"] == k: s.raw("s_memrealtime s[96:97]\ns_waitcnt lgkmcnt(0)"); s.lg = []
        s.st(str(k))
    def st(s, name, lvl=1):
        if OPT["prof"] < lvl: return
        if name not in s.names: s.names.append(name)
        k = s.names.index(name); assert k < 61
        acc = s.acc
        s.raw(("s_memrealtime" if OPT["rt"] else "s_memtime") + " s[78:79]\ns_waitcnt lgkmcnt(0)\nv_writelane_b32 v0, s78, %d" % (k + 1)); s.lg = []; s.acc = acc
A = Asm()
def vr(b, n=1): return "v%d" % b if n == 1 else "v[%d:%d]" % (b, b + n - 1)
def ar(b, n=1): return "a%d" % b if n == 1 else "a[%d:%d]" % (b, b + n - 1)
def mfma(d, a, b, c=None): A("v_mfma_f32_16x16x32_bf16 %s, %s, %s, %s" % (d, a, b, d if c is None else c))

EPOCH, FLAGZ, FLAGF, FLAGP, FLAGQ, FLAGH, STAT = 0x0, 0x90000, 0x98000, 0x1000, 0x2000, 0xBE0000, 0x10000
Z2N, HB, F2, W1P, WOP, TS, WS_SIZE = 0x100000, 0x480000, 0x800000, 0xA20000, 0xB00000, 0xC00000, 0x1000000
SL = [16384 * i for i in range(10)]
PR = [32768 * i for i in range(5)]
SCR = SL[0]; Z1B = SL[6]; GX = SL[7]
LDS_SIZE = 163840
sX, sWIN, sWSP, sWOUT = ["s[%d:%d]" % (b, b + 3) for b in range(4, 20, 4)]
sAX = ["s20", "s21", "s22", "s23"]; sAW = ["s24", "s25", "s26", "s27"]
sWS, sOUT, sBSP, sGW, sTMP = ["s[%d:%d]" % (b, b + 3) for b in range(28, 48, 4)]
sROT, sBG2, sET, sSH = "s48", "s49", "s50", "s51"
sR, sC, sW = "s54", "s55", "s56"
sW2048, sW7168, sW8192 = "s57", "s58", "s59"
sCU = ["s60", "s61", "s62", "s63"]
sSEL = ["s64", "s65"]; sZ = "s66"; sSG = "s67"; sM0, sM1 = "s68", "s69"
sT0, sT1, sT2, sT3, sSPIN, sKB = "s70", "s71", "s72", "s73", "s74", "s75"
sGC = "s[76:77]"; sBG = "s3"; sCA = "s95"
vLane, vI16, vQ, vXrd0, vXrd1, vWrd, vL16, vTrow, vB, vG = ["v%d" % i for i in range(1, 11)]
vW1 = [25, 26]; vXA = [27, 28]; vXR = [29, 30]; vCb = [32, 33]; vCo = [34, 35]; vOMG = "v36"; vZA = "v37"
vR32 = 40; vWD = 48; vZ = 80; vAB = 112; vGA = 176; vFR = 180
vWA = list(range(112, 120)); vTA = list(range(120, 128))
P16, P32 = "v_permlane16_swap_b32", "v_permlane32_swap_b32"

def masked(mask_lo, mask_hi, fn):
    A.lock += 1
    A.raw(f"s_mov_b32 exec_lo, {mask_lo}\ns_mov_b32 exec_hi, {mask_hi}")
    r = fn()
    A.raw("s_mov_b64 exec, -1")
    A.lock -= 1
    return r
def flag_store(soff, w0=False):
    A("v_lshlrev_b32 v11, 3, v1")
    if w0: A(f"s_cmp_lg_u32 {sW}, 0\ns_cselect_b32 {soff}, {WS_SIZE}, {soff}")
    return masked(0xffff if OPT['fl'] else 1, 0, lambda: A.vmem(f"buffer_store_dwordx2 v[38:39], v11, {sWS}, {soff} offen sc1"))

def poll(loads, cmps, tok=None, skip7=False, sleep=None, redo=None):
    l, d, e = A.lab("Lspin"), A.lab("Ldone"), A.lab("Lredo")
    if tok is None:
        for t in loads: tok = A.vmem(t)
    A.lock += 1
    A.wait_vm(tok)
    if skip7: A.raw(f"s_cmp_eq_u32 {sCA}, 7\ns_cbranch_scc1 {d}")
    A.raw(cmps); A.raw(f"s_cbranch_vccz {d}\ns_mov_b32 {sSPIN}, 0x400000\n{l}:\ns_sleep {OPT['sleep'] if sleep is None else sleep}")
    for t in loads: A.raw(t)
    A.raw("s_waitcnt vmcnt(0)"); A.raw(cmps)
    A.raw(f"s_cbranch_vccz {e}\ns_sub_u32 {sSPIN}, {sSPIN}, 1\ns_cmp_lg_u32 {sSPIN}, 0\ns_cbranch_scc1 {l}\n{e}:")
    for t in redo or []: A.raw(t)
    A.raw(f"{d}:")
    A.lock -= 1
def tagcmp(regs):
    cm = f"v_cmp_ne_u64 vcc, s[52:53], {vr(regs[0],2)}"
    for k in regs[1:]: cm += f"\nv_cmp_ne_u64 s[78:79], s[52:53], {vr(k,2)}\ns_or_b64 vcc, vcc, s[78:79]"
    return cm

def gelu(base, n, t):
    for p0 in range(0, n, 8):
        ps = (p0, p0 + 2, p0 + 4, p0 + 6)
        for k, p in enumerate(ps): A(f"v_pk_mul_f32 {vr(t+2*k,2)}, {vr(base+p,2)}, {vr(base+p,2)}")
        for k, p in enumerate(ps): A(f"v_pk_fma_f32 {vr(t+2*k,2)}, {vr(t+2*k,2)}, {sGC}, {sGC} op_sel:[0,0,1] op_sel_hi:[1,0,1]")
        for k, p in enumerate(ps): A(f"v_pk_mul_f32 {vr(t+2*k,2)}, {vr(t+2*k,2)}, {vr(base+p,2)}")
        for k in range(8): A(f"v_exp_f32 {vr(t+k)}, {vr(t+k)}")
        for k, p in enumerate(ps): A(f"v_pk_add_f32 {vr(t+2*k,2)}, {vr(t+2*k,2)}, 1.0 op_sel_hi:[1,0]")
        for k in range(8): A(f"v_rcp_f32 {vr(t+k)}, {vr(t+k)}")
        for k, p in enumerate(ps): A(f"v_pk_mul_f32 {vr(base+p,2)}, {vr(base+p,2)}, {vr(t+2*k,2)}")

def xreduce(ops, regs, tmps):
    for op in ops:
        for r, t in zip(regs, tmps): A(f"v_mov_b32 {vr(t)}, {vr(r)}")
        A("s_nop 1")
        for r, t in zip(regs, tmps): A(f"{op} {vr(t)}, {vr(r)}")
        A("s_nop 1")
        for r, t in zip(regs, tmps): A(f"v_add_f32 {vr(r)}, {vr(r)}, {vr(t)}")

def gen_cos(dst, nd, freq, base, kfun):
    for i in range(0, nd, 2):
        ks = [kfun(2 * i + z) for z in range(4)]
        for z in range(4): A(f"v_fmamk_f32 v{16+z}, {freq}, {fbits(float(ks[z]))}, {base}")
        if OPT["fract"]:
            for z in range(4): A(f"v_fract_f32 v{16+z}, v{16+z}")
        for z in range(4): A(f"v_cos_f32 v{16+z}, v{16+z}")
        A(f"v_cvt_pk_bf16_f32 {vr(dst(i))}, v16, v17\nv_cvt_pk_bf16_f32 {vr(dst(i+1))}, v18, v19")

def it_xa(G):
    return [(f"s_add_u32 m0, {sW2048}, {SL[6+G] + sub*8192 - 128*sub}\ns_nop 0" if h == 0 else "",
             f"buffer_load_dwordx4 {vr(vXA[h])}, {sX}, {sAX[G]} offen offset:{1024*h+128*sub} lds") for sub in (0, 1) for h in (0, 1)]
def it_xr(dst, G):
    return [(f"s_add_u32 m0, {sW2048}, {dst + sub*8192 - 128*(2*G+sub)}\ns_nop 0" if h == 0 else "",
             f"buffer_load_dwordx4 {vr(vXR[h])}, {sX}, 0 offen offset:{1024*h+128*(2*G+sub)} lds") for sub in (0, 1) for h in (0, 1)]
def it_w1(ks):
    return [(f"s_mov_b32 {sBG}, {ks*57344}", f"buffer_load_dwordx4 {ar(128+ks*8,4)}, {vr(vW1[0])}, {sWS}, {sBG} offen sc1"),
            (f"s_mul_i32 {sBG}, s94, {ks}", f"buffer_load_dwordx4 {ar(128+ks*8+4,4)}, {vr(vW1[1])}, {sGW}, {sBG} offen sc1")]
def it_w2(dst, G):
    return [(f"s_add_u32 m0, {'s101' if i else 's100'}, {dst}\ns_nop 0" if i in (0, 4) else "",
             f"buffer_load_dwordx4 {vr(vWA[i])}, {sWIN}, {sAW[G]} offen offset:{1024*(i&3)} lds") for i in range(8)]
def it_c(j, dst):
    it = []
    for u in range(4):
        for h in (0, 1):
            pre = ""
            if u == 0 and h == 0:
                pre = f"s_bfe_u32 {sBG2}, {sROT}, {(4<<16)|(4*j)}\ns_lshl_b32 {sBG2}, {sBG2}, 7\nv_or_b32 {vr(vCo[0])}, {sBG2}, {vr(vCb[0])}\nv_or_b32 {vr(vCo[1])}, {sBG2}, {vr(vCb[1])}\n"
            if h == 0: pre += f"s_add_u32 m0, {sW8192}, {dst + u*2048}\ns_nop 0"
            it.append((pre, f"buffer_load_dwordx4 {vr(vCo[h])}, {sWSP}, {sCU[u]} offen offset:{1024*h}{' nt' if j < OPT['ntc'] else ''} lds"))
    return it
IT_GATE = [("", f"buffer_load_ushort {vB}, v246, {sBSP}, 0 offen")]

class Pipe:
    def __init__(s): s.mf = []; s.rd = []; s.hooks = {}; s.pres = {}
    def pre(s, fn): s.pres[len(s.mf)] = fn
    def read(s, quad, text): s.rd.append([quad, text, len(s.mf)])
    def hook(s, fn): s.hooks[len(s.rd)] = fn
    def mfma(s, d, a, b, c, uses): s.mf.append((d, a, b, c, uses))
    def run(s, D):
        free = []
        for quad, text, need in s.rd:
            free.append(max([j for j in range(need) if quad in s.mf[j][4]], default=-1))
        toks = []
        def emit():
            k = len(toks)
            if k in s.hooks: s.hooks[k]()
            toks.append(A.ds(s.rd[k][1]))
        def ready(i, d):
            k = len(toks)
            return k < len(s.rd) and s.rd[k][2] <= i + d and free[k] <= i
        while ready(-1, D): emit()
        for i, (d, a, b, c, uses) in enumerate(s.mf):
            while len(toks) < len(s.rd) and s.rd[len(toks)][2] <= i: emit()
            need = [k for k in range(len(toks)) if s.rd[k][2] <= i]
            if need: A.wait_lg(toks[need[-1]])
            if i in s.pres: s.pres[i]()
            mfma(d, a, b, c)
            if ready(i, D): emit()
            if ready(i, D - 3): emit()

def gbar(name, flush=True):
    A.wait_all_lg()
    if flush: A.flush()
    if name: A.wait_named(name)
    A("s_barrier")
    if name: A.st("bar_" + name, 2)

NF = 8
cnt = [0]
WA = [PR[0], PR[2], PR[0], PR[2]] if OPT['ce'] else [PR[0], PR[1], PR[2], PR[0]]
CS = [PR[1], PR[2], PR[0], PR[1], PR[2], PR[0], PR[1], PR[2]]
CK = [int(x) for x in str(OPT['ck']).replace('0', ' ').split()] if False else [[7, 10, 13], [6, 9, 12, 15], [5, 7, 9, 12, 14]][OPT['ck']]
ZH = 220
def stageB(P, G, hk):
    for kk in range(4):
        if 4 * G + kk in hk: P.hook(hk[4 * G + kk])
        par = kk & 1; ks = 4 * G + kk
        fb = vFR + 20 * par
        so = G * 16384 + (kk >> 1) * 8192
        z0 = "0" if ks == 0 else None
        a0 = "0" if kk == 0 else None
        for x in range(4):
            P.read(fb + 4 * x, f"ds_read_b128 {vr(fb+4*x,4)}, v{12+2*x+par} offset:{so}")
            P.mfma(vr(vAB + 16 * G + 4 * x, 4), vr(fb + 4 * x, 4), vr(vWD + 4 * kk, 4), a0, (fb + 4 * x,))
            if x == 0: P.pre(lambda ks=ks: A.wait_named("W%d" % ks))
            for i in (0, 1): P.mfma(vr(vZ + 8 * x + 4 * i, 4), ar(128 + (ks * 2 + i) * 4, 4), vr(fb + 4 * x, 4), z0, (fb + 4 * x,))

def pushc(j): A.push(it_c(j, CS[j]), "C%d" % j)
def c_read(j):
    dst = CS[j]
    A.wait_named("C%d" % j)
    for par in (0, 1):
        for u in range(4):
            A.ds(f"ds_read_b128 {ar(((2*j+par)*4+u)*4,4)}, v{240+2*(dst>>16)+par} offset:{(dst&0xffff)+u*2048}")
def cnext(j):
    c_read(j); A.wait_all_lg()
    if j + 3 < 8: pushc(j + 3)

Z1P = 100
POIS = [('', f'buffer_store_dwordx4 v[236:239], v24, {sWS}, s81 offen offset:3072 sc1')]
def poison(issue=True):
    t = 220
    A(f"s_lshl_b32 {sT0}, {sR}, 2\ns_add_u32 {sT0}, {sT0}, {sW}\ns_mul_i32 {sT0}, {sT0}, 28672\ns_lshr_b32 {sT1}, {sC}, 1\ns_mul_i32 {sT1}, {sT1}, 7168\ns_add_u32 {sT1}, {sT1}, {sT0}\ns_add_u32 {sT1}, {sT1}, {HB}")
    A(f"s_and_b32 {sT0}, {sC}, 1\ns_lshl_b32 s80, {sT0}, 12\ns_add_u32 s80, s80, {sT1}\ns_lshl_b32 s81, {sT0}, 9\ns_add_u32 s81, s81, {sT1}")
    A(f"v_mov_b32 {vr(t+16)}, -1\nv_mov_b32 {vr(t+17)}, -1\nv_mov_b32 {vr(t+18)}, -1\nv_mov_b32 {vr(t+19)}, -1")
    A(f"s_lshl_b32 s82, {sR}, 12\ns_lshl_b32 {sT0}, {sC}, 9\ns_add_u32 s82, s82, {sT0}\ns_lshl_b32 {sT0}, {sW}, 7\ns_add_u32 s82, s82, {sT0}\ns_add_u32 s82, s82, {FLAGH}\ns_sub_u32 {sT0}, s82, s81\ns_sub_u32 {sT0}, {sT0}, {3072+512}")
    A(f"v_lshrrev_b32 v24, 5, v1\nv_mad_u32_u24 v24, v24, {sT0}, {vL16}\nv_add_u32 v23, 24, v1\nv_lshrrev_b32 v23, 6, v23\nv_lshl_add_u32 v24, v23, 24, v24")
    if not issue: return
    for k in range(3): A.vmem(f"buffer_store_dwordx4 {vr(t+16,4)}, {vL16}, {sWS}, s80 offen offset:{1024*k} sc1")
    masked(-1, 0, lambda: A.vmem(f"buffer_store_dwordx4 {vr(t+16,4)}, {vL16}, {sWS}, s81 offen offset:3072 sc1"))
def b_epilogue(fz):
    A.c('radix-4 combine of the hidden-dim DFT, radix-32 sequence pass 1, GELU(z1)')
    t = vFR
    A(f"v_and_b32 v15, 1, v1\nv_and_b32 v16, 2, v1\nv_sub_u32 v17, 1, v16\nv_sub_u32 v18, 1, v15\nv_mul_i32_i24 v12, v17, v18\nv_mul_i32_i24 v13, v17, v15\nv_sub_u32 v14, v18, v15")
    A("v_bfe_u32 v16, v1, 3, 1\nv_lshlrev_b32 v16, 31, v16\nv_cvt_f32_i32 v12, v12\nv_cvt_f32_i32 v13, v13\nv_cvt_f32_i32 v14, v14\nv_xor_b32 v13, v16, v13")
    for p in range(0, 16, 2):
        o = [vr(vAB + 16 * m + p, 2) for m in range(4)]
        A(f"v_pk_fma_f32 {o[0]}, {o[2]}, v[14:15], {o[0]} op_sel_hi:[1,0,1]\nv_pk_add_f32 {o[2]}, {o[1]}, {o[3]}\nv_pk_add_f32 {o[1]}, {o[1]}, {o[3]} neg_lo:[0,1] neg_hi:[0,1]")
        A(f"v_pk_fma_f32 {o[0]}, {o[2]}, v[12:13], {o[0]} op_sel_hi:[1,0,1]")
    for v in range(16): A(f"v_fmac_f32_dpp {vr(vAB+v)}, {vr(vAB+16+v)}, v13 row_ror:8 row_mask:0xf bank_mask:0xf")
    for k in range(8): A(f"v_cvt_pk_bf16_f32 {vr(t+k)}, {vr(vAB+2*k)}, {vr(vAB+2*k+1)}")
    A("s_nop 1")
    D = vAB + 32
    for lg in (0, 1):
        for J in (0, 1): mfma(vr(D + 8 * lg + 4 * J, 4), vr(vR32 + 4 * J, 4), vr(t + 4 * lg, 4), "0")
    A(f"s_cmp_eq_u32 {sW}, 3\ns_cselect_b32 {sT0}, 0, 1024\ns_add_u32 {sT0}, {sT0}, {GX}\nv_lshlrev_b32 v16, 2, {vI16}\nv_add_u32 v11, {sT0}, v16")
    for x in range(4): A.ds(f"ds_write2_b32 v11, {vr(vZ+8*x+4)}, {vr(vZ+8*x+4)} offset0:{(3^x)*16} offset1:{(3^x)*16+64}")
    A(f"s_mul_i32 {sT0}, {sR}, 4352\ns_lshl_b32 {sT1}, {sC}, 9\ns_add_u32 {sT0}, {sT0}, {sT1}\ns_lshl_b32 {sT2}, {sW}, 7\ns_add_u32 {sT0}, {sT0}, {sT2}\ns_add_u32 {sT0}, {sT0}, {F2}\ns_mov_b32 {sT3}, 139264")
    A(f"v_and_b32 v14, 7, v1\nv_lshlrev_b32 v14, 4, v14\nv_lshrrev_b32 v15, 3, v1\nv_mad_u32_u24 v14, v15, {sT3}, v14\nv_add_u32 v14, {sT0}, v14")
    A(f"s_lshl_b32 {sT0}, {sW}, 6\ns_add_u32 {sT0}, {sT0}, {GX}\nv_add_u32 v16, {sT0}, v16")
    U = t + 8
    for J in (0, 1):
        for lg in (0, 1):
            for z in (0, 1): A(f"v_cvt_pk_bf16_f32 {vr(U+4*J+2*lg+z)}, {vr(D+8*lg+4*J+2*z)}, {vr(D+8*lg+4*J+2*z+1)}")
    for k in range(4): A(f"v_mov_b32 {vr(t+k)}, {vr(U+2*k)}")
    for k in range(4): A(f"v_mov_b32_dpp {vr(U+2*k)}, {vr(U+2*k+1)} row_ror:8 row_mask:0xf bank_mask:0xc")
    for k in range(4): A(f"v_mov_b32_dpp {vr(U+2*k+1)}, {vr(t+k)} row_ror:8 row_mask:0xf bank_mask:0x3")
    l1, lsk = A.lab("Lnosw"), A.lab("Lnosp")
    A.lock += 1
    A(f"s_cmp_eq_u32 {sSH}, 0\ns_cbranch_scc1 {l1}")
    for J in (0, 1): A(f"v_swap_b32 {vr(U+4*J)}, {vr(U+4*J+2)}\nv_swap_b32 {vr(U+4*J+1)}, {vr(U+4*J+3)}")
    A(f"{l1}:\ns_mov_b32 {sT2}, {8*139264}\ns_add_u32 {sT1}, {sW}, {sC}\ns_cmp_lg_u32 {sT1}, 0\ns_cbranch_scc1 {lsk}")
    A(f"s_mov_b32 exec_lo, 0x01010101\ns_mov_b32 exec_hi, 0x01010101\nv_add_u32 v15, 4096, v14")
    for J in (0, 1):
        q_ = t + 4 * J
        A(f"v_mov_b32 {vr(q_)}, {vr(U+4*J+1)}\nv_mov_b32 {vr(q_+1)}, 0\nv_mov_b32 {vr(q_+2)}, {vr(U+4*J+3)}\nv_mov_b32 {vr(q_+3)}, 0\nv_mov_b32 {vr(U+4*J+1)}, 0\nv_mov_b32 {vr(U+4*J+3)}, 0")
        A(f"buffer_store_dwordx4 {vr(q_,4)}, v15, {sWS}, {sT2 if J else 0} offen sc1")
    A(f"s_mov_b64 exec, -1\n{lsk}:")
    A.lock -= 1
    if OPT["pois"] == 2: poison()
    for J in (0, 1): tokF = A.vmem(f"buffer_store_dwordx4 {vr(U+4*J,4)}, v14, {sWS}, {sT2 if J else 0} offen sc1")
    fz()
    gelu(vZ, 32, vFR + 20)
    A(f"s_lshl_b32 {sT0}, {sW}, 12\ns_add_u32 {sT0}, {sT0}, {Z1B}\nv_lshlrev_b32 v12, 3, {vLane}\nv_add_u32 v17, {sT0}, v12\ns_lshl_b32 {sT0}, {sW}, 10\nv_add_u32 v12, {sT0}, v17")
    for x in range(4):
        if x: A(f"v_xor_b32 v13, {4096*x}, v12")
        for i in (0, 1):
            b = vZ + 8 * x + 4 * i
            A(f"v_cvt_pk_bf16_f32 {vr(b)}, {vr(b)}, {vr(b+1)}\nv_cvt_pk_bf16_f32 {vr(b+1)}, {vr(b+2)}, {vr(b+3)}")
            A.ds(f"ds_write_b64 v{13 if x else 12}, {vr(b,2)} offset:{i*512}")
    A(f"v_lshlrev_b32 {vB}, 16, {vB}")
    A.st("epi_end", 2); A.wait_all_lg(); A.flush(); A.st("epi_fl", 2); A.wait_vm(tokF); A.st("epi_F", 2); A("s_barrier")
    A(f"s_lshl_b32 {sT0}, {sC}, 12\ns_lshl_b32 {sT1}, {sR}, 7\ns_add_u32 {sT0}, {sT0}, {sT1}\ns_add_u32 {sT0}, {sT0}, {FLAGF}")
    flag_store(sT0, True)
    for ft in range(7): A.ds(f"ds_read_b64 {vr(Z1P+2*ft,2)}, v17 offset:{ft*512}")
    A.ds("ds_read2_b32 v[14:15], v16 offset0:16 offset1:32"); A.ds("ds_read_b32 v6, v16 offset:192"); A.ds(f"ds_read_b32 {vG}, v16")
LDZ = [f"buffer_load_dwordx2 v[246:247], v19, {sWS}, s46 offen sc1"]
def flagZ_issue():
    A(f"s_mul_i32 {sT0}, {sC}, 7\ns_add_u32 {sT1}, {sT0}, 6\ns_lshr_b32 {sT0}, {sT0}, 3\ns_lshr_b32 {sT1}, {sT1}, 3\ns_sub_u32 {sT1}, {sT1}, {sT0}\ns_lshl_b32 {sT1}, {sT1}, 12")
    A(f"s_lshl_b32 {sT0}, {sT0}, 12\ns_lshl_b32 {sT2}, {sW}, 10\ns_add_u32 {sT0}, {sT0}, {sT2}\ns_add_u32 s46, {sT0}, {FLAGZ}")
    A(f"v_and_b32 v19, 7, v1\nv_lshlrev_b32 v19, 7, v19\nv_lshrrev_b32 v11, 5, {vLane}\nv_mad_u32_u24 v19, v11, {sT1}, v19")
    return A.vmem(LDZ[0])

def srd(b, src, size): A(f"s_mov_b32 s{b}, s{src}\ns_mov_b32 s{b+1}, s{src+1}\ns_mov_b32 s{b+2}, {size}\ns_mov_b32 s{b+3}, 0x20000")

def prologue():
    A.c('prologue: ids (r = row class, c = column block), kernel arguments, first addresses')
    A("s_cmp_ge_u32 s2, 256\ns_cbranch_scc1 Lend")
    A("s_load_dwordx16 s[60:75], s[0:1], 0\ns_load_dwordx8 s[80:87], s[0:1], 64\ns_load_dwordx4 s[88:91], s[0:1], 96")
    if OPT["prof"]: A("s_memrealtime s[98:99]\ns_memtime s[96:97]")
    if OPT["diag"] >= 0: A("s_memrealtime s[98:99]\ns_memrealtime s[96:97]")
    A(f"s_getpc_b64 s[44:45]\ns_mov_b32 s46, Lend-{NAME}_kernel\ns_mov_b32 s47, 0x20000")
    A("s_lshr_b32 s3, s2, 3\ns_lshl_b32 s76, s3, 10\nv_and_b32 v11, 7, v0\nv_lshlrev_b32 v11, 7, v11\nv_add_u32 v11, s76, v11")
    if OPT["cp"] == 0: A.vmem(f"buffer_load_dword v12, v11, {sTMP}, 0 offen")
    if OPT["cp"] == 1: A("v_mov_b32 v22, v11")
    if OPT["cp"] == 2:
        A("s_lshr_b32 s76, s2, 6\ns_lshl_b32 s76, s76, 13\nv_lshrrev_b32 v11, 2, v0\nv_lshlrev_b32 v11, 7, v11\nv_add_u32 v11, s76, v11\ns_and_b32 s76, s3, 7\ns_cmp_lg_u32 s76, 7\ns_cbranch_scc1 Lnocp")
        A(f"buffer_load_dword v12, v11, {sTMP}, 0 offen\nLnocp:")
    A("s_and_b32 s76, s2, 7")
    if OPT["xmap"] == 1:
        A(f"s_lshr_b32 {sR}, s3, 3\ns_lshl_b32 s77, s76, 2\ns_add_u32 {sR}, {sR}, s77\ns_and_b32 {sC}, s3, 7")
        A(f"s_mov_b32 s78, 0x76543210\ns_mov_b32 s79, s78\ns_mul_i32 s77, s76, {OPT['xrot']}\ns_add_u32 s77, s77, {sC}\ns_and_b32 s77, s77, 7\ns_lshl_b32 s77, s77, 2\ns_lshr_b64 s[78:79], s[78:79], s77\ns_mov_b32 {sROT}, s78")
    else:
        A(f"s_lshr_b32 {sR}, s76, 1\ns_lshl_b32 {sR}, {sR}, 3\ns_lshr_b32 s77, s3, 2\ns_add_u32 {sR}, {sR}, s77")
        A(f"s_and_b32 {sC}, s76, 1\ns_lshl_b32 {sC}, {sC}, 2\ns_and_b32 s77, s3, 3\ns_add_u32 {sC}, {sC}, s77")
        A(f"s_lshl_b32 s77, s77, 2\ns_lshr_b32 {sROT}, 0x64206420, s77\ns_and_b32 {sROT}, {sROT}, 0xffff\ns_or_b32 {sROT}, {sROT}, 0x64200000\ns_bitcmp1_b32 s76, 0\ns_cselect_b32 s77, 0, 16\ns_lshl_b32 s77, 0x1111, s77\ns_or_b32 {sROT}, {sROT}, s77")
    A(f"s_mov_b32 {sCA}, {sC}")
    if OPT["rot2"]: A(f"s_bitcmp1_b32 {sR}, 0\ns_cselect_b32 s77, {(0, 0x44444444, 0x22222222, 0x11111111)[OPT['rot2']]}, 0\ns_xor_b32 {sROT}, {sROT}, s77")
    if not OPT["rotc"]: A(f"s_mov_b32 {sROT}, 0x76543210")
    A(f"v_lshrrev_b32 v11, 6, v0\nv_and_b32 {vLane}, 63, v0\nv_readfirstlane_b32 {sW}, v11")
    A(f"v_and_b32 {vI16}, 15, v0\nv_lshrrev_b32 {vQ}, 4, {vLane}\nv_lshlrev_b32 {vL16}, 4, {vLane}")
    A(f"s_lshl_b32 {sW2048}, {sW}, 11\ns_lshl_b32 {sW8192}, {sW}, 13\ns_and_b32 {sET}, {sW}, 1\ns_lshr_b32 {sSH}, {sW}, 1\ns_add_u32 s76, {sR}, {sC}")
    if not OPT["rota"]: A("s_mov_b32 s76, 0")
    if OPT["rota"] == 2: A(f"s_lshr_b32 s76, {sR}, 3\ns_lshr_b32 s77, {sC}, 2\ns_lshl_b32 s77, s77, 1\ns_add_u32 s76, s76, s77\ns_and_b32 s77, {sC}, 1\ns_add_u32 s76, s76, s77")
    if OPT["rota"] == 3: A(f"s_lshr_b32 s76, {sR}, 2\ns_add_u32 s76, s76, {sC}")
    if OPT["rota"] == 5: A(f"s_lshr_b32 s76, {sR}, 2\ns_add_u32 s76, s76, {sC}\ns_and_b32 s77, {sR}, 1\ns_lshl_b32 s77, s77, 1\ns_add_u32 s76, s76, s77")
    if OPT["rota"] == 4: A(f"s_lshr_b32 s76, {sR}, 3\ns_add_u32 s76, s76, {sC}\ns_and_b32 s77, {sR}, 1\ns_lshl_b32 s77, s77, 1\ns_add_u32 s76, s76, s77")
    for G in range(4):
        A(f"s_add_u32 s77, s76, {G}\ns_and_b32 s77, s77, 3\ns_lshl_b32 {sAX[G]}, s77, 8\ns_mul_i32 {sAW[G]}, s77, 458752")
    A(f"v_lshrrev_b32 v11, 3, {vLane}\nv_and_b32 v15, 7, v0\nv_lshrrev_b32 v16, 1, v11")
    A("v_xor_b32 v13, v15, v16\nv_lshlrev_b32 v13, 4, v13\nv_xor_b32 v14, 64, v13")
    A(f"s_lshl_b32 s76, {sR}, 16\ns_lshl_b32 s77, {sW}, 14\ns_add_u32 s76, s76, s77\nv_lshl_add_u32 v15, v11, 10, s76")
    A(f"v_add_u32 {vr(vXA[0])}, v15, v13\nv_add_u32 {vr(vXA[1])}, v15, v14\nv_add_u32 {vr(vXA[1])}, 7168, {vr(vXA[1])}")
    A(f"s_lshl_b32 s76, {sCA}, 8\ns_mul_i32 s77, {sW}, 114688\ns_add_u32 s76, s76, s77\ns_add_u32 s76, s76, 1792\ns_movk_i32 s77, 3584")
    A(f"v_lshlrev_b32 v15, 1, {vQ}\nv_xor_b32 v15, v15, {vI16}\nv_lshlrev_b32 v15, 4, v15\nv_mad_u32_u24 v16, {vQ}, s77, v15\nv_add_u32 v16, s76, v16\nv_xor_b32 v17, 128, v16")
    A(f"s_bfe_u32 s76, {sR}, 0x10002\ns_mul_i32 s76, s76, {OPT['hw']}\ns_lshl_b32 s100, s76, 12\ns_add_u32 s100, s100, {sW8192}\ns_xor_b32 s101, s100, 4096\ns_mul_i32 s76, s76, {4*3584}\ns_sub_u32 s77, {4*3584}, s76")
    A("v_add_u32 v18, s77, v16\nv_add_u32 v19, s77, v17\nv_add_u32 v16, s76, v16\nv_add_u32 v17, s76, v17")
    for i in range(8):
        A(f"v_add_u32 {vr(vWA[i])}, {8*(i&3)*3584 - 1024*(i&3)}, v{16+(i&1)+2*(i>>2)}")
    A("s_waitcnt lgkmcnt(0)")
    srd(4, 60, 2097152); srd(8, 72, 1835008); srd(16, 82, 917504)
    A(f"s_load_dwordx2 s[92:93], s[90:91], {EPOCH}")

def setup2(early=False):
    if not (early and OPT["pois"] == 4): srd(12, 74, 8388608); srd(28, 90, WS_SIZE); srd(36, 80, 4096)
    srd(32, 86, 2097152)
    A(f"s_cmp_eq_u32 {sW}, 3\ns_cselect_b32 s40, s84, s90\ns_cselect_b32 s41, s85, s91\ns_movk_i32 s42, 1024\ns_cselect_b32 s42, s42, s30\ns_mov_b32 s43, 0x20000\ns_cselect_b32 s94, 64, 57344")
    A(f"s_mul_i32 {sW7168}, {sW}, 7168\ns_mul_i32 s77, {sC}, 7168\ns_add_u32 s76, {sW2048}, s77\ns_add_u32 s76, s76, {W1P}\nv_add_u32 {vr(vW1[0])}, s76, {vL16}\nv_add_u32 {vr(vW1[1])}, 1024, {vr(vW1[0])}\nv_lshlrev_b32 v15, 4, {vQ}\ns_cmp_eq_u32 {sW}, 3\ns_cselect_b64 vcc, -1, 0\nv_cndmask_b32 {vr(vW1[1])}, {vr(vW1[1])}, v15, vcc")
    A("v_and_b32 v17, 4, v11\nv_lshlrev_b32 v17, 1, v17\nv_and_or_b32 v17, v11, 3, v17")
    A(f"s_lshl_b32 s76, {sET}, 8\ns_lshl_b32 s77, {sSH}, 5\ns_add_u32 s76, s76, s77\ns_add_u32 s76, s76, {sR}")
    A("s_lshl_b32 s77, s76, 10\nv_lshl_add_u32 v15, v17, 16, s77")
    A(f"v_add_u32 {vr(vXR[0])}, v15, v13\nv_add_u32 {vr(vXR[1])}, v15, v14\nv_add_u32 {vr(vXR[1])}, {1024*1024-1024}, {vr(vXR[1])}")
    A(f"v_and_b32 v15, 12, {vI16}\nv_lshlrev_b32 v15, 1, v15\nv_and_or_b32 v15, {vI16}, 3, v15\nv_lshl_add_u32 {vTrow}, v15, 6, s76")
    A(f"s_lshl_b32 s77, {sR}, 12\ns_lshl_b32 s78, {sW}, 10\ns_add_u32 s77, s77, s78\nv_lshl_add_u32 v15, v17, 18, s77")
    A(f"v_add_u32 {vr(vCb[0])}, v15, v13\nv_add_u32 {vr(vCb[1])}, v15, v14\nv_add_u32 {vr(vCb[1])}, {1024*4096-1024}, {vr(vCb[1])}")
    for u in range(4):
        A(f"s_add_u32 s77, {sW}, {u}\ns_and_b32 s78, s77, 1\ns_lshl_b32 s78, s78, 20\ns_and_b32 s77, s77, 2\ns_lshl_b32 s77, s77, 16\ns_add_u32 {sCU[u]}, s77, s78")
    A(f"v_lshlrev_b32 v246, 1, {vTrow}")
    A(f"v_lshrrev_b32 v15, 1, {vI16}\nv_xor_b32 v15, v15, {vQ}\nv_lshlrev_b32 v15, 4, v15\nv_lshl_add_u32 {vXrd0}, {vI16}, 7, v15\nv_xor_b32 {vXrd1}, 64, {vXrd0}")
    A(f"v_add_u32 v240, {sW8192}, {vXrd0}\nv_add_u32 v241, {sW8192}, {vXrd1}\nv_add_u32 v242, 0x10000, v240\nv_add_u32 v243, 0x10000, v241\nv_add_u32 v244, 0x20000, v240\nv_add_u32 v245, 0x20000, v241")
def tlb_touch():
    if not OPT["tlb"]: return
    A(f"v_and_b32 v15, 7, v1\nv_lshlrev_b32 v15, 7, v15\ns_cmp_eq_u32 {sW}, 3\ns_cselect_b32 s78, 0, {WS_SIZE}")
    A.vmem(f"buffer_load_dword v255, v15, {sGW}, s78 offen")
    A.vmem(IT_GATE[0][1])
def twiddles():
    A(f"s_lshl_b32 s70, {sC}, 5\ns_lshl_b32 s71, {sW}, 3\ns_add_u32 s70, s70, s71\nv_and_b32 v11, 7, v1\nv_add_u32 v11, s70, v11\nv_bfe_u32 v14, v1, 3, 1\nv_lshlrev_b32 v15, 3, {vQ}\nv_cmp_gt_u32 vcc, v14, v11\nv_cvt_f32_u32 v11, v11\nv_cvt_f32_u32 v15, v15\nv_cvt_f32_u32 v14, v14")
    A(f"v_mul_f32 v11, {fbits(1/512)}, v11\nv_mul_f32 v14, {fbits(0.25)}, v14\nv_fma_f32 v13, v11, v15, v14\nv_cndmask_b32 v11, v11, 0.5, vcc\nv_cndmask_b32 v13, v13, 0, vcc")
    gen_cos(lambda i: vWD + i, 16, "v11", "v13", lambda n: 32 * (n >> 3) + (n & 7))
    A(f"v_lshrrev_b32 v11, 1, {vI16}\nv_cvt_f32_u32 v11, v11\nv_mul_f32 v11, {fbits(1/32)}, v11\nv_add_f32 v247, {fbits(0.25)}, v11")
    A(f"v_and_b32 v13, 1, v1\nv_cvt_f32_u32 v13, v13\nv_mul_f32 v13, {fbits(0.25)}, v13\nv_cmp_eq_u32 vcc, 1, {vI16}\nv_mov_b32 v14, v13\ns_nop 0\nv_cndmask_b32 v11, v11, 0.5, vcc\nv_cndmask_b32 v13, v13, 0, vcc")
    A(f"s_lshl_b32 s70, {sET}, 2\nv_cvt_f32_u32 v248, s70\nv_sub_f32 v252, v15, v248\nv_add_f32 v248, v15, v248")
    for J, (fr, ph) in enumerate((("v11", "v13"), ("v247", "v14"))):
        A(f"v_fma_f32 v253, {fr}, v248, {ph}\nv_fma_f32 v254, {fr}, v252, {ph}")
        gen_cos(lambda i: vR32 + 4 * J + i, 2, fr, "v253", lambda n: n)
        gen_cos(lambda i: vR32 + 4 * J + 2 + i, 2, fr, "v254", lambda n: 4 + n)
def consts():
    if OPT["pois"] == 0: poison()
    if OPT["pois"] == 3: poison(False)
    A("s_waitcnt lgkmcnt(0)")
    A("s_mul_i32 s52, s92, 0x9E3779B1\ns_add_u32 s52, s52, 0x7F4A7C15\ns_mul_i32 s53, s93, 0x85EBCA6B\ns_add_u32 s53, s53, 0xC2B2AE35")
    c0 = -2 * 0.7978845608028654 * 1.4426950408889634
    A(f"s_mov_b32 s76, {fbits(c0*0.044715)}\ns_mov_b32 s77, {fbits(c0)}\nv_mov_b32 v38, s52\nv_mov_b32 v39, s53\nv_and_b32 v251, 31, v1\nv_lshlrev_b32 v251, 7, v251\nv_add_u32 v251, {FLAGP}, v251")
    if OPT["prof"]: A("v_writelane_b32 v0, s96, 0\nv_writelane_b32 v0, s98, 62")
LDP = [f"buffer_load_dwordx2 v[20:21], v251, {sWS}, 0 offen sc1"]

def front_main():
    A.c('stage A: z2 tile = x[64r..+64] @ w_in[:, 896+128c..+128], GELU, LayerNorm partial sums')
    a0 = it_xa(0) + it_w2(WA[0], 0)
    if OPT["pois"] == 4:
        srd(28, 90, WS_SIZE); srd(36, 80, 4096); srd(12, 74, 8388608); poison(False)
        A.push(a0[:OPT["pp"]] + POIS + a0[OPT["pp"]:], "A0")
    else: A.push(a0, "A0")
    A.push(it_xa(1) + it_w2(WA[1], 1), "A1")
    A.st("karg", 2)
    A.flush("A0")
    if OPT["cp"] == 1: A.vmem(f"buffer_load_dword v12, v22, {sTMP}, 0 offen")
    A.st("iss0", 2)
    if OPT["ser"] == 2: A.raw("s_waitcnt vmcnt(4)"); A.st("w8"); A.raw("s_waitcnt vmcnt(0)"); A.st("w12")
    A.lock += 1
    setup2(True); tlb_touch()
    if OPT["ce"] == 1: twiddles(); consts()
    if OPT["ce"]: A.front(it_c(0, CS[0]), "C0"); A.flush("C0")
    if OPT["ce"] != 1: twiddles(); consts()
    A(f"v_lshrrev_b32 v15, 2, {vLane}\nv_lshlrev_b32 v16, 8, v15\nv_and_b32 v15, 7, v15\nv_lshl_add_u32 v16, v15, 5, v16\nv_and_b32 v15, 3, v1\nv_lshl_add_u32 v16, v15, 3, v16\ns_lshl_b32 {sT0}, {sET}, 7\nv_xor_b32 v16, {sT0}, v16")
    for i in range(4): A(f"v_xor_b32 {vr(vTA[i])}, {32*i}, v16\nv_add_u32 {vr(vTA[4+i])}, 0x10000, {vr(vTA[i])}")
    A(f"s_lshl_b32 {sT0}, {sSH}, 12\ns_add_u32 {sT0}, {sT0}, {SL[6]}\nv_add_u32 v13, {sT0}, {vXrd0}\nv_add_u32 v14, {sT0}, {vXrd1}")
    A.lock -= 1
    if OPT["fa1"]: A.flush("A1")
    if OPT["ce"]: A.push(it_xa(2) + it_xa(3))
    else: A.push(it_xa(2) + it_w2(WA[2], 2), "A2"); A.push(it_xa(3))
    A.stamp(1)
    A.per = OPT["pera"]
    P = Pipe()
    for G in range(4):
        def h(G=G):
            gbar("A%d" % G, False)
            if OPT["ce"]:
                if G in (1, 2): A.front(it_w2(WA[G + 1], G + 1), "A%d" % (G + 1)) if G == 2 else A.push(it_w2(WA[G + 1], G + 1), "A%d" % (G + 1))
                if G == 2: A.push(POIS)
                if G >= 1: A.push(it_xr(SL[5 + G], G - 1))
                return
            if G == 1: A.push(it_w2(WA[3], 3), "A3")
            if G == 1 and OPT["pois"] == 3: A.push(POIS)
            if G == 1 and OPT["x0"]: A.push(it_xr(SL[6], 0))
            if G == 2: pushc(0)
        P.hook(h)
        for kk in range(4):
            xf = vFR + 32 + 8 * ((4 * G + kk) % 3)
            z0 = "0" if (G == 0 and kk == 0) else None
            for i in range(4):
                wf = vFR + 4 * (cnt[0] % NF); cnt[0] += 1
                if i == 0: P.read(xf, f"ds_read_b128 {vr(xf,4)}, v{13+(kk&1)} offset:{G*16384+(kk>>1)*8192}")
                for half in (0, 1):
                    P.read(wf, f"ds_read_b64_tr_b16 {vr(wf+2*half,2)}, {vr(vTA[i + (4 if WA[G] >= 65536 else 0)])} offset:{(WA[G]&0xffff) + kk*8192 + half*4096}")
                P.mfma(vr(vZ + 4 * i, 4), vr(wf, 4), vr(xf, 4), z0, (wf, xf))
                if i == 0: P.read(xf + 4, f"ds_read_b128 {vr(xf+4,4)}, v{13+(kk&1)} offset:{G*16384+(kk>>1)*8192+2048}")
                P.mfma(vr(vZ + 16 + 4 * i, 4), vr(wf, 4), vr(xf + 4, 4), z0, (wf, xf + 4))
    P.run(OPT["look"])
    A.flush()
    A.per = OPT["per"]
    A("s_barrier")
    A.stamp(2)
    A("s_nop 7")
    gelu(vZ, 32, vFR)
    t = vFR
    for xt in (0, 1):
        z = vZ + 16 * xt
        A(f"v_pk_add_f32 {vr(t,2)}, {vr(z,2)}, {vr(z+2,2)}\nv_pk_mul_f32 {vr(t+2,2)}, {vr(z,2)}, {vr(z,2)}")
        for p in range(2, 16, 2):
            if p > 2: A(f"v_pk_add_f32 {vr(t,2)}, {vr(t,2)}, {vr(z+p,2)}")
            A(f"v_pk_fma_f32 {vr(t+2,2)}, {vr(z+p,2)}, {vr(z+p,2)}, {vr(t+2,2)}")
        A(f"v_add_f32 {vr(t+4+2*xt)}, {vr(t)}, {vr(t+1)}\nv_add_f32 {vr(t+5+2*xt)}, {vr(t+2)}, {vr(t+3)}")
    xreduce((P16, P32), [t + 4, t + 5, t + 6, t + 7], [t, t + 1, t + 2, t + 3])
    A(f"v_cmp_eq_u32 vcc, 1, {vQ}\ns_lshl_b32 {sT0}, {sR}, 1\ns_add_u32 {sT0}, {sT0}, {sSH}\nv_cndmask_b32 {vr(t+4)}, {vr(t+4)}, {vr(t+6)}, vcc\nv_cndmask_b32 {vr(t+5)}, {vr(t+5)}, {vr(t+7)}, vcc")
    A(f"v_mov_b32 {vr(t+6)}, s52\nv_mov_b32 {vr(t+7)}, s53\ns_lshl_b32 {sT0}, {sT0}, 13\ns_add_u32 {sT0}, {sT0}, {STAT}\nv_add_u32 v249, {sT0}, {vL16}")
    A(f"s_lshl_b32 {sT1}, {sCA}, 10\ns_lshl_b32 {sT2}, {sET}, 9\ns_add_u32 {sT1}, {sT1}, {sT2}\nv_add_u32 v250, 4096, v249")
    masked(-1, 0, lambda: A.vmem(f"buffer_store_dwordx4 {vr(t+4,4)}, v249, {sWS}, {sT1} offen sc1"))

def front_lead():
    A.c('workgroups with c == 7: repack w_in[:, :896] and w_out into MFMA fragment order')
    PIT = 1056; L1, L2 = PR[2], PR[2] + 36864
    A(f"s_lshr_b32 s76, {sR}, 1\ns_lshl_b32 s76, s76, 5\ns_lshl_b32 s77, {sET}, 4\ns_add_u32 s76, s76, s77\ns_lshl_b32 s77, {sSH}, 2\ns_add_u32 s76, s76, s77\ns_mul_i32 s76, s76, 3584")
    A(f"s_and_b32 s77, {sR}, 1\ns_mul_i32 s77, s77, 896\ns_add_u32 s76, s76, s77\ns_mul_i32 s78, {sW}, {8*PIT}")
    for i in range(8):
        A(f"s_add_u32 m0, s78, {L1 + i*PIT}\ns_add_u32 s77, s76, {(8*(i>>2)+(i&3))*3584}")
        tok1 = A.vmem(f"buffer_load_dwordx4 {vL16}, {sWIN}, s77 offen lds")
    A(f"s_min_u32 s79, {sR}, 27\ns_mul_i32 s76, s79, 37\ns_lshr_b32 s76, s76, 8\ns_mul_i32 s77, s76, 7\ns_sub_u32 s77, s79, s77\ns_mul_i32 s76, s76, 224")
    A(f"s_lshl_b32 s79, s77, 5\ns_cmp_ge_u32 s77, 4\ns_cselect_b32 s44, 16, 0\ns_sub_u32 s79, s79, s44\ns_cmp_eq_u32 s77, 3\ns_cselect_b32 s44, 112, 16\ns_mul_i32 s44, s44, {sSH}\ns_add_u32 s79, s79, s44")
    A(f"s_add_u32 s76, s76, s79\ns_lshl_b32 s77, {sET}, 3\ns_add_u32 s76, s76, s77\ns_lshl_b32 s44, s76, 10\ns_mov_b32 s45, s78")
    st = {}
    def wout_loads():
        for i in range(8):
            A(f"s_add_u32 m0, s45, {L2 + i*PIT}\ns_add_u32 s46, s44, {i*1024}")
            st["w"] = A.vmem(f"buffer_load_dwordx4 {vL16}, {sWOUT}, s46 offen lds")
    setup2(); tlb_touch(); consts()
    A(f"v_lshrrev_b32 v15, 2, {vLane}\nv_mul_u32_u24 v15, {PIT}, v15\nv_and_b32 v16, 3, v1\nv_lshl_add_u32 v15, v16, 3, v15\ns_mul_i32 {sT0}, {sW}, 224\ns_add_u32 {sT0}, {sT0}, {L1}\nv_add_u32 v16, {sT0}, v15\ns_lshl_b32 {sT0}, {sW}, 8\ns_add_u32 {sT0}, {sT0}, {L2}\nv_add_u32 v17, {sT0}, v15")
    A(f"s_mul_i32 {sT0}, {sR}, 28672\ns_add_u32 {sT0}, {sT0}, {sW7168}\ns_add_u32 {sT0}, {sT0}, {W1P}\ns_add_u32 {sT1}, {sT0}, 4096")
    A(f"s_mul_i32 {sT2}, {sW}, {2*114688}\ns_lshl_b32 {sT3}, {sR}, 12\ns_add_u32 {sT2}, {sT2}, {sT3}\ns_add_u32 {sT2}, {sT2}, {WOP}\ns_cmp_ge_u32 {sR}, 28\ns_cselect_b32 {sT2}, {WS_SIZE}, {sT2}\ns_add_u32 {sT3}, {sT2}, 114688")
    def half(rng, tok, flag):
        A.wait_vm(tok); A("s_barrier")
        tk = {}
        for n in rng:
            base, i = ("v16", n) if n < 7 else ("v17", n - 7)
            A.ds(f"ds_read_b64_tr_b16 {vr(112+4*n,2)}, {base} offset:{i*32}")
            tk[n] = A.ds(f"ds_read_b64_tr_b16 {vr(112+4*n+2,2)}, {base} offset:{i*32+16*PIT}")
        for n in rng:
            i = n if n < 7 else n - 7
            so = (sT0, sT1, sT2, sT3)[(0 if n < 7 else 2) + (i >> 2)]
            A.wait_lg(tk[n])
            t = A.vmem(f"buffer_store_dwordx4 {vr(112+4*n,4)}, {vL16}, {sWS}, {so} offen offset:{(i&3)*1024} sc1")
        return t
    t1 = half(range(7), tok1, FLAGP)
    wout_loads()
    A.wait_vm(t1); A("s_barrier")
    A(f"s_lshl_b32 {sT0}, {sR}, 7\ns_add_u32 s46, {sT0}, {FLAGP}\ns_add_u32 s47, {sT0}, {FLAGQ}")
    flag_store("s46", True)
    A.st("flagP")
    t2 = half(range(7, 15), st["w"], FLAGQ)
    pushc(0); A.flush()
    A.stamp(1)
    twiddles()
    A.wait_vm(t2); A("s_barrier")
    flag_store("s47", True)
    for G in range(OPT["x0"]): A.push(it_xr(SL[6 + G], G))
    if OPT["pois"] == 4: poison(False)
    if OPT["pois"] >= 3: A.push(POIS)
    A.flush()
    A(f"v_mov_b32 v249, {WS_SIZE}\nv_mov_b32 v250, {WS_SIZE}")

def front2():
    A.c('LayerNorm statistics exchange, normalise, publish z2n fragments')
    A.stamp(3)
    if OPT["pois"] == 1: poison()
    if OPT["ser"] == 1: A.raw("s_waitcnt vmcnt(0)\ns_barrier"); A.st("ser0")
    tokP = A.vmem(LDP[0])
    if OPT["ser"] == 1: A.raw("s_waitcnt vmcnt(0)\ns_barrier"); A.st("serP")
    for G in range(OPT["x0"], 3): A.push(it_xr(SL[6 + G], G))
    A.push(([] if OPT["tlb"] else IT_GATE) + it_xr(SL[9], 3), "X3"); A.flush()
    if OPT["ser"] == 1: A.raw("s_waitcnt vmcnt(0)\ns_barrier"); A.st("serX")
    poll(LDP, tagcmp([20]), tokP); A.st("got_P", 2)
    for ks in range(16): A.push(it_w1(ks), "W%d" % ks)
    if OPT["ser"] == 1: A.flush(); A.raw("s_waitcnt vmcnt(0)\ns_barrier"); A.st("serW")
    pushc(1)
    if OPT["ser"] == 1: A.flush(); A.raw("s_waitcnt vmcnt(0)\ns_barrier"); A.st("serC1")
    A.flush("W%d" % OPT["gat"])
    g = 128
    ld = [f"buffer_load_dwordx4 {vr(g+4*k,4)}, v{249 + (k>>2)}, {sWS}, 0 offen offset:{1024*(k&3)} sc1" for k in range(7)]
    for l in ld: tokS = A.vmem(l)
    if OPT["ser"] == 1: A.raw("s_waitcnt vmcnt(0)\ns_barrier"); A.st("serG")
    A(f"v_and_b32 v11, 3, {vI16}\nv_bfe_u32 v12, {vI16}, 3, 1\nv_lshl_add_u32 v11, v12, 2, v11\nv_bfe_u32 v15, v11, 1, 2\nv_bfe_u32 v12, {vI16}, 2, 1\nv_lshl_add_u32 v11, v12, 4, v11")
    A(f"s_lshl_b32 {sT0}, {sW}, 13\ns_add_u32 {sT0}, {sT0}, {SCR}\nv_lshlrev_b32 v11, 7, v11\nv_lshl_add_u32 v11, v15, 5, v11\nv_lshl_add_u32 v11, {vQ}, 3, v11\nv_add_u32 v11, {sT0}, v11")
    A(f"v_lshrrev_b32 v12, 2, {vLane}\nv_lshlrev_b32 v12, 7, v12\nv_bfe_u32 v15, {vLane}, 3, 2\nv_lshl_add_u32 v12, v15, 5, v12\nv_and_b32 v15, 3, v1\nv_lshl_add_u32 v12, v15, 3, v12\nv_add_u32 v12, {sT0}, v12")
    for i in range(4): A(f"v_xor_b32 v{160+i}, {32*i}, v11\nv_xor_b32 v{164+i}, {32*i}, v12")
    A(f"s_lshl_b32 {sT1}, {sR}, 1\ns_add_u32 {sT1}, {sT1}, {sSH}\ns_mul_i32 {sT0}, {sT1}, 57344\ns_lshl_b32 {sT1}, {sCA}, 13\ns_add_u32 {sT0}, {sT0}, {sT1}")
    A(f"s_lshl_b32 {sT1}, {sET}, 12\ns_add_u32 {sT0}, {sT0}, {sT1}\ns_add_u32 {sKB}, {sT0}, {Z2N}\ns_cmp_eq_u32 {sCA}, 7\ns_cselect_b32 {sKB}, {WS_SIZE}, {sKB}")
    A.flush("W%d" % (OPT["gat"] + 5)); A.st("pre_stat", 2)
    if OPT["eb"]: c_read(0); gbar("X3", False); pushc(3)
    poll(ld, tagcmp([g + 4 * k + 2 for k in range(7)]), tokS, True)
    A.stamp(4)
    for k in range(1, 7): A(f"v_pk_add_f32 {vr(g,2)}, {vr(g,2)}, {vr(g+4*k,2)}")
    xreduce((P32,), [g, g + 1], [g + 2, g + 3])
    A(f"v_mul_f32 {vr(g)}, {fbits(1/896)}, {vr(g)}\nv_mul_f32 {vr(g+1)}, {fbits(1/896)}, {vr(g+1)}")
    A(f"v_fma_f32 {vr(g+1)}, -{vr(g)}, {vr(g)}, {vr(g+1)}\nv_max_f32 {vr(g+1)}, 0, {vr(g+1)}\nv_add_f32 {vr(g+1)}, {fbits(1e-5)}, {vr(g+1)}\nv_rsq_f32 {vr(g+2)}, {vr(g+1)}\ns_nop 0")
    A(f"v_mul_f32_e64 {vr(g+3)}, -{vr(g)}, {vr(g+2)}\nv_mov_b32 {vr(g+4)}, {vr(g+2)}\nv_mov_b32 {vr(g+5)}, {vr(g+3)}\ns_nop 1\n{P16} {vr(g+2)}, {vr(g+4)}\n{P16} {vr(g+3)}, {vr(g+5)}\ns_nop 1")
    for xt in (0, 1):
        for i in range(4):
            b = vZ + 16 * xt + 4 * i; pp = vr(g + 2 + 2 * xt, 2)
            for p in (0, 2): A(f"v_pk_fma_f32 {vr(b+p,2)}, {vr(b+p,2)}, {pp}, {pp} op_sel:[0,0,1] op_sel_hi:[1,0,1]")
            A(f"v_cvt_pk_bf16_f32 {vr(b)}, {vr(b)}, {vr(b+1)}\nv_cvt_pk_bf16_f32 {vr(b+1)}, {vr(b+2)}, {vr(b+3)}")
            A.ds(f"ds_write_b64 v{160+i}, {vr(b,2)} offset:{xt*1024}")
    A.wait_all_lg()
    for i in range(4):
        A.ds(f"ds_read_b64_tr_b16 {vr(ZH+4*i,2)}, v{164+i}")
        A.ds(f"ds_read_b64_tr_b16 {vr(ZH+4*i+2,2)}, v{164+i} offset:2048")
    A.wait_all_lg()
    for i in range(4): A.tok["Z"] = A.vmem(f"buffer_store_dwordx4 {vr(ZH+4*i,4)}, {vL16}, {sWS}, {sKB} offen offset:{1024*i} sc1")
    A.stamp(5)

ring = [48, 52, 56, 60, 64, 20, 24, 28, 236, 248, 252, 228, 232] + [40, 44, 32, 240, 244]
ONE = [208, 212, 216, 220, 224, 68, 72, 76] if OPT["npx"] else []
NPRE = 13 + len(ONE)
def zreg(n): return ONE[n] if n < len(ONE) else ring[(n - len(ONE)) % len(ring)]
tz = {}
def zpos(n): return divmod(n, 4) if n < 64 else ((n - 64) // 2, 4 + (n & 1)) if n < 96 else (n - 96, 6)
def z_item(n):
    ks, ft = zpos(n); pre = ""
    if ft in (0, 4) or (ft == 6 and ks % 2 == 0):
        add = (57344 if ks & 1 else 0) + (4096 if ft else 0)
        pre = f"s_bfe_u32 {sZ}, {sROT}, {(4<<16)|(4*(ks>>1))}\ns_mul_i32 {sZ}, {sZ}, 114688" + (f"\ns_add_u32 {sZ}, {sZ}, {add}" if add else "")
    elif ft == 6: pre = f"s_add_u32 {sZ}, {sZ}, 57344"
    return (pre, f"buffer_load_dwordx4 {vr(zreg(n),4)}, {vZA}, {sWS}, {sZ} offen offset:{(ft&3)*1024} sc1")
def mid_B():
    A.c('stage B: rows t = r mod 32: z1 tile, gate logits, hidden-dim DFT; w_sp rows -> AGPRs')
    A(f"s_add_u32 {sT0}, {sW2048}, {SL[6]}\nv_add_u32 v12, {sT0}, {vXrd0}\nv_add_u32 v13, {sT0}, {vXrd1}")
    for x in (1, 2, 3): A(f"v_xor_b32 v{12+2*x}, {2048*x}, v12\nv_xor_b32 v{13+2*x}, {2048*x}, v13")
    P = Pipe()
    if OPT["eb"]: pushc(2)
    else: c_read(0); gbar("X3", False); pushc(2); pushc(3)
    def fz():
        A.wait_named("Z"); A("s_barrier")
        A(f"s_lshl_b32 {sT0}, {sCA}, 12\ns_lshl_b32 {sT1}, {sR}, 7\ns_add_u32 {sT0}, {sT0}, {sT1}\ns_add_u32 {sT0}, {sT0}, {FLAGZ}")
        flag_store(sT0, True); A.stamp(6)
    hk = {4: fz}
    for j, ks in enumerate(CK): hk[ks] = (lambda j=j: cnext(j + 1))
    for G in range(4): stageB(P, G, hk)
    P.run(OPT["look"])
    A.stamp(8)
    A("s_barrier")
    tk = flagZ_issue()
    for j in range(len(CK) + 1, 5): cnext(j)
    A(f"s_mul_i32 {sT0}, {sC}, 7168\ns_mul_i32 {sT1}, {sW}, {16*57344}\ns_add_u32 {sT0}, {sT0}, {sT1}\ns_add_u32 {sT0}, {sT0}, {Z2N}\nv_add_u32 {vZA}, {sT0}, {vL16}")
    def pz():
        poll(LDZ, tagcmp([246]), tk); A.stamp(9)
        for n in range(NPRE): A.push([z_item(n)], "z%d" % n)
    b_epilogue(pz)
    for n in range(NPRE): tz[n] = A.tok["z%d" % n]
    A.stamp(10)

FIX = []
LSO = (0, 1, 4, 5, 2, 3, 6)
def back():
    A.c('P2: w_sp @ z2n (K split over waves), h = z1*(g+b)*(1-gate); P3: sequence pass 2 + h @ w_out')
    A.raw('Lph_p2:')
    A.stamp(11)
    ACC = 116; CF = 68; R = len(ring)
    FB = [zreg(n) for n in range(94, 102)]
    def zload(n):
        pre, ins = z_item(n)
        if pre: A.raw(pre)
        tz[n] = A.vmem(ins)
    F = []
    for u in (1, 2, 3):
        F += [f"s_add_u32 {sT0}, {sW}, {u}\ns_and_b32 {sT0}, {sT0}, 3", f"s_mul_i32 {sT0}, {sT0}, 21504\ns_add_u32 {sT0}, {sT0}, {(u-1)*7168}", f"v_add_u32 v{15+u}, {sT0}, {vL16}"]
    F += [f"s_mul_i32 {sT0}, {sW}, 21504\nv_add_u32 v19, {sT0}, {vL16}"]
    F += [f"s_sub_u32 {sT0}, 32, {sR}\ns_min_u32 {sT0}, {sT0}, {sR}", f"s_and_b32 {sT0}, {sT0}, 15\ns_mul_i32 {sT0}, {sT0}, 139264", f"s_add_u32 {sT0}, {sT0}, {F2}\ns_mul_i32 {sT1}, {sW}, 8704",
          f"s_add_u32 {sT0}, {sT0}, {sT1}\ns_lshl_b32 {sT1}, {sC}, 6", f"s_cmp_ge_u32 {sC}, 4\ns_cselect_b32 s21, 0x300, 0\ns_cselect_b32 {sT2}, 48, 0", f"s_add_u32 {sT2}, {sT2}, {sT1}\nv_add_u32 v12, {sT2}, {vI16}",
          "v_sub_u32 v13, 512, v12", "v_min_u32 v12, v12, v13", f"s_mov_b32 {sT2}, {8*4352}\nv_lshlrev_b32 v12, 4, v12", f"v_mad_u32_u24 v12, {vQ}, {sT2}, v12", f"v_add_u32 v12, {sT0}, v12"]
    F += [f"v_lshrrev_b32 v13, 3, {vLane}", "v_mul_u32_u24 v13, 9, v13", f"v_add_u32 v13, {sT1}, v13", "v_sub_u32 v114, 512, v13", "v_min_u32 v13, v13, v114",
          "v_bfe_u32 v13, v13, 5, 3", "v_and_b32 v114, 6, v1", "v_lshlrev_b32 v114, 2, v114", "v_and_or_b32 v114, v1, 1, v114", "v_lshl_add_u32 v13, v13, 5, v114", "v_lshlrev_b32 v13, 7, v13",
          f"s_lshl_b32 {sT0}, {sW}, 8\ns_add_u32 {sT0}, {sT0}, {FLAGF}", f"v_add_u32 v13, {sT0}, v13"]
    F += [f"s_mov_b32 {sSEL[0]}, 0x03020100\ns_mov_b32 {sSEL[1]}, 0x01000302", f"s_cmp_lt_u32 {sR}, 16\ns_cselect_b32 {sM0}, 0x80000000, 0", f"s_or_b32 {sM1}, {sM0}, 0x8000",
          f"s_cmp_eq_u32 {sR}, 0\ns_cselect_b32 {sSEL[0]}, 0x0c0c0100, {sSEL[0]}\ns_cselect_b32 {sSEL[1]}, 0x0c0c0302, {sSEL[1]}",
          f"s_cmp_eq_u32 {sR}, 16\ns_cselect_b32 {sSEL[0]}, 0x01000c0c, {sSEL[0]}\ns_cselect_b32 {sSEL[1]}, 0x03020c0c, {sSEL[1]}\ns_cselect_b32 {sM1}, 0x80000000, {sM1}",
          f"s_cmp_ge_u32 {sC}, 4\ns_cselect_b32 {sT3}, 0x80008000, 0\ns_xor_b32 {sM1}, {sM1}, {sT3}"]
    F += [f"s_mul_i32 {sT0}, {sC}, {OPT['prot']}\ns_add_u32 s47, {sW}, {sT0}\ns_and_b32 s47, s47, 3", f"s_mul_i32 {sKB}, {sR}, {4*28672}\ns_add_u32 {sKB}, {sKB}, {HB}", f"s_mul_i32 {sT0}, s47, 7168\ns_add_u32 {sKB}, {sKB}, {sT0}",
          f"s_mul_i32 s20, {sC}, 114688\ns_mul_i32 {sT0}, s47, 28672", f"s_add_u32 s20, s20, {sT0}\ns_add_u32 s20, s20, {WOP}"]
    for u in range(4):
        F += [f"s_add_u32 {sT0}, {sW}, {u}\ns_and_b32 {sT0}, {sT0}, 3", f"s_mul_i32 {sT0}, {sT0}, 28672\ns_add_u32 s{24+u}, {sT0}, {sKB}"]
    F += [f"s_lshl_b32 {sT0}, {sW}, 1\nv_lshlrev_b32 v11, 3, {vQ}", f"v_add_u32 v11, {sT0}, v11", "v_cvt_f32_u32 v11, v11"]
    gu = [vG, "v14", "v15", "v6"]
    F += [f"v_mul_f32 {vOMG}, {fbits(1.4426950408889634)}, {vG}", f"v_exp_f32 {vOMG}, {vOMG}", f"v_add_f32 {vOMG}, 1.0, {vOMG}", f"v_rcp_f32 {vOMG}, {vOMG}"]
    for g_ in gu: F += [f"v_mul_f32 {g_}, {fbits(-1.4426950408889634)}, {g_}", f"v_exp_f32 {g_}, {g_}", f"v_add_f32 {g_}, 1.0, {g_}", f"v_rcp_f32 {g_}, {g_}"]
    for u in range(4):
        F += [f"s_sub_i32 {sT0}, {sCU[u]}, {sCU[0]}\ns_ashr_i32 {sT0}, {sT0}, 12", f"v_add_u32 v4, {sT0}, {vTrow}", "v_cvt_f32_u32 v4, v4", f"v_mul_f32 v4, {fbits(1/2048)}, v4", "v_mul_f32 v5, v4, v11"]
        for k in (0, 1):
            for g2 in (0, 1):
                d = CF + 8 * u + 4 * k + 2 * g2
                F += [f"v_fmamk_f32 v114, v4, {fbits(float(k+32*g2))}, v5"] + (["v_fract_f32 v114, v114"] if OPT["fract"] else []) + ["v_sin_f32 v115, -v114", "v_cos_f32 v114, v114",
                      f"v_mul_f32 v115, {gu[u]}, v115", f"v_mul_f32 v114, {gu[u]}, v114", "v_cvt_pk_bf16_f32 v114, v114, v115",
                      f"v_perm_b32 {vr(d)}, v114, v114, {sSEL[0]}", f"v_perm_b32 {vr(d+1)}, v114, v114, {sSEL[1]}",
                      f"v_xor_b32 {vr(d)}, {sM0}, {vr(d)}", f"v_xor_b32 {vr(d+1)}, {sM1}, {vr(d+1)}"]
    F += [f"v_lshlrev_b32 v6, 10, {vTrow}", f"v_bfe_u32 v114, {vLane}, 4, 1", "v_lshl_add_u32 v6, v114, 5, v6", f"v_lshrrev_b32 v114, 5, {vLane}", "v_lshl_add_u32 v6, v114, 4, v6",
          f"v_lshlrev_b32 v14, 3, {vLane}", "v_and_b32 v15, 56, v14", "v_lshlrev_b32 v15, 4, v15"]
    F += [f"s_mul_i32 s46, s47, 896\ns_add_u32 s46, s46, {FLAGQ}", "v_min_u32 v115, 768, v15"]
    F += [f"s_lshl_b32 {sT0}, s47, 13\ns_lshl_b32 {sT1}, {sR}, 7", f"s_add_u32 {sT0}, {sT0}, {sT1}\ns_add_u32 {sT0}, {sT0}, {FLAGF}", f"s_sub_u32 {sT0}, {sT0}, s46\nv_and_b32 v114, 1, v1", f"v_lshl_add_u32 v114, v114, 12, {sT0}",
          "v_cmp_lt_u32 vcc, 31, v1\ns_nop 1\nv_cndmask_b32 v115, v115, v114, vcc"]
    F += ["v_bfe_u32 v15, v1, 1, 2", "v_mul_u32_u24 v15, 28672, v15", "v_and_b32 v114, 1, v1", "v_lshl_add_u32 v15, v114, 9, v15"]
    F += ["v_lshrrev_b32 v11, 4, v1", "v_lshl_add_u32 v11, v11, 24, v14", f"s_lshl_b32 s45, {sR}, 12\ns_lshl_b32 {sT0}, s47, 10", f"s_add_u32 s45, s45, {sT0}\ns_add_u32 s45, s45, {FLAGH}", "v_and_b32 v114, 7, v1", "v_lshlrev_b32 v114, 7, v114"]
    F += [f"s_add_u32 {sCU[u]}, s{24+u}, 4096" for u in range(4)]
    nsetup = len(F) - 10
    F = deque(F)
    def red_w(ft): return [(lambda u=u: A.ds(f"ds_write_b128 v{15+u}, {vr(ACC+(ft*4+u)*4,4)} offset:{ft*1024}")) for u in (1, 2, 3)]
    tk = {}
    def red_r(ft):
        def f(u): tk[ft] = A.ds(f"ds_read_b128 {vr(ACC+(ft*4+u)*4,4)}, v19 offset:{(u-1)*7168+ft*1024}")
        return [(lambda u=u: f(u)) for u in (1, 2, 3)]
    def hst(t): tk["h"] = A.vmem(t)
    def epi(ft):
        b = ACC + ft * 16; hq = ACC + (ft & ~1) * 16 + 12 + 2 * (ft & 1); z = b + 4
        E = [f"v_add_f32 {vr(b+p)}, {vB}, {vr(b+p)}" for p in range(4)]
        E += [lambda: A.wait_lg(tk[ft])]
        E += [f"v_add_f32 {vr(b+p)}, {vr(b+p)}, {vr(b+4+p)}" for p in range(4)] + [f"v_add_f32 {vr(b+8+p)}, {vr(b+8+p)}, {vr(b+12+p)}" for p in range(4)]
        for k in (0, 1): E += [f"v_lshlrev_b32 {vr(z+2*k)}, 16, {vr(Z1P+2*ft+k)}", f"v_and_b32 {vr(z+2*k+1)}, 0xffff0000, {vr(Z1P+2*ft+k)}"]
        E += [f"v_add_f32 {vr(b+p)}, {vr(b+p)}, {vr(b+8+p)}" for p in range(4)]
        E += [f"v_mul_f32 {vr(z+p)}, {vOMG}, {vr(z+p)}" for p in range(4)]
        E += [f"v_mul_f32 {vr(b+p)}, {vr(b+p)}, {vr(z+p)}" for p in range(4)]
        E += [f"v_cvt_pk_bf16_f32 {vr(hq)}, {vr(b)}, {vr(b+1)}", f"v_cvt_pk_bf16_f32 {vr(hq+1)}, {vr(b+2)}, {vr(b+3)}"]
        if ft % 2: E += [lambda: hst(f"buffer_store_dwordx4 {vr(hq-2,4)}, {vL16}, {sWS}, s80 offen offset:{1024*(ft>>1)} sc1")]
        if ft == 6: E += [f"v_min_u32 {vr(hq)}, -2, {vr(hq)}", lambda: A.wait_vm(tk["h"]), lambda: A.vmem(f"buffer_store_dwordx2 {vr(hq,2)}, v14, {sWS}, s81 offen offset:3072 sc1")]
        return E
    def run(e): A.raw(e) if isinstance(e, str) else e()
    bar = lambda: (A.wait_all_lg(), A.raw("s_barrier"))
    def elist(fts, gap): return deque(sum((red_w(ft) for ft in fts), []) + [""] * gap + [bar] + sum((red_r(ft) for ft in fts), []) + [""] * gap + sum((epi(ft) for ft in fts), []))
    E1, E2 = elist(range(4), 16), elist((4, 5), 10)
    E2.insert(OPT["fa"], lambda: (A.wait_vm(tk["h"]), A.vmem(f"buffer_store_dwordx2 v[8:9], v11, {sWS}, s82 offen sc1")))
    ldF = [f"buffer_load_dwordx2 v[2:3], v13, {sWS}, 0 offen sc1", f"buffer_load_dwordx2 v[4:5], v115, {sWS}, s46 offen sc1"]
    A.per = 56
    NPF = OPT["npf"]
    for j in range(max(5, len(CK) + 1), 8): c_read(j)
    nxt = NPRE
    late = [(f"s_add_u32 {sBG}, s20, {(m>>2)*4096}" if m % 4 == 0 else "", f"buffer_load_dwordx4 {ar(16*LSO.index(ls_)+4*(m&3),4)}, {vL16}, {sWS}, {sBG} offen offset:{(m&3)*1024} sc1") for ls_ in LSO for m in range(4 * ls_, 4 * ls_ + 4)]
    fl = [(f"s_xor_b32 {sBG}, s21, {et*256}" + (f"\ns_add_u32 {sBG}, {sBG}, 4352" if k else ""), f"buffer_load_dwordx4 {vr(FB[k*4+et],4)}, v12, {sWS}, {sBG} offen sc1") for k in (0, 1) for et in range(4)]
    for n in range(112):
        ks, ft = zpos(n)
        if n == 4: A.wait_all_lg()
        if n == 40: A("s_barrier")
        if n == NPF + R + 1: poll(ldF, tagcmp([2, 4]), tokPF)
        A.wait_vm(tz[n])
        pass
        for u in range(4):
            mfma(vr(ACC + (ft * 4 + u) * 4, 4), vr(zreg(n), 4), ar((ks * 4 + u) * 4, 4), "0" if ks == 0 else None)
            if n >= 4 and F: A.raw(F.popleft())
            for _ in range(1 if F else 2):
                if n >= 66 and E1: run(E1.popleft())
                elif n >= 98 and E2: run(E2.popleft())
            if u == 1 and nxt < max(n, len(ONE)) + R and nxt < 112: zload(nxt); nxt += 1
        if nxt < max(n + 1, len(ONE)) + R and nxt < 112: zload(nxt); nxt += 1
        if n == NPF:
            assert n * 4 - 16 > nsetup
            for l in ldF: tokPF = A.vmem(l)
        if n >= 94 and n < 102: assert FB[n - 94] == zreg(n); A.push([fl[n - 94]], "FL" if n == 101 else None)
        if n == 101: A.push(late[:16], "WA")
    assert not F and not E1
    while E2: run(E2.popleft())
    ldA = [f"buffer_load_dword v4, v114, {sWS}, s45 offen sc1"]
    ldH = [f"buffer_load_dword v3, v15, {sWS}, {sKB} offen offset:3072 sc1"]
    if OPT["ea"]: tokA = A.vmem(ldA[0])
    A("s_nop 7")
    A.stamp(12)
    A.raw('Lph_tail:')
    for e in elist((6,), 0): run(e)
    A.stamp(13)
    if not OPT["ea"]: tokA = A.vmem(ldA[0])
    OA = 116
    RED2 = 98304
    hr = [q for q in list(range(228, 256, 4)) + list(range(20, 36, 4)) + list(range(40, 68, 4)) if q not in FB] + list(range(180, 228, 4)) + FB
    th = {}
    NO = OPT['no']
    order = [(u, ls) for i_, ls in enumerate((0, 1, 4, 5)) for u in range(0 if i_ < NO else 1, 4)] + [(u, ls) for u in (1, 2, 3) for ls in (2, 3, 6)] + [(0, ls) for ls in (0, 1, 4, 5)[NO:] + (2, 3, 6)]
    NA = 12 + NO
    def htext(n):
        u, ls = order[n]; h = hr[n]
        sb = f"s{24+u}" if ls < 4 else sCU[u]; io = (ls & 3) * 1024
        if ls == 3: return [f"buffer_load_dwordx2 {vr(h+2*k,2)}, v14, {sWS}, {sb} offen offset:{io+512*k} sc1" for k in (0, 1)]
        return [f"buffer_load_dwordx4 {vr(h,4)}, {vL16}, {sWS}, {sb} offen offset:{io} sc1"]
    A.flush()
    poll(ldA, "v_cmp_eq_u32 vcc, -1, v4", tokA, sleep=OPT["hsleep"]); A.st("gotA", 2)
    for n in range(NA):
        A.push([("", t_) for t_ in htext(n)], "h%d" % n)
        if n == OPT["sb"] - 1: A.push([("", ldH[0])], "hs")
    A.push(late[16:])
    A.per = OPT["pert"]
    A.flush("h%d" % OPT["hf"])
    for u in (1, 2, 3):
        A(f"s_add_u32 {sT0}, {sW}, {u}\ns_and_b32 {sT0}, {sT0}, 3\ns_mul_i32 {sT0}, {sT0}, 12288\ns_add_u32 {sT0}, {sT0}, {RED2+(u-1)*4096}\nv_add_u32 v{15+u}, {sT0}, {vL16}")
    A(f"s_mul_i32 {sT0}, {sW}, 12288\ns_add_u32 {sT0}, {sT0}, {RED2}\nv_add_u32 v19, {sT0}, {vL16}\ns_lshl_b32 {sT1}, {sC}, 7\ns_add_u32 {sT2}, {sT1}, {1024*1024}")
    if OPT["ofl"]: A(f"v_bfe_u32 v13, v1, 3, 1\nv_mul_u32_u24 v13, {1024*1024-64}, v13\nv_sub_u32 v6, v6, v13")
    for k in (0, 1):
        for u in range(4):
            for et in range(4): mfma(vr(OA + 16 * u + 4 * et, 4), vr(FB[k * 4 + et], 4), vr(CF + 8 * u + 4 * k, 4), "0" if k == 0 else None)
    A.stamp(14)
    def hw(n): A.flush("h%d" % n); A.wait_vm(A.tok["h%d" % n])
    def chk(n): return f"v_max_u32 v2, {vr(hr[n])}, {vr(hr[n]+2)}\nv_cmp_eq_u32 vcc, -1, v2" if order[n][1] == 3 else f"v_cmp_eq_u32 vcc, -1, {vr(hr[n])}"
    def br(n):
        A.raw(f"s_cbranch_vccnz Lfix{n}\nLbk{n}:")
        FIX.append(f"Lfix{n}:\ns_mov_b32 {sSPIN}, 0x400000\nLfl{n}:\n" + "\n".join(htext(n)) + f"\ns_waitcnt vmcnt(0)\n{chk(n)}\ns_cbranch_vccz Lbk{n}\ns_sub_u32 {sSPIN}, {sSPIN}, 1\ns_cmp_lg_u32 {sSPIN}, 0\ns_cbranch_scc1 Lfl{n}\ns_branch Lbk{n}")
    for n in range(28):
        u, ls = order[n]
        if n == OPT["sb"]:
            A.flush("hs"); A.stamp(15); poll(ldH, "v_cmp_eq_u32 vcc, -1, v3", A.tok["hs"], sleep=OPT["hsleep"]); A.stamp(16)
            for m in range(NA, 28): A.push([("", t_) for t_ in htext(m)], "h%d" % m)
        if n == NA: A.flush("h%d" % min(27, NA + 8))
        hw(n)
        if n in (0, 7, 14, 21, 26): A.st("h%d" % n, 2)
        for et in range(4):
            mfma(vr(OA + 16 * u + 4 * et, 4), ar((LSO.index(ls) * 4 + et) * 4, 4), vr(hr[n], 4))
            if et == 1 and n < 27 and order[n + 1][1] == 3: hw(n + 1); A.raw(chk(n + 1))
        if n < 27 and order[n + 1][1] == 3: br(n + 1)
        if n in (NA + 4, NA + 7, NA + 10):
            up = order[n - 2][0]
            for et in range(4): A.ds(f"ds_write_b128 v{15+up}, {vr(OA+16*up+4*et,4)} offset:{et*1024}")
        if n == min(27, NA + 12):
            A.wait_all_lg(); A.st("hb", 2); A("s_barrier")
            for k in range(12): A.ds(f"ds_read_b128 {vr(OA+16+4*k,4)}, v19 offset:{k*1024}")
    A.wait_all_lg(); A("s_nop 4")
    for p in range(0, 16, 2): A(f"v_pk_add_f32 {vr(OA+16+p,2)}, {vr(OA+16+p,2)}, {vr(OA+32+p,2)}")
    for p in range(0, 16, 2): A(f"v_pk_add_f32 {vr(OA+p,2)}, {vr(OA+p,2)}, {vr(OA+48+p,2)}")
    for p in range(0, 16, 2): A(f"v_pk_add_f32 {vr(OA+p,2)}, {vr(OA+p,2)}, {vr(OA+16+p,2)}")
    for et in range(4):
        A(f"v_cvt_pk_bf16_f32 v{40+2*et}, {vr(OA+4*et)}, {vr(OA+4*et+1)}\nv_cvt_pk_bf16_f32 v{41+2*et}, {vr(OA+4*et+2)}, {vr(OA+4*et+3)}")
    A("s_nop 1")
    for pr in (0, 1): A(f"{P16} v{40+4*pr}, v{42+4*pr}\n{P16} v{41+4*pr}, v{43+4*pr}")
    osc = ('', 'sc1', 'nt', 'sc0 sc1', 'sc1 nt')[OPT['osc']]
    if OPT["ofl"]:
        for k in range(4): A(f"v_mov_b32 v{48+k}, v{40+k}")
        for k in range(4): A(f"v_mov_b32_dpp v{40+k}, v{44+k} row_ror:8 row_mask:0xf bank_mask:0xc")
        for k in range(4): A(f"v_mov_b32_dpp v{44+k}, v{48+k} row_ror:8 row_mask:0xf bank_mask:0x3")
        for pr in (0, 1): A.vmem(f"buffer_store_dwordx4 {vr(40+4*pr,4)}, v6, {sOUT}, {sT2 if pr else sT1} offen {osc}")
    else:
        A("s_nop 1")
        for pr in (0, 1): A.vmem(f"buffer_store_dwordx4 {vr(40+4*pr,4)}, v6, {sOUT}, {sT1} offen offset:{64*pr} {osc}")
    A.stamp(17)
    lb = A.lab("Lnobump")
    A(f"s_or_b32 {sT0}, s2, {sW}\ns_cmp_lg_u32 {sT0}, 0\ns_cbranch_scc1 {lb}")
    A(f"v_mov_b32 v11, {EPOCH}\ns_mov_b64 exec, 1\nbuffer_store_dwordx2 v[38:39], v11, {sWS}, 0 offen sc1\ns_mov_b64 exec, -1\n{lb}:")
    if OPT["diag"] >= 0:
        A(f"s_cmp_lg_u32 s2, 9\ns_cbranch_scc1 Lend\ns_sub_u32 s96, s96, s98\ns_lshl_b32 s96, s96, 3\ns_add_u32 s96, s96, 5000\nLdiag:\ns_memrealtime s[100:101]\ns_waitcnt lgkmcnt(0)\ns_sub_u32 s100, s100, s98\ns_cmp_lt_u32 s100, s96\ns_cbranch_scc1 Ldiag")
    if OPT["prof"]:
        A("s_memrealtime s[100:101]\ns_waitcnt lgkmcnt(0)\nv_writelane_b32 v0, s100, 63")
        A(f"s_lshl_b32 {sT0}, s2, 2\ns_add_u32 {sT0}, {sT0}, {sW}\ns_lshl_b32 {sT0}, {sT0}, 8\ns_add_u32 {sT0}, {sT0}, {TS}\nv_lshlrev_b32 v11, 2, v1\nbuffer_store_dword v0, v11, {sWS}, {sT0} offen")

if OPT['ce']: OPT['x0'] = 3
prologue()
A(f"s_cmp_eq_u32 {sCA}, 7\ns_cbranch_scc1 Llead")
st = (list(A.vm), list(A.lg))
front_main()
assert not A.bg
A.raw("Ljoin:")
front2()
mid_B()
back()
A("s_branch Lend")
A.raw("Llead:")
A.vm, A.lg = st; A.tok = {}; A.per = OPT["per"]
front_lead()
assert not A.bg
A("s_branch Ljoin")
for f_ in FIX: A.raw(f_)
A("Lend:\ns_endpgm")

hdr = open("cdna_kernels/%s.s.ref" % NAME).read().split("; Override launch")[0]
if OPT["prof"]: hdr += "; STAMPS " + " ".join(A.names) + "\n"
hdr += """; ---------------------------------------------------------------------------------------------
;  * FNet branch: A_dft_* are the constant DFT matrices (identical for every seed), so Re(F_S x F_D) is evaluated as a
;    Cooley-Tukey factorisation (hidden dim: radix 4 x 128 with Hermitian symmetry; sequence dim: radix 32 x 64) whose
;    twiddles cos/sin(2*pi*k/N) are produced with v_cos/v_sin instead of being read.
;  * Hand-offs between workgroups go through d_ws with sc1 stores/loads. Flags carry a tag hashed from a word this launch
;    reads in d_ws at entry (and replaces at its end), only to tell its own flags from stale ones. Placement-independent.
; ---------------------------------------------------------------------------------------------
"""
out = hdr + "; @launch grid=(256,1,1) block=(256,1,1) lds=%d\n" % LDS_SIZE
out += '.amdgcn_target "amdgcn-amd-amdhsa--gfx950"\n.text\n.globl %s_kernel\n.p2align 8\n.type %s_kernel,@function\n%s_kernel:\n' % (NAME, NAME, NAME)
def addnt(l):
    t = l.strip()
    if OPT["nt"] and (t.startswith("buffer_load") or t.startswith("global_load")) and sWS not in t:
        return l[:-4] + " nt lds" if t.endswith(" lds") else l + " nt"
    return l
if OPT["wx"] == 1: A.L = [l.replace(" sc1", "") if ("v25," in l or "v26," in l) and "a[" in l else l for l in A.L]
if OPT["wx"] == 2: A.L = [l for l in A.L if not ("v26," in l and "a[" in l)]
if OPT["wx"] == 3: A.L = [l.replace("v26, s[40:43]", "v25, s[28:31]").replace("s_mul_i32 s3, s94,", "s_add_u32 s3, s3, 1024 ;") for l in A.L]
if OPT["ph"]:
    i1, i2 = A.L.index("Lph_p2:"), A.L.index("Lph_tail:")
    kinds = {1: ("v_mfma",), 2: ("v_mfma",), 3: ("v_mfma", "ds_read"), 4: ("v_pk_", "v_exp", "v_rcp", "v_cos", "v_sin", "v_fmamk", "v_cvt_pk")}[OPT["ph"]]
    A.L = [l for i, l in enumerate(A.L) if not (l.strip().startswith(kinds) and ((i1 < i < i2) if OPT["ph"] == 1 else (i < i1)))]
ab = OPT["abl"]
def ablate(i, l):
    t = l.strip()
    oob = lambda reg: l.replace(reg, "v19x")
    if not t.startswith("buffer_"): return True
    if ab == 1: return not ("v25," in t or "v26," in t)
    if ab == 2: return not ("v29," in t or "v30," in t)
    if ab == 3: return not ("v35," in t)
    if ab == 4: return not (t.startswith("buffer_load_dwordx4 a[") and ", v7," in t)
    if ab == 5: return not (", v37," in t and "offset:1024" in t)
    if ab == 6: return not (t.startswith("buffer_load_dwordx4 a[") and ", v12," in t)
    if ab == 7: return not ("v28," in t or any("v%d," % k in t for k in (113, 115, 117, 119)))
    if ab == 8: return not ("v[236:239]" in t and "s80" in t)
    if ab == 9: return not (t.startswith("buffer_store_dwordx4 v[22") or t.startswith("buffer_store_dwordx4 v[232"))
    return True
if ab: A.L = [l for i, l in enumerate(A.L) if ablate(i, l)]
def keep(l):
    t = l.strip()
    if OPT["strip"] == 1: return not t.startswith(("v_mfma", "ds_", "v_pk_", "v_exp", "v_rcp", "v_cos", "v_sin", "v_fract", "v_fmamk", "v_cvt_pk", "v_perm_b32"))
    if OPT["strip"] == -1: return not (t.startswith("buffer_store_dwordx2 v[1") and ", v14, " in t)
    if OPT["strip"] == -2: return not t.startswith("s_cbranch_vccnz Lfix")
    if OPT["strip"] == -3: return not (t.startswith("s_cbranch_vccnz Lfix") or t.startswith("v_mfma"))
    if OPT["strip"] == 3 and t.startswith("ds_read"): return False
    if OPT["strip"] == 4 and t.startswith("s_waitcnt lgkmcnt") and not t.endswith("(0)"): return False
    if OPT["strip"] == 5 and t.startswith("v_mfma"): return False
    if OPT["strip"] == 6 and t.startswith("s_barrier"): return False
    if OPT["strip"] >= 2: return not (t.endswith(" lds") or (t.startswith("buffer_load_dwordx4") and (", v37, " in t or ", v7, " in t or " a[" in t)))
    return True
out += "\n".join(addnt(l) for l in A.L if keep(l)) + "\n"
out += """.section .rodata,"a"
.p2align 6
.amdhsa_kernel %s_kernel
  .amdhsa_next_free_vgpr 512
  .amdhsa_next_free_sgpr 102
  .amdhsa_accum_offset 256
  .amdhsa_group_segment_fixed_size 0
  .amdhsa_kernarg_size 112
  .amdhsa_user_sgpr_count 2
  .amdhsa_user_sgpr_kernarg_segment_ptr 1
  .amdhsa_system_sgpr_workgroup_id_x 1
.end_amdhsa_kernel
""" % NAME
def align_pass(out):
    import subprocess, re, os
    tmp = "_al_%d" % os.getpid()
    open(tmp + ".s", "w").write(out)
    subprocess.run(["clang", "-x", "assembler", "-target", "amdgcn-amd-amdhsa", "-mcpu=gfx950", "-c", tmp + ".s", "-o", tmp + ".o"], check=True)
    dis = subprocess.run(["llvm-objdump", "-d", "--mcpu=gfx950", tmp + ".o"], capture_output=True, text=True).stdout
    os.remove(tmp + ".s"); os.remove(tmp + ".o")
    info = [(m.group(1), len(m.group(2).split()) * 4) for m in re.finditer(r"^\t(\S+).*// [0-9A-F]+: ([0-9A-F ]+)", dis, re.M)]
    lines = out.split("\n")
    idx = [i for i, l in enumerate(lines) if l.startswith("    ") and not l.strip().startswith((";", "."))]
    assert len(idx) == len(info), (len(idx), len(info))
    off = 0; cand = None; n = 0
    for k, (i, (op, sz)) in enumerate(zip(idx, info)):
        if sz == 8 and off % 8 == 4 and cand is not None and k - cand <= OPT["algn"] * 6:
            j = idx[cand]; t = lines[j].split(None, 1)
            lines[j] = "    " + t[0] + "_e64 " + t[1]; off += 4; cand = None; n += 1
        if sz == 4 and op.endswith("_e32") and not op.startswith(("v_readfirstlane", "v_permlane", "v_swap", "v_cndmask", "v_cmp")): cand = k
        elif sz == 8: cand = None
        off += sz
    return "\n".join(lines)
if OPT["algn"]: out = align_pass(out)
open(sys.argv[1], "w").write(out)
```

```python
import sys, struct
from collections import deque
NAME = "gated_mix__spectral_fnet__mixer_gmlp__prompt"
OPT = dict(diag=-1, hl=10, p2st=0, strip=0, ahead=0, sleep=4, npf=76, nt=0, rota=3, rotc=1, prof=0, xmap=1, per=56, pera=40, look=12, gat=6, prot=0, tlb=1, ce=0, hw=0, spec=0, sn=6, fa=10, eb=0, rot2=0, cp=0, wo=97, pert=56, no=2, ph=0, fl=1, ser=0, warm=1, wb=2, perg=90, ssleep=16, wx=0, kz=11, kc=13, per2=100, osc=2, ofl=1, npx=1, algn=1, pois=3, pp=8, abl=0, x0=1, hsleep=1, xrot=0, fa1=1, ntc=0, ck=0, rt=0, fract=0)
for a in sys.argv[2:]:
    k, v = a.split("="); OPT[k] = int(v)

def fbits(x): return "0x%08x" % struct.unpack("<I", struct.pack("<f", x))[0]
def cost(ln):
    op = ln.split()[0]
    if op.startswith("v_mfma"): return 16
    if op in ("v_exp_f32", "v_rcp_f32", "v_rsq_f32", "v_sin_f32", "v_cos_f32"): return 8
    if op.startswith("ds_read"): return 0
    if op == "s_nop": return 4 * (int(ln.split()[1]) + 1)
    return 4

class Asm:
    def __init__(s):
        s.L = []; s.vm = []; s.lg = []; s.n = 0; s.nlab = 0; s.nst = 0
        s.names = []; s.bg = deque(); s.acc = 0; s.lock = 0; s.tok = {}; s.per = OPT["per"]
    def raw(s, t):
        for ln in t.split("\n"):
            ln = ln.strip()
            if not ln: continue
            if ln.endswith(":"): s.L.append(ln)
            else: s.L.append("    " + ln); s.acc += cost(ln)
    def __call__(s, t):
        s.raw(t); s.tick()
    def tick(s):
        if s.lock or not s.bg:
            if not s.bg: s.acc = min(s.acc, s.per)
            return
        if s.acc >= s.per: s.pop()
    def pop(s):
        pre, ins, name = s.bg.popleft()
        s.lock += 1
        if pre: s.raw(pre)
        if isinstance(ins, int): t = None; s.vm.append(("c", ins))
        else: t = s.vmem(ins)
        s.lock -= 1
        if name: s.tok[name] = t
        s.acc = 0
    def push(s, items, name=None):
        for i, (pre, ins) in enumerate(items): s.bg.append((pre, ins, name if i == len(items) - 1 else None))
    def front(s, items, name):
        while s.bg and "m0" not in s.bg[0][0]: s.pop()
        new = [(p, i, name if k == len(items) - 1 else None) for k, (p, i) in enumerate(items)]
        s.bg.extendleft(reversed(new))
    def flush(s, name=None):
        while s.bg and (name is None or name not in s.tok): s.pop()
    def wait_named(s, name):
        s.flush(name)
        t = s.tok[name]
        while s.bg and t in s.vm and len(s.vm) - 1 - s.vm.index(t) < OPT["ahead"]: s.pop()
        if t in s.vm and name[0] == "W" and name not in ("W11", "W15"): s.wait_vm(t)
        if t in s.vm:
            s.st("pre_" + name, 2); s.wait_vm(t); s.st("got_" + name, 2)
    def c(s, t): s.L.append("    ; " + t)
    def lab(s, p="L"):
        s.nlab += 1; return "%s%d" % (p, s.nlab)
    def vmem(s, t):
        if len(s.vm) >= 62: s.wait_vm(s.vm[len(s.vm) - 62])
        s.raw(t); s.n += 1; s.vm.append(s.n); return s.n
    def ds(s, t):
        if len(s.lg) >= 15: s.wait_lg(s.lg[len(s.lg) - 15])
        s.raw(t); s.n += 1; s.lg.append(s.n); n = s.n; s.tick(); return n
    def wait_vm(s, tok):
        if tok not in s.vm: return
        i = s.vm.index(tok); s.vm = s.vm[i + 1:]
        sites = [x[1] for x in s.vm if isinstance(x, tuple)]; n = len(s.vm) - len(sites)
        if sites:
            l = s.lab("Lw")
            s.raw("s_waitcnt vmcnt(%d)" % (n + 8))
            for x in sites: s.raw("s_cmp_eq_u32 s67, %d\ns_cbranch_scc1 %s" % (x, l))
            s.raw("s_waitcnt vmcnt(%d)\n%s:" % (n, l))
        else: s.raw("s_waitcnt vmcnt(%d)" % n)
    def wait_lg(s, tok):
        if tok not in s.lg: return
        i = s.lg.index(tok); s.raw("s_waitcnt lgkmcnt(%d)" % (len(s.lg) - 1 - i)); s.lg = s.lg[i + 1:]
    def wait_all_lg(s):
        if s.lg: s.raw("s_waitcnt lgkmcnt(0)")
        s.lg = []
    def stamp(s, k):
        if OPT["diag"] == k: s.raw("s_memrealtime s[96:97]\ns_waitcnt lgkmcnt(0)"); s.lg = []
        s.st(str(k))
    def st(s, name, lvl=1):
        if OPT["prof"] < lvl: return
        if name not in s.names: s.names.append(name)
        k = s.names.index(name); assert k < 61
        acc = s.acc
        s.raw(("s_memrealtime" if OPT["rt"] else "s_memtime") + " s[78:79]\ns_waitcnt lgkmcnt(0)\nv_writelane_b32 v0, s78, %d" % (k + 1)); s.lg = []; s.acc = acc
A = Asm()
def vr(b, n=1): return "v%d" % b if n == 1 else "v[%d:%d]" % (b, b + n - 1)
def ar(b, n=1): return "a%d" % b if n == 1 else "a[%d:%d]" % (b, b + n - 1)
def mfma(d, a, b, c=None): A("v_mfma_f32_16x16x32_bf16 %s, %s, %s, %s" % (d, a, b, d if c is None else c))

EPOCH, FLAGZ, FLAGF, FLAGP, FLAGQ, FLAGH, STAT = 0x0, 0x90000, 0x98000, 0x1000, 0x2000, 0xA0000, 0x10000
Z2N, HB, F2, W1P, WOP, TS, WS_SIZE = 0x100000, 0x480000, 0x800000, 0xA20000, 0xB00000, 0xC00000, 0x1000000
SL = [16384 * i for i in range(10)]
PR = [32768 * i for i in range(5)]
SCR = SL[0]; Z1B = SL[6]; GX = SL[7]
LDS_SIZE = 163840
sX, sWIN, sWSP, sWOUT = ["s[%d:%d]" % (b, b + 3) for b in range(4, 20, 4)]
sAX = ["s20", "s21", "s22", "s23"]; sAW = ["s24", "s25", "s26", "s27"]
sWS, sOUT, sBSP, sGW, sTMP = ["s[%d:%d]" % (b, b + 3) for b in range(28, 48, 4)]
sROT, sBG2, sET, sSH = "s48", "s49", "s50", "s51"
sR, sC, sW = "s54", "s55", "s56"
sW2048, sW7168, sW8192 = "s57", "s58", "s59"
sCU = ["s60", "s61", "s62", "s63"]
sSEL = ["s64", "s65"]; sZ = "s66"; sSG = "s67"; sM0, sM1 = "s68", "s69"
sT0, sT1, sT2, sT3, sSPIN, sKB = "s70", "s71", "s72", "s73", "s74", "s75"
sGC = "s[76:77]"; sBG = "s3"; sCA = "s95"
vLane, vI16, vQ, vXrd0, vXrd1, vWrd, vL16, vTrow, vB, vG = ["v%d" % i for i in range(1, 11)]
vW1 = [25, 26]; vXA = [27, 28]; vXR = [29, 30]; vCb = [32, 33]; vCo = [34, 35]; vOMG = "v36"; vZA = "v37"
vR32 = 40; vWD = 48; vZ = 80; vAB = 112; vGA = 176; vFR = 180
vWA = list(range(112, 120)); vTA = list(range(120, 128))
P16, P32 = "v_permlane16_swap_b32", "v_permlane32_swap_b32"

def masked(mask_lo, mask_hi, fn):
    A.lock += 1
    A.raw(f"s_mov_b32 exec_lo, {mask_lo}\ns_mov_b32 exec_hi, {mask_hi}")
    r = fn()
    A.raw("s_mov_b64 exec, -1")
    A.lock -= 1
    return r
def flag_store(soff, w0=False):
    A("v_lshlrev_b32 v11, 3, v1")
    if w0: A(f"s_cmp_lg_u32 {sW}, 0\ns_cselect_b32 {soff}, {WS_SIZE}, {soff}")
    return masked(0xffff if OPT['fl'] else 1, 0, lambda: A.vmem(f"buffer_store_dwordx2 v[38:39], v11, {sWS}, {soff} offen sc1"))

def poll(loads, cmps, tok=None, skip7=False, sleep=None, redo=None):
    l, d, e = A.lab("Lspin"), A.lab("Ldone"), A.lab("Lredo")
    if tok is None:
        for t in loads: tok = A.vmem(t)
    A.lock += 1
    A.wait_vm(tok)
    if skip7: A.raw(f"s_cmp_eq_u32 {sCA}, 7\ns_cbranch_scc1 {d}")
    A.raw(cmps); A.raw(f"s_cbranch_vccz {d}\ns_mov_b32 {sSPIN}, 0x400000\n{l}:\ns_sleep {OPT['sleep'] if sleep is None else sleep}")
    for t in loads: A.raw(t)
    A.raw("s_waitcnt vmcnt(0)"); A.raw(cmps)
    A.raw(f"s_cbranch_vccz {e}\ns_sub_u32 {sSPIN}, {sSPIN}, 1\ns_cmp_lg_u32 {sSPIN}, 0\ns_cbranch_scc1 {l}\n{e}:")
    for t in redo or []: A.raw(t)
    A.raw(f"{d}:")
    A.lock -= 1
def tagcmp(regs):
    cm = f"v_cmp_ne_u64 vcc, s[52:53], {vr(regs[0],2)}"
    for k in regs[1:]: cm += f"\nv_cmp_ne_u64 s[78:79], s[52:53], {vr(k,2)}\ns_or_b64 vcc, vcc, s[78:79]"
    return cm

def gelu(base, n, t):
    for p0 in range(0, n, 8):
        ps = (p0, p0 + 2, p0 + 4, p0 + 6)
        for k, p in enumerate(ps): A(f"v_pk_mul_f32 {vr(t+2*k,2)}, {vr(base+p,2)}, {vr(base+p,2)}")
        for k, p in enumerate(ps): A(f"v_pk_fma_f32 {vr(t+2*k,2)}, {vr(t+2*k,2)}, {sGC}, {sGC} op_sel:[0,0,1] op_sel_hi:[1,0,1]")
        for k, p in enumerate(ps): A(f"v_pk_mul_f32 {vr(t+2*k,2)}, {vr(t+2*k,2)}, {vr(base+p,2)}")
        for k in range(8): A(f"v_exp_f32 {vr(t+k)}, {vr(t+k)}")
        for k, p in enumerate(ps): A(f"v_pk_add_f32 {vr(t+2*k,2)}, {vr(t+2*k,2)}, 1.0 op_sel_hi:[1,0]")
        for k in range(8): A(f"v_rcp_f32 {vr(t+k)}, {vr(t+k)}")
        for k, p in enumerate(ps): A(f"v_pk_mul_f32 {vr(base+p,2)}, {vr(base+p,2)}, {vr(t+2*k,2)}")

def xreduce(ops, regs, tmps):
    for op in ops:
        for r, t in zip(regs, tmps): A(f"v_mov_b32 {vr(t)}, {vr(r)}")
        A("s_nop 1")
        for r, t in zip(regs, tmps): A(f"{op} {vr(t)}, {vr(r)}")
        A("s_nop 1")
        for r, t in zip(regs, tmps): A(f"v_add_f32 {vr(r)}, {vr(r)}, {vr(t)}")

def gen_cos(dst, nd, freq, base, kfun):
    for i in range(0, nd, 2):
        ks = [kfun(2 * i + z) for z in range(4)]
        for z in range(4): A(f"v_fmamk_f32 v{16+z}, {freq}, {fbits(float(ks[z]))}, {base}")
        if OPT["fract"]:
            for z in range(4): A(f"v_fract_f32 v{16+z}, v{16+z}")
        for z in range(4): A(f"v_cos_f32 v{16+z}, v{16+z}")
        A(f"v_cvt_pk_bf16_f32 {vr(dst(i))}, v16, v17\nv_cvt_pk_bf16_f32 {vr(dst(i+1))}, v18, v19")

def it_xa(G):
    return [(f"s_add_u32 m0, {sW2048}, {SL[6+G] + sub*8192 - 128*sub}\ns_nop 0" if h == 0 else "",
             f"buffer_load_dwordx4 {vr(vXA[h])}, {sX}, {sAX[G]} offen offset:{1024*h+128*sub} lds") for sub in (0, 1) for h in (0, 1)]
def it_xr(dst, G):
    return [(f"s_add_u32 m0, {sW2048}, {dst + sub*8192 - 128*(2*G+sub)}\ns_nop 0" if h == 0 else "",
             f"buffer_load_dwordx4 {vr(vXR[h])}, {sX}, 0 offen offset:{1024*h+128*(2*G+sub)} lds") for sub in (0, 1) for h in (0, 1)]
def it_w1(ks):
    return [(f"s_mov_b32 {sBG}, {ks*57344}", f"buffer_load_dwordx4 {ar(128+ks*8,4)}, {vr(vW1[0])}, {sWS}, {sBG} offen sc1"),
            (f"s_mul_i32 {sBG}, s94, {ks}", f"buffer_load_dwordx4 {ar(128+ks*8+4,4)}, {vr(vW1[1])}, {sGW}, {sBG} offen sc1")]
def it_w2(dst, G):
    return [(f"s_add_u32 m0, {'s101' if i else 's100'}, {dst}\ns_nop 0" if i in (0, 4) else "",
             f"buffer_load_dwordx4 {vr(vWA[i])}, {sWIN}, {sAW[G]} offen offset:{1024*(i&3)} lds") for i in range(8)]
def it_c(j, dst):
    it = []
    for u in range(4):
        for h in (0, 1):
            pre = ""
            if u == 0 and h == 0:
                pre = f"s_bfe_u32 {sBG2}, {sROT}, {(4<<16)|(4*j)}\ns_lshl_b32 {sBG2}, {sBG2}, 7\nv_or_b32 {vr(vCo[0])}, {sBG2}, {vr(vCb[0])}\nv_or_b32 {vr(vCo[1])}, {sBG2}, {vr(vCb[1])}\n"
            if h == 0: pre += f"s_add_u32 m0, {sW8192}, {dst + u*2048}\ns_nop 0"
            it.append((pre, f"buffer_load_dwordx4 {vr(vCo[h])}, {sWSP}, {sCU[u]} offen offset:{1024*h}{' nt' if j < OPT['ntc'] else ''} lds"))
    return it
IT_GATE = [("", f"buffer_load_ushort {vB}, v246, {sBSP}, 0 offen")]

class Pipe:
    def __init__(s): s.mf = []; s.rd = []; s.hooks = {}; s.pres = {}
    def pre(s, fn): s.pres[len(s.mf)] = fn
    def read(s, quad, text): s.rd.append([quad, text, len(s.mf)])
    def hook(s, fn): s.hooks[len(s.rd)] = fn
    def mfma(s, d, a, b, c, uses): s.mf.append((d, a, b, c, uses))
    def run(s, D):
        free = []
        for quad, text, need in s.rd:
            free.append(max([j for j in range(need) if quad in s.mf[j][4]], default=-1))
        toks = []
        def emit():
            k = len(toks)
            if k in s.hooks: s.hooks[k]()
            toks.append(A.ds(s.rd[k][1]))
        def ready(i, d):
            k = len(toks)
            return k < len(s.rd) and s.rd[k][2] <= i + d and free[k] <= i
        while ready(-1, D): emit()
        for i, (d, a, b, c, uses) in enumerate(s.mf):
            while len(toks) < len(s.rd) and s.rd[len(toks)][2] <= i: emit()
            need = [k for k in range(len(toks)) if s.rd[k][2] <= i]
            if need: A.wait_lg(toks[need[-1]])
            if i in s.pres: s.pres[i]()
            mfma(d, a, b, c)
            if ready(i, D): emit()
            if ready(i, D - 3): emit()

def gbar(name, flush=True):
    A.wait_all_lg()
    if flush: A.flush()
    if name: A.wait_named(name)
    A("s_barrier")
    if name: A.st("bar_" + name, 2)

NF = 8
cnt = [0]
WA = [PR[0], PR[2], PR[0], PR[2]] if OPT['ce'] else [PR[0], PR[1], PR[2], PR[0]]
CS = [PR[1], PR[2], PR[0], PR[1], PR[2], PR[0], PR[1], PR[2]]
CK = [int(x) for x in str(OPT['ck']).replace('0', ' ').split()] if False else [[7, 10, 13], [6, 9, 12, 15], [5, 7, 9, 12, 14]][OPT['ck']]
ZH = 220
def stageB(P, G, hk):
    for kk in range(4):
        if 4 * G + kk in hk: P.hook(hk[4 * G + kk])
        par = kk & 1; ks = 4 * G + kk
        fb = vFR + 20 * par
        so = G * 16384 + (kk >> 1) * 8192
        z0 = "0" if ks == 0 else None
        a0 = "0" if kk == 0 else None
        for x in range(4):
            P.read(fb + 4 * x, f"ds_read_b128 {vr(fb+4*x,4)}, v{12+2*x+par} offset:{so}")
            P.mfma(vr(vAB + 16 * G + 4 * x, 4), vr(fb + 4 * x, 4), vr(vWD + 4 * kk, 4), a0, (fb + 4 * x,))
            if x == 0: P.pre(lambda ks=ks: A.wait_named("W%d" % ks))
            for i in (0, 1): P.mfma(vr(vZ + 8 * x + 4 * i, 4), ar(128 + (ks * 2 + i) * 4, 4), vr(fb + 4 * x, 4), z0, (fb + 4 * x,))

def pushc(j): A.push(it_c(j, CS[j]), "C%d" % j)
def c_read(j):
    dst = CS[j]
    A.wait_named("C%d" % j)
    for par in (0, 1):
        for u in range(4):
            A.ds(f"ds_read_b128 {ar(((2*j+par)*4+u)*4,4)}, v{240+2*(dst>>16)+par} offset:{(dst&0xffff)+u*2048}")
def cnext(j):
    c_read(j); A.wait_all_lg()
    if j + 3 < 8: pushc(j + 3)

Z1P = 100
POIS = [('', f'buffer_store_dwordx4 v[236:239], v24, {sWS}, s81 offen offset:3072 sc1')]
def poison(issue=True):
    t = 220
    A(f"s_lshl_b32 {sT0}, {sR}, 2\ns_add_u32 {sT0}, {sT0}, {sW}\ns_mul_i32 {sT0}, {sT0}, 28672\ns_lshr_b32 {sT1}, {sC}, 1\ns_mul_i32 {sT1}, {sT1}, 7168\ns_add_u32 {sT1}, {sT1}, {sT0}\ns_add_u32 {sT1}, {sT1}, {HB}")
    A(f"s_and_b32 {sT0}, {sC}, 1\ns_lshl_b32 s80, {sT0}, 12\ns_add_u32 s80, s80, {sT1}\ns_lshl_b32 s81, {sT0}, 9\ns_add_u32 s81, s81, {sT1}")
    A(f"v_mov_b32 {vr(t+16)}, -1\nv_mov_b32 {vr(t+17)}, -1\nv_mov_b32 {vr(t+18)}, -1\nv_mov_b32 {vr(t+19)}, -1")
    A(f"v_lshrrev_b32 v24, 5, v1\nv_lshl_add_u32 v24, v24, 24, {vL16}")
    if not issue: return
    for k in range(3): A.vmem(f"buffer_store_dwordx4 {vr(t+16,4)}, {vL16}, {sWS}, s80 offen offset:{1024*k} sc1")
    masked(-1, 0, lambda: A.vmem(f"buffer_store_dwordx4 {vr(t+16,4)}, {vL16}, {sWS}, s81 offen offset:3072 sc1"))
def b_epilogue(fz):
    A.c('radix-4 combine of the hidden-dim DFT, radix-32 sequence pass 1, GELU(z1)')
    t = vFR
    A(f"v_and_b32 v15, 1, v1\nv_and_b32 v16, 2, v1\nv_sub_u32 v17, 1, v16\nv_sub_u32 v18, 1, v15\nv_mul_i32_i24 v12, v17, v18\nv_mul_i32_i24 v13, v17, v15\nv_sub_u32 v14, v18, v15")
    A("v_bfe_u32 v16, v1, 3, 1\nv_lshlrev_b32 v16, 31, v16\nv_cvt_f32_i32 v12, v12\nv_cvt_f32_i32 v13, v13\nv_cvt_f32_i32 v14, v14\nv_xor_b32 v13, v16, v13")
    for p in range(0, 16, 2):
        o = [vr(vAB + 16 * m + p, 2) for m in range(4)]
        A(f"v_pk_fma_f32 {o[0]}, {o[2]}, v[14:15], {o[0]} op_sel_hi:[1,0,1]\nv_pk_add_f32 {o[2]}, {o[1]}, {o[3]}\nv_pk_add_f32 {o[1]}, {o[1]}, {o[3]} neg_lo:[0,1] neg_hi:[0,1]")
        A(f"v_pk_fma_f32 {o[0]}, {o[2]}, v[12:13], {o[0]} op_sel_hi:[1,0,1]")
    for v in range(16): A(f"v_fmac_f32_dpp {vr(vAB+v)}, {vr(vAB+16+v)}, v13 row_ror:8 row_mask:0xf bank_mask:0xf")
    for k in range(8): A(f"v_cvt_pk_bf16_f32 {vr(t+k)}, {vr(vAB+2*k)}, {vr(vAB+2*k+1)}")
    A("s_nop 1")
    D = vAB + 32
    for lg in (0, 1):
        for J in (0, 1): mfma(vr(D + 8 * lg + 4 * J, 4), vr(vR32 + 4 * J, 4), vr(t + 4 * lg, 4), "0")
    A(f"s_cmp_eq_u32 {sW}, 3\ns_cselect_b32 {sT0}, 0, 1024\ns_add_u32 {sT0}, {sT0}, {GX}\nv_lshlrev_b32 v16, 2, {vI16}\nv_add_u32 v11, {sT0}, v16")
    for x in range(4): A.ds(f"ds_write2_b32 v11, {vr(vZ+8*x+4)}, {vr(vZ+8*x+4)} offset0:{(3^x)*16} offset1:{(3^x)*16+64}")
    A(f"s_mul_i32 {sT0}, {sR}, 4352\ns_lshl_b32 {sT1}, {sC}, 9\ns_add_u32 {sT0}, {sT0}, {sT1}\ns_lshl_b32 {sT2}, {sW}, 7\ns_add_u32 {sT0}, {sT0}, {sT2}\ns_add_u32 {sT0}, {sT0}, {F2}\ns_mov_b32 {sT3}, 139264")
    A(f"v_and_b32 v14, 7, v1\nv_lshlrev_b32 v14, 4, v14\nv_lshrrev_b32 v15, 3, v1\nv_mad_u32_u24 v14, v15, {sT3}, v14\nv_add_u32 v14, {sT0}, v14")
    A(f"s_lshl_b32 {sT0}, {sW}, 6\ns_add_u32 {sT0}, {sT0}, {GX}\nv_add_u32 v16, {sT0}, v16")
    U = t + 8
    for J in (0, 1):
        for lg in (0, 1):
            for z in (0, 1): A(f"v_cvt_pk_bf16_f32 {vr(U+4*J+2*lg+z)}, {vr(D+8*lg+4*J+2*z)}, {vr(D+8*lg+4*J+2*z+1)}")
    for k in range(4): A(f"v_mov_b32 {vr(t+k)}, {vr(U+2*k)}")
    for k in range(4): A(f"v_mov_b32_dpp {vr(U+2*k)}, {vr(U+2*k+1)} row_ror:8 row_mask:0xf bank_mask:0xc")
    for k in range(4): A(f"v_mov_b32_dpp {vr(U+2*k+1)}, {vr(t+k)} row_ror:8 row_mask:0xf bank_mask:0x3")
    l1, lsk = A.lab("Lnosw"), A.lab("Lnosp")
    A.lock += 1
    A(f"s_cmp_eq_u32 {sSH}, 0\ns_cbranch_scc1 {l1}")
    for J in (0, 1): A(f"v_swap_b32 {vr(U+4*J)}, {vr(U+4*J+2)}\nv_swap_b32 {vr(U+4*J+1)}, {vr(U+4*J+3)}")
    A(f"{l1}:\ns_mov_b32 {sT2}, {8*139264}\ns_add_u32 {sT1}, {sW}, {sC}\ns_cmp_lg_u32 {sT1}, 0\ns_cbranch_scc1 {lsk}")
    A(f"s_mov_b32 exec_lo, 0x01010101\ns_mov_b32 exec_hi, 0x01010101\nv_add_u32 v15, 4096, v14")
    for J in (0, 1):
        q_ = t + 4 * J
        A(f"v_mov_b32 {vr(q_)}, {vr(U+4*J+1)}\nv_mov_b32 {vr(q_+1)}, 0\nv_mov_b32 {vr(q_+2)}, {vr(U+4*J+3)}\nv_mov_b32 {vr(q_+3)}, 0\nv_mov_b32 {vr(U+4*J+1)}, 0\nv_mov_b32 {vr(U+4*J+3)}, 0")
        A(f"buffer_store_dwordx4 {vr(q_,4)}, v15, {sWS}, {sT2 if J else 0} offen sc1")
    A(f"s_mov_b64 exec, -1\n{lsk}:")
    A.lock -= 1
    if OPT["pois"] == 2: poison()
    for J in (0, 1): tokF = A.vmem(f"buffer_store_dwordx4 {vr(U+4*J,4)}, v14, {sWS}, {sT2 if J else 0} offen sc1")
    fz()
    gelu(vZ, 32, vFR + 20)
    A(f"s_lshl_b32 {sT0}, {sW}, 12\ns_add_u32 {sT0}, {sT0}, {Z1B}\nv_lshlrev_b32 v12, 3, {vLane}\nv_add_u32 v17, {sT0}, v12\ns_lshl_b32 {sT0}, {sW}, 10\nv_add_u32 v12, {sT0}, v17")
    for x in range(4):
        if x: A(f"v_xor_b32 v13, {4096*x}, v12")
        for i in (0, 1):
            b = vZ + 8 * x + 4 * i
            A(f"v_cvt_pk_bf16_f32 {vr(b)}, {vr(b)}, {vr(b+1)}\nv_cvt_pk_bf16_f32 {vr(b+1)}, {vr(b+2)}, {vr(b+3)}")
            A.ds(f"ds_write_b64 v{13 if x else 12}, {vr(b,2)} offset:{i*512}")
    A(f"v_lshlrev_b32 {vB}, 16, {vB}")
    A.st("epi_end", 2); A.wait_all_lg(); A.flush(); A.st("epi_fl", 2); A.wait_vm(tokF); A.st("epi_F", 2); A("s_barrier")
    A(f"s_lshl_b32 {sT0}, {sC}, 12\ns_lshl_b32 {sT1}, {sR}, 7\ns_add_u32 {sT0}, {sT0}, {sT1}\ns_add_u32 {sT0}, {sT0}, {FLAGF}")
    flag_store(sT0, True)
    for ft in range(7): A.ds(f"ds_read_b64 {vr(Z1P+2*ft,2)}, v17 offset:{ft*512}")
    A.ds("ds_read2_b32 v[14:15], v16 offset0:16 offset1:32"); A.ds("ds_read_b32 v6, v16 offset:192"); A.ds(f"ds_read_b32 {vG}, v16")
LDZ = [f"buffer_load_dwordx2 v[246:247], v19, {sWS}, s46 offen sc1"]
def flagZ_issue():
    A(f"s_mul_i32 {sT0}, {sC}, 7\ns_add_u32 {sT1}, {sT0}, 6\ns_lshr_b32 {sT0}, {sT0}, 3\ns_lshr_b32 {sT1}, {sT1}, 3\ns_sub_u32 {sT1}, {sT1}, {sT0}\ns_lshl_b32 {sT1}, {sT1}, 12")
    A(f"s_lshl_b32 {sT0}, {sT0}, 12\ns_lshl_b32 {sT2}, {sW}, 10\ns_add_u32 {sT0}, {sT0}, {sT2}\ns_add_u32 s46, {sT0}, {FLAGZ}")
    A(f"v_and_b32 v19, 7, v1\nv_lshlrev_b32 v19, 7, v19\nv_lshrrev_b32 v11, 5, {vLane}\nv_mad_u32_u24 v19, v11, {sT1}, v19")
    return A.vmem(LDZ[0])

def srd(b, src, size): A(f"s_mov_b32 s{b}, s{src}\ns_mov_b32 s{b+1}, s{src+1}\ns_mov_b32 s{b+2}, {size}\ns_mov_b32 s{b+3}, 0x20000")

def prologue():
    A.c('prologue: ids (r = row class, c = column block), kernel arguments, first addresses')
    A("s_cmp_ge_u32 s2, 256\ns_cbranch_scc1 Lend")
    A("s_load_dwordx16 s[60:75], s[0:1], 0\ns_load_dwordx8 s[80:87], s[0:1], 64\ns_load_dwordx4 s[88:91], s[0:1], 96")
    if OPT["prof"]: A("s_memrealtime s[98:99]\ns_memtime s[96:97]")
    if OPT["diag"] >= 0: A("s_memrealtime s[98:99]\ns_memrealtime s[96:97]")
    A(f"s_getpc_b64 s[44:45]\ns_mov_b32 s46, Lend-{NAME}_kernel\ns_mov_b32 s47, 0x20000")
    A("s_lshr_b32 s3, s2, 3\ns_lshl_b32 s76, s3, 10\nv_and_b32 v11, 7, v0\nv_lshlrev_b32 v11, 7, v11\nv_add_u32 v11, s76, v11")
    if OPT["cp"] == 0: A.vmem(f"buffer_load_dword v12, v11, {sTMP}, 0 offen")
    if OPT["cp"] == 1: A("v_mov_b32 v22, v11")
    if OPT["cp"] == 2:
        A("s_lshr_b32 s76, s2, 6\ns_lshl_b32 s76, s76, 13\nv_lshrrev_b32 v11, 2, v0\nv_lshlrev_b32 v11, 7, v11\nv_add_u32 v11, s76, v11\ns_and_b32 s76, s3, 7\ns_cmp_lg_u32 s76, 7\ns_cbranch_scc1 Lnocp")
        A(f"buffer_load_dword v12, v11, {sTMP}, 0 offen\nLnocp:")
    A("s_and_b32 s76, s2, 7")
    if OPT["xmap"] == 1:
        A(f"s_lshr_b32 {sR}, s3, 3\ns_lshl_b32 s77, s76, 2\ns_add_u32 {sR}, {sR}, s77\ns_and_b32 {sC}, s3, 7")
        A(f"s_mov_b32 s78, 0x76543210\ns_mov_b32 s79, s78\ns_mul_i32 s77, s76, {OPT['xrot']}\ns_add_u32 s77, s77, {sC}\ns_and_b32 s77, s77, 7\ns_lshl_b32 s77, s77, 2\ns_lshr_b64 s[78:79], s[78:79], s77\ns_mov_b32 {sROT}, s78")
    else:
        A(f"s_lshr_b32 {sR}, s76, 1\ns_lshl_b32 {sR}, {sR}, 3\ns_lshr_b32 s77, s3, 2\ns_add_u32 {sR}, {sR}, s77")
        A(f"s_and_b32 {sC}, s76, 1\ns_lshl_b32 {sC}, {sC}, 2\ns_and_b32 s77, s3, 3\ns_add_u32 {sC}, {sC}, s77")
        A(f"s_lshl_b32 s77, s77, 2\ns_lshr_b32 {sROT}, 0x64206420, s77\ns_and_b32 {sROT}, {sROT}, 0xffff\ns_or_b32 {sROT}, {sROT}, 0x64200000\ns_bitcmp1_b32 s76, 0\ns_cselect_b32 s77, 0, 16\ns_lshl_b32 s77, 0x1111, s77\ns_or_b32 {sROT}, {sROT}, s77")
    A(f"s_mov_b32 {sCA}, {sC}")
    if OPT["rot2"]: A(f"s_bitcmp1_b32 {sR}, 0\ns_cselect_b32 s77, {(0, 0x44444444, 0x22222222, 0x11111111)[OPT['rot2']]}, 0\ns_xor_b32 {sROT}, {sROT}, s77")
    if not OPT["rotc"]: A(f"s_mov_b32 {sROT}, 0x76543210")
    A(f"v_lshrrev_b32 v11, 6, v0\nv_and_b32 {vLane}, 63, v0\nv_readfirstlane_b32 {sW}, v11")
    A(f"v_and_b32 {vI16}, 15, v0\nv_lshrrev_b32 {vQ}, 4, {vLane}\nv_lshlrev_b32 {vL16}, 4, {vLane}")
    A(f"s_lshl_b32 {sW2048}, {sW}, 11\ns_lshl_b32 {sW8192}, {sW}, 13\ns_and_b32 {sET}, {sW}, 1\ns_lshr_b32 {sSH}, {sW}, 1\ns_add_u32 s76, {sR}, {sC}")
    if not OPT["rota"]: A("s_mov_b32 s76, 0")
    if OPT["rota"] == 2: A(f"s_lshr_b32 s76, {sR}, 3\ns_lshr_b32 s77, {sC}, 2\ns_lshl_b32 s77, s77, 1\ns_add_u32 s76, s76, s77\ns_and_b32 s77, {sC}, 1\ns_add_u32 s76, s76, s77")
    if OPT["rota"] == 3: A(f"s_lshr_b32 s76, {sR}, 2\ns_add_u32 s76, s76, {sC}")
    if OPT["rota"] == 5: A(f"s_lshr_b32 s76, {sR}, 2\ns_add_u32 s76, s76, {sC}\ns_and_b32 s77, {sR}, 1\ns_lshl_b32 s77, s77, 1\ns_add_u32 s76, s76, s77")
    if OPT["rota"] == 4: A(f"s_lshr_b32 s76, {sR}, 3\ns_add_u32 s76, s76, {sC}\ns_and_b32 s77, {sR}, 1\ns_lshl_b32 s77, s77, 1\ns_add_u32 s76, s76, s77")
    for G in range(4):
        A(f"s_add_u32 s77, s76, {G}\ns_and_b32 s77, s77, 3\ns_lshl_b32 {sAX[G]}, s77, 8\ns_mul_i32 {sAW[G]}, s77, 458752")
    A(f"v_lshrrev_b32 v11, 3, {vLane}\nv_and_b32 v15, 7, v0\nv_lshrrev_b32 v16, 1, v11")
    A("v_xor_b32 v13, v15, v16\nv_lshlrev_b32 v13, 4, v13\nv_xor_b32 v14, 64, v13")
    A(f"s_lshl_b32 s76, {sR}, 16\ns_lshl_b32 s77, {sW}, 14\ns_add_u32 s76, s76, s77\nv_lshl_add_u32 v15, v11, 10, s76")
    A(f"v_add_u32 {vr(vXA[0])}, v15, v13\nv_add_u32 {vr(vXA[1])}, v15, v14\nv_add_u32 {vr(vXA[1])}, 7168, {vr(vXA[1])}")
    A(f"s_lshl_b32 s76, {sCA}, 8\ns_mul_i32 s77, {sW}, 114688\ns_add_u32 s76, s76, s77\ns_add_u32 s76, s76, 1792\ns_movk_i32 s77, 3584")
    A(f"v_lshlrev_b32 v15, 1, {vQ}\nv_xor_b32 v15, v15, {vI16}\nv_lshlrev_b32 v15, 4, v15\nv_mad_u32_u24 v16, {vQ}, s77, v15\nv_add_u32 v16, s76, v16\nv_xor_b32 v17, 128, v16")
    A(f"s_bfe_u32 s76, {sR}, 0x10002\ns_mul_i32 s76, s76, {OPT['hw']}\ns_lshl_b32 s100, s76, 12\ns_add_u32 s100, s100, {sW8192}\ns_xor_b32 s101, s100, 4096\ns_mul_i32 s76, s76, {4*3584}\ns_sub_u32 s77, {4*3584}, s76")
    A("v_add_u32 v18, s77, v16\nv_add_u32 v19, s77, v17\nv_add_u32 v16, s76, v16\nv_add_u32 v17, s76, v17")
    for i in range(8):
        A(f"v_add_u32 {vr(vWA[i])}, {8*(i&3)*3584 - 1024*(i&3)}, v{16+(i&1)+2*(i>>2)}")
    A("s_waitcnt lgkmcnt(0)")
    srd(4, 60, 2097152); srd(8, 72, 1835008); srd(16, 82, 917504)
    A(f"s_load_dwordx2 s[92:93], s[90:91], {EPOCH}")

def setup2(early=False):
    if not (early and OPT["pois"] == 4): srd(12, 74, 8388608); srd(28, 90, WS_SIZE); srd(36, 80, 4096)
    srd(32, 86, 2097152)
    A(f"s_cmp_eq_u32 {sW}, 3\ns_cselect_b32 s40, s84, s90\ns_cselect_b32 s41, s85, s91\ns_movk_i32 s42, 1024\ns_cselect_b32 s42, s42, s30\ns_mov_b32 s43, 0x20000\ns_cselect_b32 s94, 64, 57344")
    A(f"s_mul_i32 {sW7168}, {sW}, 7168\ns_mul_i32 s77, {sC}, 7168\ns_add_u32 s76, {sW2048}, s77\ns_add_u32 s76, s76, {W1P}\nv_add_u32 {vr(vW1[0])}, s76, {vL16}\nv_add_u32 {vr(vW1[1])}, 1024, {vr(vW1[0])}\nv_lshlrev_b32 v15, 4, {vQ}\ns_cmp_eq_u32 {sW}, 3\ns_cselect_b64 vcc, -1, 0\nv_cndmask_b32 {vr(vW1[1])}, {vr(vW1[1])}, v15, vcc")
    A("v_and_b32 v17, 4, v11\nv_lshlrev_b32 v17, 1, v17\nv_and_or_b32 v17, v11, 3, v17")
    A(f"s_lshl_b32 s76, {sET}, 8\ns_lshl_b32 s77, {sSH}, 5\ns_add_u32 s76, s76, s77\ns_add_u32 s76, s76, {sR}")
    A("s_lshl_b32 s77, s76, 10\nv_lshl_add_u32 v15, v17, 16, s77")
    A(f"v_add_u32 {vr(vXR[0])}, v15, v13\nv_add_u32 {vr(vXR[1])}, v15, v14\nv_add_u32 {vr(vXR[1])}, {1024*1024-1024}, {vr(vXR[1])}")
    A(f"v_and_b32 v15, 12, {vI16}\nv_lshlrev_b32 v15, 1, v15\nv_and_or_b32 v15, {vI16}, 3, v15\nv_lshl_add_u32 {vTrow}, v15, 6, s76")
    A(f"s_lshl_b32 s77, {sR}, 12\ns_lshl_b32 s78, {sW}, 10\ns_add_u32 s77, s77, s78\nv_lshl_add_u32 v15, v17, 18, s77")
    A(f"v_add_u32 {vr(vCb[0])}, v15, v13\nv_add_u32 {vr(vCb[1])}, v15, v14\nv_add_u32 {vr(vCb[1])}, {1024*4096-1024}, {vr(vCb[1])}")
    for u in range(4):
        A(f"s_add_u32 s77, {sW}, {u}\ns_and_b32 s78, s77, 1\ns_lshl_b32 s78, s78, 20\ns_and_b32 s77, s77, 2\ns_lshl_b32 s77, s77, 16\ns_add_u32 {sCU[u]}, s77, s78")
    A(f"v_lshlrev_b32 v246, 1, {vTrow}")
    A(f"v_lshrrev_b32 v15, 1, {vI16}\nv_xor_b32 v15, v15, {vQ}\nv_lshlrev_b32 v15, 4, v15\nv_lshl_add_u32 {vXrd0}, {vI16}, 7, v15\nv_xor_b32 {vXrd1}, 64, {vXrd0}")
    A(f"v_add_u32 v240, {sW8192}, {vXrd0}\nv_add_u32 v241, {sW8192}, {vXrd1}\nv_add_u32 v242, 0x10000, v240\nv_add_u32 v243, 0x10000, v241\nv_add_u32 v244, 0x20000, v240\nv_add_u32 v245, 0x20000, v241")
def tlb_touch():
    if not OPT["tlb"]: return
    A(f"v_and_b32 v15, 7, v1\nv_lshlrev_b32 v15, 7, v15\ns_cmp_eq_u32 {sW}, 3\ns_cselect_b32 s78, 0, {WS_SIZE}")
    A.vmem(f"buffer_load_dword v255, v15, {sGW}, s78 offen")
    A.vmem(IT_GATE[0][1])
def twiddles():
    A(f"s_lshl_b32 s70, {sC}, 5\ns_lshl_b32 s71, {sW}, 3\ns_add_u32 s70, s70, s71\nv_and_b32 v11, 7, v1\nv_add_u32 v11, s70, v11\nv_bfe_u32 v14, v1, 3, 1\nv_lshlrev_b32 v15, 3, {vQ}\nv_cmp_gt_u32 vcc, v14, v11\nv_cvt_f32_u32 v11, v11\nv_cvt_f32_u32 v15, v15\nv_cvt_f32_u32 v14, v14")
    A(f"v_mul_f32 v11, {fbits(1/512)}, v11\nv_mul_f32 v14, {fbits(0.25)}, v14\nv_fma_f32 v13, v11, v15, v14\nv_cndmask_b32 v11, v11, 0.5, vcc\nv_cndmask_b32 v13, v13, 0, vcc")
    gen_cos(lambda i: vWD + i, 16, "v11", "v13", lambda n: 32 * (n >> 3) + (n & 7))
    A(f"v_lshrrev_b32 v11, 1, {vI16}\nv_cvt_f32_u32 v11, v11\nv_mul_f32 v11, {fbits(1/32)}, v11\nv_add_f32 v247, {fbits(0.25)}, v11")
    A(f"v_and_b32 v13, 1, v1\nv_cvt_f32_u32 v13, v13\nv_mul_f32 v13, {fbits(0.25)}, v13\nv_cmp_eq_u32 vcc, 1, {vI16}\nv_mov_b32 v14, v13\ns_nop 0\nv_cndmask_b32 v11, v11, 0.5, vcc\nv_cndmask_b32 v13, v13, 0, vcc")
    A(f"s_lshl_b32 s70, {sET}, 2\nv_cvt_f32_u32 v248, s70\nv_sub_f32 v252, v15, v248\nv_add_f32 v248, v15, v248")
    for J, (fr, ph) in enumerate((("v11", "v13"), ("v247", "v14"))):
        A(f"v_fma_f32 v253, {fr}, v248, {ph}\nv_fma_f32 v254, {fr}, v252, {ph}")
        gen_cos(lambda i: vR32 + 4 * J + i, 2, fr, "v253", lambda n: n)
        gen_cos(lambda i: vR32 + 4 * J + 2 + i, 2, fr, "v254", lambda n: 4 + n)
def consts():
    if OPT["pois"] == 0: poison()
    if OPT["pois"] == 3: poison(False)
    A("s_waitcnt lgkmcnt(0)")
    A("s_mul_i32 s52, s92, 0x9E3779B1\ns_add_u32 s52, s52, 0x7F4A7C15\ns_mul_i32 s53, s93, 0x85EBCA6B\ns_add_u32 s53, s53, 0xC2B2AE35")
    c0 = -2 * 0.7978845608028654 * 1.4426950408889634
    A(f"s_mov_b32 s76, {fbits(c0*0.044715)}\ns_mov_b32 s77, {fbits(c0)}\nv_mov_b32 v38, s52\nv_mov_b32 v39, s53\nv_and_b32 v251, 31, v1\nv_lshlrev_b32 v251, 7, v251\nv_add_u32 v251, {FLAGP}, v251")
    if OPT["prof"]: A("v_writelane_b32 v0, s96, 0\nv_writelane_b32 v0, s98, 62")
LDP = [f"buffer_load_dwordx2 v[20:21], v251, {sWS}, 0 offen sc1"]

def front_main():
    A.c('stage A: z2 tile = x[64r..+64] @ w_in[:, 896+128c..+128], GELU, LayerNorm partial sums')
    a0 = it_xa(0) + it_w2(WA[0], 0)
    if OPT["pois"] == 4:
        srd(28, 90, WS_SIZE); srd(36, 80, 4096); srd(12, 74, 8388608); poison(False)
        A.push(a0[:OPT["pp"]] + POIS + a0[OPT["pp"]:], "A0")
    else: A.push(a0, "A0")
    A.push(it_xa(1) + it_w2(WA[1], 1), "A1")
    A.st("karg", 2)
    A.flush("A0")
    if OPT["cp"] == 1: A.vmem(f"buffer_load_dword v12, v22, {sTMP}, 0 offen")
    A.st("iss0", 2)
    if OPT["ser"] == 2: A.raw("s_waitcnt vmcnt(4)"); A.st("w8"); A.raw("s_waitcnt vmcnt(0)"); A.st("w12")
    A.lock += 1
    setup2(True); tlb_touch()
    if OPT["ce"] == 1: twiddles(); consts()
    if OPT["ce"]: A.front(it_c(0, CS[0]), "C0"); A.flush("C0")
    if OPT["ce"] != 1: twiddles(); consts()
    A(f"v_lshrrev_b32 v15, 2, {vLane}\nv_lshlrev_b32 v16, 8, v15\nv_and_b32 v15, 7, v15\nv_lshl_add_u32 v16, v15, 5, v16\nv_and_b32 v15, 3, v1\nv_lshl_add_u32 v16, v15, 3, v16\ns_lshl_b32 {sT0}, {sET}, 7\nv_xor_b32 v16, {sT0}, v16")
    for i in range(4): A(f"v_xor_b32 {vr(vTA[i])}, {32*i}, v16\nv_add_u32 {vr(vTA[4+i])}, 0x10000, {vr(vTA[i])}")
    A(f"s_lshl_b32 {sT0}, {sSH}, 12\ns_add_u32 {sT0}, {sT0}, {SL[6]}\nv_add_u32 v13, {sT0}, {vXrd0}\nv_add_u32 v14, {sT0}, {vXrd1}")
    A.lock -= 1
    if OPT["fa1"]: A.flush("A1")
    if OPT["ce"]: A.push(it_xa(2) + it_xa(3))
    else: A.push(it_xa(2) + it_w2(WA[2], 2), "A2"); A.push(it_xa(3))
    A.stamp(1)
    A.per = OPT["pera"]
    P = Pipe()
    for G in range(4):
        def h(G=G):
            gbar("A%d" % G, False)
            if OPT["ce"]:
                if G in (1, 2): A.front(it_w2(WA[G + 1], G + 1), "A%d" % (G + 1)) if G == 2 else A.push(it_w2(WA[G + 1], G + 1), "A%d" % (G + 1))
                if G == 2: A.push(POIS)
                if G >= 1: A.push(it_xr(SL[5 + G], G - 1))
                return
            if G == 1: A.push(it_w2(WA[3], 3), "A3")
            if G == 1 and OPT["pois"] == 3: A.push(POIS)
            if G == 1 and OPT["x0"]: A.push(it_xr(SL[6], 0))
            if G == 2: pushc(0)
        P.hook(h)
        for kk in range(4):
            xf = vFR + 32 + 8 * ((4 * G + kk) % 3)
            z0 = "0" if (G == 0 and kk == 0) else None
            for i in range(4):
                wf = vFR + 4 * (cnt[0] % NF); cnt[0] += 1
                if i == 0: P.read(xf, f"ds_read_b128 {vr(xf,4)}, v{13+(kk&1)} offset:{G*16384+(kk>>1)*8192}")
                for half in (0, 1):
                    P.read(wf, f"ds_read_b64_tr_b16 {vr(wf+2*half,2)}, {vr(vTA[i + (4 if WA[G] >= 65536 else 0)])} offset:{(WA[G]&0xffff) + kk*8192 + half*4096}")
                P.mfma(vr(vZ + 4 * i, 4), vr(wf, 4), vr(xf, 4), z0, (wf, xf))
                if i == 0: P.read(xf + 4, f"ds_read_b128 {vr(xf+4,4)}, v{13+(kk&1)} offset:{G*16384+(kk>>1)*8192+2048}")
                P.mfma(vr(vZ + 16 + 4 * i, 4), vr(wf, 4), vr(xf + 4, 4), z0, (wf, xf + 4))
    P.run(OPT["look"])
    A.flush()
    A.per = OPT["per"]
    A("s_barrier")
    A.stamp(2)
    A("s_nop 7")
    gelu(vZ, 32, vFR)
    t = vFR
    for xt in (0, 1):
        z = vZ + 16 * xt
        A(f"v_pk_add_f32 {vr(t,2)}, {vr(z,2)}, {vr(z+2,2)}\nv_pk_mul_f32 {vr(t+2,2)}, {vr(z,2)}, {vr(z,2)}")
        for p in range(2, 16, 2):
            if p > 2: A(f"v_pk_add_f32 {vr(t,2)}, {vr(t,2)}, {vr(z+p,2)}")
            A(f"v_pk_fma_f32 {vr(t+2,2)}, {vr(z+p,2)}, {vr(z+p,2)}, {vr(t+2,2)}")
        A(f"v_add_f32 {vr(t+4+2*xt)}, {vr(t)}, {vr(t+1)}\nv_add_f32 {vr(t+5+2*xt)}, {vr(t+2)}, {vr(t+3)}")
    xreduce((P16, P32), [t + 4, t + 5, t + 6, t + 7], [t, t + 1, t + 2, t + 3])
    A(f"v_cmp_eq_u32 vcc, 1, {vQ}\ns_lshl_b32 {sT0}, {sR}, 1\ns_add_u32 {sT0}, {sT0}, {sSH}\nv_cndmask_b32 {vr(t+4)}, {vr(t+4)}, {vr(t+6)}, vcc\nv_cndmask_b32 {vr(t+5)}, {vr(t+5)}, {vr(t+7)}, vcc")
    A(f"v_mov_b32 {vr(t+6)}, s52\nv_mov_b32 {vr(t+7)}, s53\ns_lshl_b32 {sT0}, {sT0}, 13\ns_add_u32 {sT0}, {sT0}, {STAT}\nv_add_u32 v249, {sT0}, {vL16}")
    A(f"s_lshl_b32 {sT1}, {sCA}, 10\ns_lshl_b32 {sT2}, {sET}, 9\ns_add_u32 {sT1}, {sT1}, {sT2}\nv_add_u32 v250, 4096, v249")
    masked(-1, 0, lambda: A.vmem(f"buffer_store_dwordx4 {vr(t+4,4)}, v249, {sWS}, {sT1} offen sc1"))

def front_lead():
    A.c('workgroups with c == 7: repack w_in[:, :896] and w_out into MFMA fragment order')
    PIT = 1056; L1, L2 = PR[2], PR[2] + 36864
    A(f"s_lshr_b32 s76, {sR}, 1\ns_lshl_b32 s76, s76, 5\ns_lshl_b32 s77, {sET}, 4\ns_add_u32 s76, s76, s77\ns_lshl_b32 s77, {sSH}, 2\ns_add_u32 s76, s76, s77\ns_mul_i32 s76, s76, 3584")
    A(f"s_and_b32 s77, {sR}, 1\ns_mul_i32 s77, s77, 896\ns_add_u32 s76, s76, s77\ns_mul_i32 s78, {sW}, {8*PIT}")
    for i in range(8):
        A(f"s_add_u32 m0, s78, {L1 + i*PIT}\ns_add_u32 s77, s76, {(8*(i>>2)+(i&3))*3584}")
        tok1 = A.vmem(f"buffer_load_dwordx4 {vL16}, {sWIN}, s77 offen lds")
    A(f"s_min_u32 s79, {sR}, 27\ns_mul_i32 s76, s79, 37\ns_lshr_b32 s76, s76, 8\ns_mul_i32 s77, s76, 7\ns_sub_u32 s77, s79, s77\ns_mul_i32 s76, s76, 224")
    A(f"s_lshl_b32 s79, s77, 5\ns_cmp_ge_u32 s77, 4\ns_cselect_b32 s44, 16, 0\ns_sub_u32 s79, s79, s44\ns_cmp_eq_u32 s77, 3\ns_cselect_b32 s44, 112, 16\ns_mul_i32 s44, s44, {sSH}\ns_add_u32 s79, s79, s44")
    A(f"s_add_u32 s76, s76, s79\ns_lshl_b32 s77, {sET}, 3\ns_add_u32 s76, s76, s77\ns_lshl_b32 s44, s76, 10\ns_mov_b32 s45, s78")
    st = {}
    def wout_loads():
        for i in range(8):
            A(f"s_add_u32 m0, s45, {L2 + i*PIT}\ns_add_u32 s46, s44, {i*1024}")
            st["w"] = A.vmem(f"buffer_load_dwordx4 {vL16}, {sWOUT}, s46 offen lds")
    setup2(); tlb_touch(); consts()
    A(f"v_lshrrev_b32 v15, 2, {vLane}\nv_mul_u32_u24 v15, {PIT}, v15\nv_and_b32 v16, 3, v1\nv_lshl_add_u32 v15, v16, 3, v15\ns_mul_i32 {sT0}, {sW}, 224\ns_add_u32 {sT0}, {sT0}, {L1}\nv_add_u32 v16, {sT0}, v15\ns_lshl_b32 {sT0}, {sW}, 8\ns_add_u32 {sT0}, {sT0}, {L2}\nv_add_u32 v17, {sT0}, v15")
    A(f"s_mul_i32 {sT0}, {sR}, 28672\ns_add_u32 {sT0}, {sT0}, {sW7168}\ns_add_u32 {sT0}, {sT0}, {W1P}\ns_add_u32 {sT1}, {sT0}, 4096")
    A(f"s_mul_i32 {sT2}, {sW}, {2*114688}\ns_lshl_b32 {sT3}, {sR}, 12\ns_add_u32 {sT2}, {sT2}, {sT3}\ns_add_u32 {sT2}, {sT2}, {WOP}\ns_cmp_ge_u32 {sR}, 28\ns_cselect_b32 {sT2}, {WS_SIZE}, {sT2}\ns_add_u32 {sT3}, {sT2}, 114688")
    def half(rng, tok, flag):
        A.wait_vm(tok); A("s_barrier")
        tk = {}
        for n in rng:
            base, i = ("v16", n) if n < 7 else ("v17", n - 7)
            A.ds(f"ds_read_b64_tr_b16 {vr(112+4*n,2)}, {base} offset:{i*32}")
            tk[n] = A.ds(f"ds_read_b64_tr_b16 {vr(112+4*n+2,2)}, {base} offset:{i*32+16*PIT}")
        for n in rng:
            i = n if n < 7 else n - 7
            so = (sT0, sT1, sT2, sT3)[(0 if n < 7 else 2) + (i >> 2)]
            A.wait_lg(tk[n])
            t = A.vmem(f"buffer_store_dwordx4 {vr(112+4*n,4)}, {vL16}, {sWS}, {so} offen offset:{(i&3)*1024} sc1")
        return t
    t1 = half(range(7), tok1, FLAGP)
    wout_loads()
    A.wait_vm(t1); A("s_barrier")
    A(f"s_lshl_b32 {sT0}, {sR}, 7\ns_add_u32 s46, {sT0}, {FLAGP}\ns_add_u32 s47, {sT0}, {FLAGQ}")
    flag_store("s46", True)
    A.st("flagP")
    t2 = half(range(7, 15), st["w"], FLAGQ)
    pushc(0); A.flush()
    A.stamp(1)
    twiddles()
    A.wait_vm(t2); A("s_barrier")
    flag_store("s47", True)
    for G in range(OPT["x0"]): A.push(it_xr(SL[6 + G], G))
    if OPT["pois"] == 4: poison(False)
    if OPT["pois"] >= 3: A.push(POIS)
    A.flush()
    A(f"v_mov_b32 v249, {WS_SIZE}\nv_mov_b32 v250, {WS_SIZE}")

def front2():
    A.c('LayerNorm statistics exchange, normalise, publish z2n fragments')
    A.stamp(3)
    if OPT["pois"] == 1: poison()
    if OPT["ser"] == 1: A.raw("s_waitcnt vmcnt(0)\ns_barrier"); A.st("ser0")
    tokP = A.vmem(LDP[0])
    if OPT["ser"] == 1: A.raw("s_waitcnt vmcnt(0)\ns_barrier"); A.st("serP")
    for G in range(OPT["x0"], 3): A.push(it_xr(SL[6 + G], G))
    A.push(([] if OPT["tlb"] else IT_GATE) + it_xr(SL[9], 3), "X3"); A.flush()
    if OPT["ser"] == 1: A.raw("s_waitcnt vmcnt(0)\ns_barrier"); A.st("serX")
    poll(LDP, tagcmp([20]), tokP); A.st("got_P", 2)
    for ks in range(16): A.push(it_w1(ks), "W%d" % ks)
    if OPT["ser"] == 1: A.flush(); A.raw("s_waitcnt vmcnt(0)\ns_barrier"); A.st("serW")
    pushc(1)
    if OPT["ser"] == 1: A.flush(); A.raw("s_waitcnt vmcnt(0)\ns_barrier"); A.st("serC1")
    A.flush("W%d" % OPT["gat"])
    g = 128
    ld = [f"buffer_load_dwordx4 {vr(g+4*k,4)}, v{249 + (k>>2)}, {sWS}, 0 offen offset:{1024*(k&3)} sc1" for k in range(7)]
    for l in ld: tokS = A.vmem(l)
    if OPT["ser"] == 1: A.raw("s_waitcnt vmcnt(0)\ns_barrier"); A.st("serG")
    A(f"v_and_b32 v11, 3, {vI16}\nv_bfe_u32 v12, {vI16}, 3, 1\nv_lshl_add_u32 v11, v12, 2, v11\nv_bfe_u32 v15, v11, 1, 2\nv_bfe_u32 v12, {vI16}, 2, 1\nv_lshl_add_u32 v11, v12, 4, v11")
    A(f"s_lshl_b32 {sT0}, {sW}, 13\ns_add_u32 {sT0}, {sT0}, {SCR}\nv_lshlrev_b32 v11, 7, v11\nv_lshl_add_u32 v11, v15, 5, v11\nv_lshl_add_u32 v11, {vQ}, 3, v11\nv_add_u32 v11, {sT0}, v11")
    A(f"v_lshrrev_b32 v12, 2, {vLane}\nv_lshlrev_b32 v12, 7, v12\nv_bfe_u32 v15, {vLane}, 3, 2\nv_lshl_add_u32 v12, v15, 5, v12\nv_and_b32 v15, 3, v1\nv_lshl_add_u32 v12, v15, 3, v12\nv_add_u32 v12, {sT0}, v12")
    for i in range(4): A(f"v_xor_b32 v{160+i}, {32*i}, v11\nv_xor_b32 v{164+i}, {32*i}, v12")
    A(f"s_lshl_b32 {sT1}, {sR}, 1\ns_add_u32 {sT1}, {sT1}, {sSH}\ns_mul_i32 {sT0}, {sT1}, 57344\ns_lshl_b32 {sT1}, {sCA}, 13\ns_add_u32 {sT0}, {sT0}, {sT1}")
    A(f"s_lshl_b32 {sT1}, {sET}, 12\ns_add_u32 {sT0}, {sT0}, {sT1}\ns_add_u32 {sKB}, {sT0}, {Z2N}\ns_cmp_eq_u32 {sCA}, 7\ns_cselect_b32 {sKB}, {WS_SIZE}, {sKB}")
    A.flush("W%d" % (OPT["gat"] + 5)); A.st("pre_stat", 2)
    if OPT["eb"]: c_read(0); gbar("X3", False); pushc(3)
    poll(ld, tagcmp([g + 4 * k + 2 for k in range(7)]), tokS, True)
    A.stamp(4)
    for k in range(1, 7): A(f"v_pk_add_f32 {vr(g,2)}, {vr(g,2)}, {vr(g+4*k,2)}")
    xreduce((P32,), [g, g + 1], [g + 2, g + 3])
    A(f"v_mul_f32 {vr(g)}, {fbits(1/896)}, {vr(g)}\nv_mul_f32 {vr(g+1)}, {fbits(1/896)}, {vr(g+1)}")
    A(f"v_fma_f32 {vr(g+1)}, -{vr(g)}, {vr(g)}, {vr(g+1)}\nv_max_f32 {vr(g+1)}, 0, {vr(g+1)}\nv_add_f32 {vr(g+1)}, {fbits(1e-5)}, {vr(g+1)}\nv_rsq_f32 {vr(g+2)}, {vr(g+1)}\ns_nop 0")
    A(f"v_mul_f32_e64 {vr(g+3)}, -{vr(g)}, {vr(g+2)}\nv_mov_b32 {vr(g+4)}, {vr(g+2)}\nv_mov_b32 {vr(g+5)}, {vr(g+3)}\ns_nop 1\n{P16} {vr(g+2)}, {vr(g+4)}\n{P16} {vr(g+3)}, {vr(g+5)}\ns_nop 1")
    for xt in (0, 1):
        for i in range(4):
            b = vZ + 16 * xt + 4 * i; pp = vr(g + 2 + 2 * xt, 2)
            for p in (0, 2): A(f"v_pk_fma_f32 {vr(b+p,2)}, {vr(b+p,2)}, {pp}, {pp} op_sel:[0,0,1] op_sel_hi:[1,0,1]")
            A(f"v_cvt_pk_bf16_f32 {vr(b)}, {vr(b)}, {vr(b+1)}\nv_cvt_pk_bf16_f32 {vr(b+1)}, {vr(b+2)}, {vr(b+3)}")
            A.ds(f"ds_write_b64 v{160+i}, {vr(b,2)} offset:{xt*1024}")
    A.wait_all_lg()
    for i in range(4):
        A.ds(f"ds_read_b64_tr_b16 {vr(ZH+4*i,2)}, v{164+i}")
        A.ds(f"ds_read_b64_tr_b16 {vr(ZH+4*i+2,2)}, v{164+i} offset:2048")
    A.wait_all_lg()
    for i in range(4): A.tok["Z"] = A.vmem(f"buffer_store_dwordx4 {vr(ZH+4*i,4)}, {vL16}, {sWS}, {sKB} offen offset:{1024*i} sc1")
    A.stamp(5)

ring = [48, 52, 56, 60, 64, 20, 24, 28, 236, 248, 252, 228, 232] + [40, 44, 32, 240, 244]
ONE = [208, 212, 216, 220, 224, 68, 72, 76] if OPT["npx"] else []
NPRE = 13 + len(ONE)
def zreg(n): return ONE[n] if n < len(ONE) else ring[(n - len(ONE)) % len(ring)]
tz = {}
def zpos(n): return divmod(n, 4) if n < 64 else ((n - 64) // 2, 4 + (n & 1)) if n < 96 else (n - 96, 6)
def z_item(n):
    ks, ft = zpos(n); pre = ""
    if ft in (0, 4) or (ft == 6 and ks % 2 == 0):
        add = (57344 if ks & 1 else 0) + (4096 if ft else 0)
        pre = f"s_bfe_u32 {sZ}, {sROT}, {(4<<16)|(4*(ks>>1))}\ns_mul_i32 {sZ}, {sZ}, 114688" + (f"\ns_add_u32 {sZ}, {sZ}, {add}" if add else "")
    elif ft == 6: pre = f"s_add_u32 {sZ}, {sZ}, 57344"
    return (pre, f"buffer_load_dwordx4 {vr(zreg(n),4)}, {vZA}, {sWS}, {sZ} offen offset:{(ft&3)*1024} sc1")
def mid_B():
    A.c('stage B: rows t = r mod 32: z1 tile, gate logits, hidden-dim DFT; w_sp rows -> AGPRs')
    A(f"s_add_u32 {sT0}, {sW2048}, {SL[6]}\nv_add_u32 v12, {sT0}, {vXrd0}\nv_add_u32 v13, {sT0}, {vXrd1}")
    for x in (1, 2, 3): A(f"v_xor_b32 v{12+2*x}, {2048*x}, v12\nv_xor_b32 v{13+2*x}, {2048*x}, v13")
    P = Pipe()
    if OPT["eb"]: pushc(2)
    else: c_read(0); gbar("X3", False); pushc(2); pushc(3)
    def fz():
        A.wait_named("Z"); A("s_barrier")
        A(f"s_lshl_b32 {sT0}, {sCA}, 12\ns_lshl_b32 {sT1}, {sR}, 7\ns_add_u32 {sT0}, {sT0}, {sT1}\ns_add_u32 {sT0}, {sT0}, {FLAGZ}")
        flag_store(sT0, True); A.stamp(6)
    hk = {4: fz}
    for j, ks in enumerate(CK): hk[ks] = (lambda j=j: cnext(j + 1))
    for G in range(4): stageB(P, G, hk)
    P.run(OPT["look"])
    A.stamp(8)
    A("s_barrier")
    tk = flagZ_issue()
    for j in range(len(CK) + 1, 5): cnext(j)
    A(f"s_mul_i32 {sT0}, {sC}, 7168\ns_mul_i32 {sT1}, {sW}, {16*57344}\ns_add_u32 {sT0}, {sT0}, {sT1}\ns_add_u32 {sT0}, {sT0}, {Z2N}\nv_add_u32 {vZA}, {sT0}, {vL16}")
    def pz():
        poll(LDZ, tagcmp([246]), tk); A.stamp(9)
        for n in range(NPRE): A.push([z_item(n)], "z%d" % n)
    b_epilogue(pz)
    for n in range(NPRE): tz[n] = A.tok["z%d" % n]
    A.stamp(10)

FIX = []
def back():
    A.c('P2: w_sp @ z2n (K split over waves), h = z1*(g+b)*(1-gate); P3: sequence pass 2 + h @ w_out')
    A.raw('Lph_p2:')
    A.stamp(11)
    ACC = 116; CF = 68; R = len(ring)
    FB = [zreg(n) for n in range(94, 102)]
    def zload(n):
        pre, ins = z_item(n)
        if pre: A.raw(pre)
        tz[n] = A.vmem(ins)
    F = []
    for u in (1, 2, 3):
        F += [f"s_add_u32 {sT0}, {sW}, {u}\ns_and_b32 {sT0}, {sT0}, 3", f"s_mul_i32 {sT0}, {sT0}, 21504\ns_add_u32 {sT0}, {sT0}, {(u-1)*7168}", f"v_add_u32 v{15+u}, {sT0}, {vL16}"]
    F += [f"s_mul_i32 {sT0}, {sW}, 21504\nv_add_u32 v19, {sT0}, {vL16}"]
    F += [f"s_sub_u32 {sT0}, 32, {sR}\ns_min_u32 {sT0}, {sT0}, {sR}", f"s_and_b32 {sT0}, {sT0}, 15\ns_mul_i32 {sT0}, {sT0}, 139264", f"s_add_u32 {sT0}, {sT0}, {F2}\ns_mul_i32 {sT1}, {sW}, 8704",
          f"s_add_u32 {sT0}, {sT0}, {sT1}\ns_lshl_b32 {sT1}, {sC}, 6", f"s_cmp_ge_u32 {sC}, 4\ns_cselect_b32 s21, 0x300, 0\ns_cselect_b32 {sT2}, 48, 0", f"s_add_u32 {sT2}, {sT2}, {sT1}\nv_add_u32 v12, {sT2}, {vI16}",
          "v_sub_u32 v13, 512, v12", "v_min_u32 v12, v12, v13", f"s_mov_b32 {sT2}, {8*4352}\nv_lshlrev_b32 v12, 4, v12", f"v_mad_u32_u24 v12, {vQ}, {sT2}, v12", f"v_add_u32 v12, {sT0}, v12"]
    F += [f"v_lshrrev_b32 v13, 3, {vLane}", "v_mul_u32_u24 v13, 9, v13", f"v_add_u32 v13, {sT1}, v13", "v_sub_u32 v114, 512, v13", "v_min_u32 v13, v13, v114",
          "v_bfe_u32 v13, v13, 5, 3", "v_and_b32 v114, 6, v1", "v_lshlrev_b32 v114, 2, v114", "v_and_or_b32 v114, v1, 1, v114", "v_lshl_add_u32 v13, v13, 5, v114", "v_lshlrev_b32 v13, 7, v13",
          f"s_lshl_b32 {sT0}, {sW}, 8\ns_add_u32 {sT0}, {sT0}, {FLAGF}", f"v_add_u32 v13, {sT0}, v13"]
    F += [f"s_mov_b32 {sSEL[0]}, 0x03020100\ns_mov_b32 {sSEL[1]}, 0x01000302", f"s_cmp_lt_u32 {sR}, 16\ns_cselect_b32 {sM0}, 0x80000000, 0", f"s_or_b32 {sM1}, {sM0}, 0x8000",
          f"s_cmp_eq_u32 {sR}, 0\ns_cselect_b32 {sSEL[0]}, 0x0c0c0100, {sSEL[0]}\ns_cselect_b32 {sSEL[1]}, 0x0c0c0302, {sSEL[1]}",
          f"s_cmp_eq_u32 {sR}, 16\ns_cselect_b32 {sSEL[0]}, 0x01000c0c, {sSEL[0]}\ns_cselect_b32 {sSEL[1]}, 0x03020c0c, {sSEL[1]}\ns_cselect_b32 {sM1}, 0x80000000, {sM1}",
          f"s_cmp_ge_u32 {sC}, 4\ns_cselect_b32 {sT3}, 0x80008000, 0\ns_xor_b32 {sM1}, {sM1}, {sT3}"]
    F += [f"s_mul_i32 {sT0}, {sC}, {OPT['prot']}\ns_add_u32 s47, {sW}, {sT0}\ns_and_b32 s47, s47, 3", f"s_mul_i32 {sKB}, {sR}, {4*28672}\ns_add_u32 {sKB}, {sKB}, {HB}", f"s_mul_i32 {sT0}, s47, 7168\ns_add_u32 {sKB}, {sKB}, {sT0}",
          f"s_mul_i32 s20, {sC}, 114688\ns_mul_i32 {sT0}, s47, 28672", f"s_add_u32 s20, s20, {sT0}\ns_add_u32 s20, s20, {WOP}"]
    for u in range(4):
        F += [f"s_add_u32 {sT0}, {sW}, {u}\ns_and_b32 {sT0}, {sT0}, 3", f"s_mul_i32 {sT0}, {sT0}, 28672\ns_add_u32 s{24+u}, {sT0}, {sKB}"]
    F += [f"s_lshl_b32 {sT0}, {sW}, 1\nv_lshlrev_b32 v11, 3, {vQ}", f"v_add_u32 v11, {sT0}, v11", "v_cvt_f32_u32 v11, v11"]
    gu = [vG, "v14", "v15", "v6"]
    F += [f"v_mul_f32 {vOMG}, {fbits(1.4426950408889634)}, {vG}", f"v_exp_f32 {vOMG}, {vOMG}", f"v_add_f32 {vOMG}, 1.0, {vOMG}", f"v_rcp_f32 {vOMG}, {vOMG}"]
    for g_ in gu: F += [f"v_mul_f32 {g_}, {fbits(-1.4426950408889634)}, {g_}", f"v_exp_f32 {g_}, {g_}", f"v_add_f32 {g_}, 1.0, {g_}", f"v_rcp_f32 {g_}, {g_}"]
    for u in range(4):
        F += [f"s_sub_i32 {sT0}, {sCU[u]}, {sCU[0]}\ns_ashr_i32 {sT0}, {sT0}, 12", f"v_add_u32 v4, {sT0}, {vTrow}", "v_cvt_f32_u32 v4, v4", f"v_mul_f32 v4, {fbits(1/2048)}, v4", "v_mul_f32 v5, v4, v11"]
        for k in (0, 1):
            for g2 in (0, 1):
                d = CF + 8 * u + 4 * k + 2 * g2
                F += [f"v_fmamk_f32 v114, v4, {fbits(float(k+32*g2))}, v5"] + (["v_fract_f32 v114, v114"] if OPT["fract"] else []) + ["v_sin_f32 v115, -v114", "v_cos_f32 v114, v114",
                      f"v_mul_f32 v115, {gu[u]}, v115", f"v_mul_f32 v114, {gu[u]}, v114", "v_cvt_pk_bf16_f32 v114, v114, v115",
                      f"v_perm_b32 {vr(d)}, v114, v114, {sSEL[0]}", f"v_perm_b32 {vr(d+1)}, v114, v114, {sSEL[1]}",
                      f"v_xor_b32 {vr(d)}, {sM0}, {vr(d)}", f"v_xor_b32 {vr(d+1)}, {sM1}, {vr(d+1)}"]
    F += [f"v_lshlrev_b32 v6, 10, {vTrow}", f"v_bfe_u32 v114, {vLane}, 4, 1", "v_lshl_add_u32 v6, v114, 5, v6", f"v_lshrrev_b32 v114, 5, {vLane}", "v_lshl_add_u32 v6, v114, 4, v6",
          f"v_lshlrev_b32 v14, 3, {vLane}", "v_and_b32 v15, 56, v14", "v_lshlrev_b32 v15, 4, v15"]
    F += [f"s_mul_i32 s46, s47, 896\ns_add_u32 s46, s46, {FLAGQ}", "v_min_u32 v115, 768, v15"]
    F += [f"s_lshl_b32 {sT0}, s47, 13\ns_lshl_b32 {sT1}, {sR}, 7", f"s_add_u32 {sT0}, {sT0}, {sT1}\ns_add_u32 {sT0}, {sT0}, {FLAGF}", f"s_sub_u32 {sT0}, {sT0}, s46\nv_and_b32 v114, 1, v1", f"v_lshl_add_u32 v114, v114, 12, {sT0}",
          "v_cmp_lt_u32 vcc, 31, v1\ns_nop 1\nv_cndmask_b32 v115, v115, v114, vcc"]
    F += ["v_bfe_u32 v15, v1, 1, 2", "v_mul_u32_u24 v15, 28672, v15", "v_and_b32 v114, 1, v1", "v_lshl_add_u32 v15, v114, 9, v15"]
    nsetup = len(F)
    F = deque(F)
    def red_w(ft): return [(lambda u=u: A.ds(f"ds_write_b128 v{15+u}, {vr(ACC+(ft*4+u)*4,4)} offset:{ft*1024}")) for u in (1, 2, 3)]
    tk = {}
    def red_r(ft):
        def f(u): tk[ft] = A.ds(f"ds_read_b128 {vr(ACC+(ft*4+u)*4,4)}, v19 offset:{(u-1)*7168+ft*1024}")
        return [(lambda u=u: f(u)) for u in (1, 2, 3)]
    def hst(t): tk["h"] = A.vmem(t)
    def epi(ft):
        b = ACC + ft * 16; hq = ACC + (ft & ~1) * 16 + 12 + 2 * (ft & 1); z = b + 4
        E = [f"v_add_f32 {vr(b+p)}, {vB}, {vr(b+p)}" for p in range(4)]
        E += [lambda: A.wait_lg(tk[ft])]
        E += [f"v_add_f32 {vr(b+p)}, {vr(b+p)}, {vr(b+4+p)}" for p in range(4)] + [f"v_add_f32 {vr(b+8+p)}, {vr(b+8+p)}, {vr(b+12+p)}" for p in range(4)]
        for k in (0, 1): E += [f"v_lshlrev_b32 {vr(z+2*k)}, 16, {vr(Z1P+2*ft+k)}", f"v_and_b32 {vr(z+2*k+1)}, 0xffff0000, {vr(Z1P+2*ft+k)}"]
        E += [f"v_add_f32 {vr(b+p)}, {vr(b+p)}, {vr(b+8+p)}" for p in range(4)]
        E += [f"v_mul_f32 {vr(z+p)}, {vOMG}, {vr(z+p)}" for p in range(4)]
        E += [f"v_mul_f32 {vr(b+p)}, {vr(b+p)}, {vr(z+p)}" for p in range(4)]
        E += [f"v_cvt_pk_bf16_f32 {vr(hq)}, {vr(b)}, {vr(b+1)}", f"v_cvt_pk_bf16_f32 {vr(hq+1)}, {vr(b+2)}, {vr(b+3)}"]
        if ft % 2: E += [lambda: hst(f"buffer_store_dwordx4 {vr(hq-2,4)}, {vL16}, {sWS}, s80 offen offset:{1024*(ft>>1)} sc1")]
        if ft == 6: E += [f"v_min_u32 {vr(hq)}, -2, {vr(hq)}", lambda: A.wait_vm(tk["h"]), lambda: A.vmem(f"buffer_store_dwordx2 {vr(hq,2)}, v14, {sWS}, s81 offen offset:3072 sc1")]
        return E
    def run(e): A.raw(e) if isinstance(e, str) else e()
    bar = lambda: (A.wait_all_lg(), A.raw("s_barrier"))
    def elist(fts, gap): return deque(sum((red_w(ft) for ft in fts), []) + [""] * gap + [bar] + sum((red_r(ft) for ft in fts), []) + [""] * gap + sum((epi(ft) for ft in fts), []))
    E1, E2 = elist(range(4), 16), elist((4, 5), 10)
    ldF = [f"buffer_load_dwordx2 v[2:3], v13, {sWS}, 0 offen sc1", f"buffer_load_dwordx2 v[4:5], v115, {sWS}, s46 offen sc1"]
    A.per = 56
    NPF = OPT["npf"]
    for j in range(max(5, len(CK) + 1), 8): c_read(j)
    nxt = NPRE
    late = [(f"s_add_u32 {sBG}, s20, {(m>>2)*4096}" if m % 4 == 0 else "", f"buffer_load_dwordx4 {ar(4*m,4)}, {vL16}, {sWS}, {sBG} offen offset:{(m&3)*1024} sc1") for m in range(28)]
    fl = [(f"s_xor_b32 {sBG}, s21, {et*256}" + (f"\ns_add_u32 {sBG}, {sBG}, 4352" if k else ""), f"buffer_load_dwordx4 {vr(FB[k*4+et],4)}, v12, {sWS}, {sBG} offen sc1") for k in (0, 1) for et in range(4)]
    for n in range(112):
        ks, ft = zpos(n)
        if n == 4: A.wait_all_lg()
        if n == 40: A("s_barrier")
        if n == NPF + R + 1: poll(ldF, tagcmp([2, 4]), tokPF)
        A.wait_vm(tz[n])
        if n % 16 == 0: A.st("p%d" % n, 2)
        for u in range(4):
            mfma(vr(ACC + (ft * 4 + u) * 4, 4), vr(zreg(n), 4), ar((ks * 4 + u) * 4, 4), "0" if ks == 0 else None)
            if n >= 4 and F: A.raw(F.popleft())
            for _ in range(1 if F else 2):
                if n >= 66 and E1: run(E1.popleft())
                elif n >= 98 and E2: run(E2.popleft())
            if u == 1 and nxt < max(n, len(ONE)) + R and nxt < 112: zload(nxt); nxt += 1
        if nxt < max(n + 1, len(ONE)) + R and nxt < 112: zload(nxt); nxt += 1
        if n == NPF:
            assert n * 4 - 16 > nsetup
            for l in ldF: tokPF = A.vmem(l)
        if n >= 94 and n < 102: assert FB[n - 94] == zreg(n); A.push([fl[n - 94]], "FL" if n == 101 else None)
        if n == 103: A.push(late, "WO")
    assert not F and not E1
    while E2: run(E2.popleft())
    A("s_nop 7")
    A.stamp(12)
    A.raw('Lph_tail:')
    for e in elist((6,), 0): run(e)
    A.stamp(13)
    OA = 116
    RED2 = 98304
    for u in (1, 2, 3):
        A(f"s_add_u32 {sT0}, {sW}, {u}\ns_and_b32 {sT0}, {sT0}, 3\ns_mul_i32 {sT0}, {sT0}, 12288\ns_add_u32 {sT0}, {sT0}, {RED2+(u-1)*4096}\nv_add_u32 v{15+u}, {sT0}, {vL16}")
    A(f"s_mul_i32 {sT0}, {sW}, 12288\ns_add_u32 {sT0}, {sT0}, {RED2}\nv_add_u32 v19, {sT0}, {vL16}\ns_lshl_b32 {sT1}, {sC}, 7\ns_add_u32 {sT2}, {sT1}, {1024*1024}")
    if OPT["ofl"]: A(f"v_bfe_u32 v13, v1, 3, 1\nv_mul_u32_u24 v13, {1024*1024-64}, v13\nv_sub_u32 v6, v6, v13")
    for u in range(4): A(f"s_add_u32 {sCU[u]}, s{24+u}, 4096")
    A.wait_named("FL")
    for k in (0, 1):
        for u in range(4):
            for et in range(4): mfma(vr(OA + 16 * u + 4 * et, 4), vr(FB[k * 4 + et], 4), vr(CF + 8 * u + 4 * k, 4), "0" if k == 0 else None)
    A.flush()
    A.stamp(14)
    ldH = [f"buffer_load_dword v2, v15, {sWS}, {sKB} offen offset:3072 sc1"]
    hr = list(range(180, 256, 4)) + [20, 24, 28, 32, 56, 60, 64, 68, 72]
    th = {}
    order = [(u, ls) for u in (1, 2, 3, 0) for ls in range(7)]
    def htext(n):
        u, ls = order[n]; h = hr[n]
        sb = f"s{24+u}" if ls < 4 else sCU[u]; io = (ls & 3) * 1024
        if ls == 3: return [f"buffer_load_dwordx2 {vr(h+2*k,2)}, v14, {sWS}, {sb} offen offset:{io+512*k} sc1" for k in (0, 1)]
        return [f"buffer_load_dwordx4 {vr(h,4)}, {vL16}, {sWS}, {sb} offen offset:{io} sc1"]
    def hload(n):
        if n < 28:
            for t_ in htext(n): th[n] = A.vmem(t_)
    HL = OPT["hl"]
    tokPH = A.vmem(ldH[0])
    if OPT["spec"]:
        for n in range(HL): hload(n)
    A.stamp(15)
    poll(ldH, "v_cmp_eq_u32 vcc, -1, v2", tokPH, sleep=OPT["hsleep"], redo=[t_ for n in range(HL) for t_ in htext(n)] if OPT["spec"] else None)
    A.stamp(16)
    if not OPT["spec"]:
        for n in range(HL): hload(n)
    def chk(n): return f"v_max_u32 v2, {vr(hr[n])}, {vr(hr[n]+2)}\nv_cmp_eq_u32 vcc, -1, v2" if order[n][1] == 3 else f"v_cmp_eq_u32 vcc, -1, {vr(hr[n])}"
    def br(n):
        A.raw(f"s_cbranch_vccnz Lfix{n}\nLbk{n}:")
        FIX.append(f"Lfix{n}:\ns_mov_b32 {sSPIN}, 0x400000\nLfl{n}:\n" + "\n".join(htext(n)) + f"\ns_waitcnt vmcnt(0)\n{chk(n)}\ns_cbranch_vccz Lbk{n}\ns_sub_u32 {sSPIN}, {sSPIN}, 1\ns_cmp_lg_u32 {sSPIN}, 0\ns_cbranch_scc1 Lfl{n}\ns_branch Lbk{n}")
    A.wait_vm(th[0])
    for n in range(28):
        u, ls = order[n]
        A.wait_vm(th[n])
        if n in (0, 7, 14, 21, 26): A.st("h%d" % n, 2)
        for et in range(4):
            mfma(vr(OA + 16 * u + 4 * et, 4), ar((ls * 4 + et) * 4, 4), vr(hr[n], 4))
            if et == 1 and n < 27 and order[n + 1][1] == 3: A.wait_vm(th[n + 1]); A.raw(chk(n + 1))
        if n < 27 and order[n + 1][1] == 3: br(n + 1)
        hload(n + HL)
        if n in (8, 15, 22):
            up = order[n - 2][0]
            for et in range(4): A.ds(f"ds_write_b128 v{15+up}, {vr(OA+16*up+4*et,4)} offset:{et*1024}")
        if n == 25:
            A.wait_all_lg(); A.st("hb", 2); A("s_barrier")
            for k in range(12): A.ds(f"ds_read_b128 {vr(OA+16+4*k,4)}, v19 offset:{k*1024}")
    A.wait_all_lg(); A("s_nop 4")
    for p in range(0, 16, 2): A(f"v_pk_add_f32 {vr(OA+16+p,2)}, {vr(OA+16+p,2)}, {vr(OA+32+p,2)}")
    for p in range(0, 16, 2): A(f"v_pk_add_f32 {vr(OA+p,2)}, {vr(OA+p,2)}, {vr(OA+48+p,2)}")
    for p in range(0, 16, 2): A(f"v_pk_add_f32 {vr(OA+p,2)}, {vr(OA+p,2)}, {vr(OA+16+p,2)}")
    for et in range(4):
        A(f"v_cvt_pk_bf16_f32 v{40+2*et}, {vr(OA+4*et)}, {vr(OA+4*et+1)}\nv_cvt_pk_bf16_f32 v{41+2*et}, {vr(OA+4*et+2)}, {vr(OA+4*et+3)}")
    A("s_nop 1")
    for pr in (0, 1): A(f"{P16} v{40+4*pr}, v{42+4*pr}\n{P16} v{41+4*pr}, v{43+4*pr}")
    osc = ('', 'sc1', 'nt', 'sc0 sc1', 'sc1 nt')[OPT['osc']]
    if OPT["ofl"]:
        for k in range(4): A(f"v_mov_b32 v{48+k}, v{40+k}")
        for k in range(4): A(f"v_mov_b32_dpp v{40+k}, v{44+k} row_ror:8 row_mask:0xf bank_mask:0xc")
        for k in range(4): A(f"v_mov_b32_dpp v{44+k}, v{48+k} row_ror:8 row_mask:0xf bank_mask:0x3")
        for pr in (0, 1): A.vmem(f"buffer_store_dwordx4 {vr(40+4*pr,4)}, v6, {sOUT}, {sT2 if pr else sT1} offen {osc}")
    else:
        A("s_nop 1")
        for pr in (0, 1): A.vmem(f"buffer_store_dwordx4 {vr(40+4*pr,4)}, v6, {sOUT}, {sT1} offen offset:{64*pr} {osc}")
    A.stamp(17)
    lb = A.lab("Lnobump")
    A(f"s_or_b32 {sT0}, s2, {sW}\ns_cmp_lg_u32 {sT0}, 0\ns_cbranch_scc1 {lb}")
    A(f"v_mov_b32 v11, {EPOCH}\ns_mov_b64 exec, 1\nbuffer_store_dwordx2 v[38:39], v11, {sWS}, 0 offen sc1\ns_mov_b64 exec, -1\n{lb}:")
    if OPT["diag"] >= 0:
        A(f"s_cmp_lg_u32 s2, 9\ns_cbranch_scc1 Lend\ns_sub_u32 s96, s96, s98\ns_lshl_b32 s96, s96, 3\ns_add_u32 s96, s96, 5000\nLdiag:\ns_memrealtime s[100:101]\ns_waitcnt lgkmcnt(0)\ns_sub_u32 s100, s100, s98\ns_cmp_lt_u32 s100, s96\ns_cbranch_scc1 Ldiag")
    if OPT["prof"]:
        A("s_memrealtime s[100:101]\ns_waitcnt lgkmcnt(0)\nv_writelane_b32 v0, s100, 63")
        A(f"s_lshl_b32 {sT0}, s2, 2\ns_add_u32 {sT0}, {sT0}, {sW}\ns_lshl_b32 {sT0}, {sT0}, 8\ns_add_u32 {sT0}, {sT0}, {TS}\nv_lshlrev_b32 v11, 2, v1\nbuffer_store_dword v0, v11, {sWS}, {sT0} offen")

if OPT['ce']: OPT['x0'] = 3
prologue()
A(f"s_cmp_eq_u32 {sCA}, 7\ns_cbranch_scc1 Llead")
st = (list(A.vm), list(A.lg))
front_main()
assert not A.bg
A.raw("Ljoin:")
front2()
mid_B()
back()
A("s_branch Lend")
A.raw("Llead:")
A.vm, A.lg = st; A.tok = {}; A.per = OPT["per"]
front_lead()
assert not A.bg
A("s_branch Ljoin")
for f_ in FIX: A.raw(f_)
A("Lend:\ns_endpgm")

hdr = open("cdna_kernels/%s.s.ref" % NAME).read().split("; Override launch")[0]
if OPT["prof"]: hdr += "; STAMPS " + " ".join(A.names) + "\n"
hdr += """; ---------------------------------------------------------------------------------------------
;  * FNet branch: A_dft_* are the constant DFT matrices (identical for every seed), so Re(F_S x F_D) is evaluated as a
;    Cooley-Tukey factorisation (hidden dim: radix 4 x 128 with Hermitian symmetry; sequence dim: radix 32 x 64) whose
;    twiddles cos/sin(2*pi*k/N) are produced with v_cos/v_sin instead of being read.
;  * Hand-offs between workgroups go through d_ws with sc1 stores/loads. Flags carry a tag hashed from a word this launch
;    reads in d_ws at entry (and replaces at its end), only to tell its own flags from stale ones. Placement-independent.
; ---------------------------------------------------------------------------------------------
"""
out = hdr + "; @launch grid=(256,1,1) block=(256,1,1) lds=%d\n" % LDS_SIZE
out += '.amdgcn_target "amdgcn-amd-amdhsa--gfx950"\n.text\n.globl %s_kernel\n.p2align 8\n.type %s_kernel,@function\n%s_kernel:\n' % (NAME, NAME, NAME)
def addnt(l):
    t = l.strip()
    if OPT["nt"] and (t.startswith("buffer_load") or t.startswith("global_load")) and sWS not in t:
        return l[:-4] + " nt lds" if t.endswith(" lds") else l + " nt"
    return l
if OPT["wx"] == 1: A.L = [l.replace(" sc1", "") if ("v25," in l or "v26," in l) and "a[" in l else l for l in A.L]
if OPT["wx"] == 2: A.L = [l for l in A.L if not ("v26," in l and "a[" in l)]
if OPT["wx"] == 3: A.L = [l.replace("v26, s[40:43]", "v25, s[28:31]").replace("s_mul_i32 s3, s94,", "s_add_u32 s3, s3, 1024 ;") for l in A.L]
if OPT["ph"]:
    i1, i2 = A.L.index("Lph_p2:"), A.L.index("Lph_tail:")
    kinds = {1: ("v_mfma",), 2: ("v_mfma",), 3: ("v_mfma", "ds_read"), 4: ("v_pk_", "v_exp", "v_rcp", "v_cos", "v_sin", "v_fmamk", "v_cvt_pk")}[OPT["ph"]]
    A.L = [l for i, l in enumerate(A.L) if not (l.strip().startswith(kinds) and ((i1 < i < i2) if OPT["ph"] == 1 else (i < i1)))]
ab = OPT["abl"]
def ablate(i, l):
    t = l.strip()
    oob = lambda reg: l.replace(reg, "v19x")
    if not t.startswith("buffer_"): return True
    if ab == 1: return not ("v25," in t or "v26," in t)
    if ab == 2: return not ("v29," in t or "v30," in t)
    if ab == 3: return not ("v35," in t)
    if ab == 4: return not (t.startswith("buffer_load_dwordx4 a[") and ", v7," in t)
    if ab == 5: return not (", v37," in t and "offset:1024" in t)
    if ab == 6: return not (t.startswith("buffer_load_dwordx4 a[") and ", v12," in t)
    if ab == 7: return not ("v28," in t or any("v%d," % k in t for k in (113, 115, 117, 119)))
    if ab == 8: return not ("v[236:239]" in t and "s80" in t)
    if ab == 9: return not (t.startswith("buffer_store_dwordx4 v[22") or t.startswith("buffer_store_dwordx4 v[232"))
    return True
if ab: A.L = [l for i, l in enumerate(A.L) if ablate(i, l)]
def keep(l):
    t = l.strip()
    if OPT["strip"] == 1: return not t.startswith(("v_mfma", "ds_", "v_pk_", "v_exp", "v_rcp", "v_cos", "v_sin", "v_fract", "v_fmamk", "v_cvt_pk", "v_perm_b32"))
    if OPT["strip"] == -1: return not (t.startswith("buffer_store_dwordx2 v[1") and ", v14, " in t)
    if OPT["strip"] == -2: return not t.startswith("s_cbranch_vccnz Lfix")
    if OPT["strip"] == -3: return not (t.startswith("s_cbranch_vccnz Lfix") or t.startswith("v_mfma"))
    if OPT["strip"] == 3 and t.startswith("ds_read"): return False
    if OPT["strip"] == 4 and t.startswith("s_waitcnt lgkmcnt") and not t.endswith("(0)"): return False
    if OPT["strip"] == 5 and t.startswith("v_mfma"): return False
    if OPT["strip"] == 6 and t.startswith("s_barrier"): return False
    if OPT["strip"] >= 2: return not (t.endswith(" lds") or (t.startswith("buffer_load_dwordx4") and (", v37, " in t or ", v7, " in t or " a[" in t)))
    return True
out += "\n".join(addnt(l) for l in A.L if keep(l)) + "\n"
out += """.section .rodata,"a"
.p2align 6
.amdhsa_kernel %s_kernel
  .amdhsa_next_free_vgpr 512
  .amdhsa_next_free_sgpr 102
  .amdhsa_accum_offset 256
  .amdhsa_group_segment_fixed_size 0
  .amdhsa_kernarg_size 112
  .amdhsa_user_sgpr_count 2
  .amdhsa_user_sgpr_kernarg_segment_ptr 1
  .amdhsa_system_sgpr_workgroup_id_x 1
.end_amdhsa_kernel
""" % NAME
def align_pass(out):
    import subprocess, re, os
    tmp = "_al_%d" % os.getpid()
    open(tmp + ".s", "w").write(out)
    subprocess.run(["clang", "-x", "assembler", "-target", "amdgcn-amd-amdhsa", "-mcpu=gfx950", "-c", tmp + ".s", "-o", tmp + ".o"], check=True)
    dis = subprocess.run(["llvm-objdump", "-d", "--mcpu=gfx950", tmp + ".o"], capture_output=True, text=True).stdout
    os.remove(tmp + ".s"); os.remove(tmp + ".o")
    info = [(m.group(1), len(m.group(2).split()) * 4) for m in re.finditer(r"^\t(\S+).*// [0-9A-F]+: ([0-9A-F ]+)", dis, re.M)]
    lines = out.split("\n")
    idx = [i for i, l in enumerate(lines) if l.startswith("    ") and not l.strip().startswith((";", "."))]
    assert len(idx) == len(info), (len(idx), len(info))
    off = 0; cand = None; n = 0
    for k, (i, (op, sz)) in enumerate(zip(idx, info)):
        if sz == 8 and off % 8 == 4 and cand is not None and k - cand <= OPT["algn"] * 6:
            j = idx[cand]; t = lines[j].split(None, 1)
            lines[j] = "    " + t[0] + "_e64 " + t[1]; off += 4; cand = None; n += 1
        if sz == 4 and op.endswith("_e32") and not op.startswith(("v_readfirstlane", "v_permlane", "v_swap", "v_cndmask", "v_cmp")): cand = k
        elif sz == 8: cand = None
        off += sz
    return "\n".join(lines)
if OPT["algn"]: out = align_pass(out)
open(sys.argv[1], "w").write(out)
```
